```python
import torch

def _softmax(x, axis=-1):
    return torch.softmax(x, dim=axis)

def _gelu(x):
    return torch.nn.functional.gelu(x, approximate='tanh')

def _silu(x):
    return torch.nn.functional.silu(x)

def _sigmoid(x):
    return torch.sigmoid(x)

def _layernorm(x, axis=-1, eps=1e-05):
    m = x.mean(dim=axis, keepdim=True)
    v = x.var(dim=axis, keepdim=True, unbiased=False)
    return (x - m) / torch.sqrt(v + eps)

def _scatter_add(tgt, idx, src, axis=0):
    return tgt.clone().index_add_(axis, idx, src)

def _segment_sum(src, seg, n):
    out = torch.zeros((n,) + src.shape[1:], dtype=src.dtype)
    return out.index_add_(0, seg, src)

def _pad(x, pw):
    flat = tuple((v for pair in reversed(pw) for v in pair))
    return torch.nn.functional.pad(x, flat)
kernel_name = 'adaLN_cond__gqa_block_cached__geglu_ffn__decode'

def setup_inputs():

    _w = lambda a: (lambda t: t.to(torch.bfloat16) if t.is_floating_point() else t)(torch.as_tensor(a))

    def _A_setup():
        B, Sq, D = (4, 1, 640)
        Hq, Hkv, Sk, Dh = (32, 32, 4096, 192)
        assert Hq % Hkv == 0, (Hq, Hkv)
        return {'x': _w((lambda *s: torch.randn(*s, dtype=torch.bfloat16) * 0.05)(B, Sq, D)), 'k_cache': _w((lambda *s: torch.randn(*s, dtype=torch.bfloat16) * 3.2)(B, Hkv, Sk, Dh)), 'v_cache': _w((lambda *s: torch.randn(*s, dtype=torch.bfloat16) * 0.4)(B, Hkv, Sk, Dh)), 'wq': _w((lambda *s: torch.randn(*s, dtype=torch.bfloat16) * 3.2)(D, Hq * Dh) * D ** (-0.5)), 'wo': _w((lambda *s: torch.randn(*s, dtype=torch.bfloat16) * 0.4)(Hq * Dh, D) * (Hq * Dh) ** (-0.5))}
    _A_in = _A_setup()

    def _B_setup():
        B, S, D, F = (4, 1, 640, 1536)
        return {'x': _w((lambda *s: torch.randn(*s, dtype=torch.bfloat16) * 0.05)(B, S, D)), 'w_gate': _w((lambda *s: torch.randn(*s, dtype=torch.bfloat16) * 0.05)(D, F)), 'w_up': _w((lambda *s: torch.randn(*s, dtype=torch.bfloat16) * 0.05)(D, F)), 'w_down': _w((lambda *s: torch.randn(*s, dtype=torch.bfloat16) * 0.05)(F, D))}
    _B_in = _B_setup()
    return {'A_x': _A_in['x'], 'A_k_cache': _A_in['k_cache'], 'A_v_cache': _A_in['v_cache'], 'A_wq': _A_in['wq'], 'A_wo': _A_in['wo'], 'B_x': _B_in['x'], 'B_w_gate': _B_in['w_gate'], 'B_w_up': _B_in['w_up'], 'B_w_down': _B_in['w_down'], 'c': _w((lambda *s: torch.randn(*s, dtype=torch.bfloat16) * 0.1)(4, 640) * 8.0), 'w_mod': _w((lambda *s: torch.randn(*s, dtype=torch.bfloat16) * 0.1)(640, 6 * 640) * 640 ** (-0.5) * 8.0)}

def reference(A_x, A_k_cache, A_v_cache, A_wq, A_wo, B_x, B_w_gate, B_w_up, B_w_down, c, w_mod):

    def _A_ref(x, k_cache, v_cache, wq, wo):
        B, Sq, D = x.shape
        Hq, Dh = (32, 192)
        Hkv = k_cache.shape[1]
        rep = Hq // Hkv
        q = (lambda x, *d: x.permute(*d))((x @ wq).reshape(B, Sq, Hq, Dh), 0, 2, 1, 3)
        k = (lambda x, n, axis: torch.repeat_interleave(x, n, dim=axis))(k_cache, rep, axis=1)
        v = (lambda x, n, axis: torch.repeat_interleave(x, n, dim=axis))(v_cache, rep, axis=1)
        scores = torch.einsum('bhqd,bhkd->bhqk', q, k) * Dh ** (-0.5)
        p = _softmax(scores, axis=-1)
        o = torch.einsum('bhqk,bhkd->bhqd', p, v)
        return (lambda x, *d: x.permute(*d))(o, 0, 2, 1, 3).reshape(B, Sq, Hq * Dh) @ wo

    def _B_ref(x, w_gate, w_up, w_down):
        return _gelu(x @ w_gate) * (x @ w_up) @ w_down
    x = A_x
    mod = (_silu(c) @ w_mod).reshape(c.shape[0], 6, 1, -1)
    sa, ca, ga, sb, cb, gb = (mod[:, 0].clone(), mod[:, 1].clone(), mod[:, 2].clone(), mod[:, 3].clone(), mod[:, 4].clone(), mod[:, 5].clone())
    h = _layernorm(x, axis=-1) * (1 + ca) + sa
    x = x + ga * _A_ref(h, A_k_cache, A_v_cache, A_wq, A_wo)
    h = _layernorm(x, axis=-1) * (1 + cb) + sb
    x = x + gb * _B_ref(h, B_w_gate, B_w_up, B_w_down)
    return x
```

```python
import re

TRANS = ('v_exp_f32', 'v_log_f32', 'v_rcp_f32', 'v_rsq_f32', 'v_sqrt_f32', 'v_sin_f32', 'v_cos_f32')

def regs_of(tok):
    tok = tok.strip()
    tok = tok.lstrip('-')
    if tok.startswith('abs(') or tok.startswith('|'):
        tok = tok.replace('abs(', '').replace(')', '').replace('|', '')
    m = re.fullmatch(r'([vsa])(\d+)', tok)
    if m: return [(m.group(1), int(m.group(2)))]
    m = re.fullmatch(r'([vsa])\[(\d+):(\d+)\]', tok)
    if m: return [(m.group(1), i) for i in range(int(m.group(2)), int(m.group(3)) + 1)]
    if tok == 'vcc': return [('s', 'vcc')]
    if tok in ('vcc_lo', 'vcc_hi'): return [('s', 'vcc')]
    if tok == 'exec': return [('s', 'exec')]
    if tok == 'm0': return [('s', 'm0')]
    return []

class Ins:
    def __init__(self, text):
        self.text = text
        t = text.split(';')[0].strip()
        self.is_label = t.endswith(':')
        self.mn = ''
        self.ops = []
        self.mods = ''
        if self.is_label or not t or t.startswith('.'):
            self.kind = 'label' if self.is_label else 'none'
            return
        parts = t.split(None, 1)
        self.mn = parts[0]
        rest = parts[1] if len(parts) > 1 else ''
        ops = []; cur = ''; depth = 0
        for ch in rest:
            if ch == '[' or ch == '(': depth += 1
            if ch == ']' or ch == ')': depth -= 1
            if ch == ',' and depth == 0:
                ops.append(cur.strip()); cur = ''
            else: cur += ch
        if cur.strip(): ops.append(cur.strip())
        if ops:
            sp = ops[-1].split()
            if len(sp) > 1:
                ops[-1] = sp[0]; self.mods = ' '.join(sp[1:])
        self.ops = ops
        mn = self.mn
        base = re.sub(r'_(e32|e64|dpp|sdwa)$', '', mn)
        self.base = base
        self.dpp = mn.endswith('_dpp') or bool(re.search(r'row_|quad_perm|wave_', self.mods))
        self.wr = set(); self.rd = set()
        if mn.startswith('v_mfma'):
            self.kind = 'mfma'
            self.wr = set(regs_of(ops[0])); self.A = set(regs_of(ops[1])); self.B = set(regs_of(ops[2])); self.C = set(regs_of(ops[3]))
            self.rd = self.A | self.B | self.C
        elif mn.startswith('v_'):
            self.kind = 'valu'
            if 'permlane' in mn and 'swap' in mn:
                self.wr = set(regs_of(ops[0]) + regs_of(ops[1])); self.rd = set(self.wr)
            else:
                self.wr = set(regs_of(ops[0]))
                k = 1
                if base in ('v_add_co_u32', 'v_sub_co_u32', 'v_addc_co_u32', 'v_subb_co_u32', 'v_div_scale_f32', 'v_mad_u64_u32'):
                    self.wr |= set(regs_of(ops[1])); k = 2
                for o in ops[k:]: self.rd |= set(regs_of(o))
                if base in ('v_fmac_f32', 'v_dot2c_f32_bf16', 'v_writelane_b32') or self.dpp:
                    self.rd |= set(regs_of(ops[0]))
                if base == 'v_cndmask_b32' and len(ops) == 3: self.rd.add(('s', 'vcc'))
        elif mn.startswith('buffer_') or mn.startswith('global_'):
            self.kind = 'vmem'
            self.lds = 'lds' in self.mods.split()
            self.store = '_store' in mn or '_atomic' in mn
            if self.lds:
                for o in ops: self.rd |= set(regs_of(o))
                self.rd.add(('s', 'm0'))
                self.data = set()
            elif self.store:
                for o in ops: self.rd |= set(regs_of(o))
                self.data = set(regs_of(ops[0]))
            else:
                self.wr = set(regs_of(ops[0]))
                for o in ops[1:]: self.rd |= set(regs_of(o))
                self.data = set()
        elif mn.startswith('ds_'):
            self.kind = 'ds'
            if mn.startswith('ds_read') or 'rtn' in mn or 'permute' in mn or 'swizzle' in mn:
                self.wr = set(regs_of(ops[0]))
                for o in ops[1:]: self.rd |= set(regs_of(o))
            else:
                for o in ops: self.rd |= set(regs_of(o))
        elif mn.startswith('s_'):
            self.kind = 'salu'
            if mn in ('s_nop', 's_waitcnt', 's_barrier', 's_endpgm', 's_sleep', 's_setprio') or mn.startswith('s_cbranch') or mn == 's_branch' or mn.startswith('s_cmp'):
                for o in ops: self.rd |= set(regs_of(o))
            else:
                if ops: self.wr = set(regs_of(ops[0]))
                for o in ops[1:]: self.rd |= set(regs_of(o))
        else:
            raise ValueError('unknown instruction ' + text)

    def states(self):
        if self.kind in ('label', 'none'): return 0
        if self.mn == 's_nop': return int(self.ops[0]) + 1
        return 1

def V(s): return {r for r in s if r[0] in 'va'}
def S(s): return {r for r in s if r[0] == 's'}

def need(P, C):
    n = 0
    pk, ck = P.kind, C.kind
    if pk == 'valu':
        pw = V(P.wr); ps = S(P.wr)
        if ck == 'valu':
            if C.dpp and (pw & V(C.rd)): n = max(n, 2)
            if 'permlane' in C.mn and (pw & V(C.rd)): n = max(n, 2)
            if P.base in TRANS and C.base not in TRANS and (pw & V(C.rd)): n = max(n, 1)
            if C.base in ('v_readfirstlane_b32', 'v_readlane_b32') and (pw & V(C.rd)): n = max(n, 1)
            if ps & S(C.rd):
                n = max(n, 4 if C.base in ('v_readlane_b32', 'v_writelane_b32') else 2)
        if ck == 'mfma' and (pw & C.rd): n = max(n, 2)
        if ck == 'vmem' and (ps & S(C.rd)): n = max(n, 5)
        if P.base.startswith('v_dot2'):
            if ck in ('valu', 'mfma', 'vmem', 'ds') and (pw & (V(C.rd) | V(C.wr))):
                if ck == 'valu' and C.base == P.base:
                    if C.base == 'v_dot2c_f32_bf16': ab = set(regs_of(C.ops[1]) + regs_of(C.ops[2]))
                    else: ab = set(regs_of(C.ops[1]) + regs_of(C.ops[2]))
                    if pw & ab: n = max(n, 3)
                else:
                    n = max(n, 3)
    if pk == 'mfma':
        passes = 8 if '32x32' in P.mn else 4
        base = {4: (6, 8, 3), 8: (10, 12, 7)}[passes]
        if ck == 'mfma':
            if P.wr & C.C and P.wr != C.C: n = max(n, base[0])
            if P.wr & (C.A | C.B): n = max(n, base[1])
        elif ck in ('valu', 'vmem', 'ds'):
            if P.wr & (V(C.rd) | V(C.wr)): n = max(n, base[1])
            if ck == 'valu' and (P.C & V(C.wr)): n = max(n, base[2])
    if pk == 'salu' and ('s', 'm0') in P.wr and ck == 'vmem' and C.lds: n = max(n, 1)
    if pk == 'vmem' and P.store and ('x3' in P.mn or 'x4' in P.mn):
        if P.data & V(C.wr): n = max(n, 2 if ck in ('valu', 'mfma') else 1)
    return n

class Asm:
    def __init__(self):
        self.lines = []
    def __call__(self, *txt):
        for t in txt:
            for l in t.split('\n'):
                if l.strip(): self.lines.append(l.strip())
    def label(self, n): self.lines.append(n + ':')
    def fix(self):
        ins = [Ins(l) for l in self.lines]
        changed = True; total = 0
        while changed:
            changed = False
            labels = {i.text.split(';')[0].strip()[:-1]: k for k, i in enumerate(ins) if i.kind == 'label'}
            preds = {}
            for k, i in enumerate(ins):
                if i.kind == 'salu' and (i.mn.startswith('s_cbranch') or i.mn == 's_branch'):
                    preds.setdefault(labels[i.ops[0]], []).append(k)
            def prev_of(k):
                out = []
                if k > 0:
                    p = ins[k - 1]
                    if not (p.kind == 'salu' and p.mn in ('s_branch', 's_endpgm')): out.append(k - 1)
                out += preds.get(k, [])
                return out
            for k, C in enumerate(ins):
                if C.kind in ('label', 'none') or C.mn == 's_nop': continue
                worst = 0
                stack = [(p, 0) for p in prev_of(k)]
                seen = set()
                while stack:
                    p, dist = stack.pop()
                    if dist >= 13 or (p, dist) in seen: continue
                    seen.add((p, dist))
                    P = ins[p]
                    if P.kind not in ('label', 'none'):
                        r = need(P, C) - dist
                        if r > worst: worst = r
                    d2 = dist + P.states()
                    for q in prev_of(p): stack.append((q, d2))
                if worst > 0:
                    ins.insert(k, Ins(f's_nop {worst - 1}'))
                    total += worst
                    changed = True
                    break
        self.nops = total
        return [i.text for i in ins]
```

```python
import struct, sys
from asmgen import Asm
KNAME = 'adaLN_cond__gqa_block_cached__geglu_ffn__decode_kernel'
def f2u(x): return struct.unpack('<I', struct.pack('<f', x))[0]
LOG2E = f2u(1.4426950408889634)
SCALE = f2u(192 ** -0.5)

WS_EP = 0
WS_H = 0x1000
WS_X1 = 0x4000
WS_ST = 0x7000
WS_SC = 0x8000
WS_G = 0x10000
WS_Q = 0x18000
WS_REC = 0x30000
WS_Y = 0x58000
WS_STAMP = 0x100000
WS_SIZE = 0x200000
L_CNT = 0
L_GA = 256
L_GB = 512
L_X1 = 768
L_DI = 1024
L_DF = 4864
L_REC = 7424
L_INIT = 15616
L_WO = 77056
L_FW = 107776
LDS_SIZE = 156928

def gen(P=3, WPOL='nt', KPOL='nt', stamps=False, dry=True, sleep=1):
    A = Asm()
    NST = [0]
    def stamp(i):
        if stamps: A(f's_memrealtime s[{64+2*i}:{65+2*i}]')
    def stamp_flush(n):
        if not stamps: return
        A('s_waitcnt lgkmcnt(0)')
        A('s_lshl_b32 s60, s2, 4', 's_add_u32 s60, s60, s4', 's_lshl_b32 s60, s60, 6', f's_add_u32 s60, s60, {WS_STAMP}')
        A(f's_mov_b32 s46, {WS_SIZE}')
        A('v_mov_b32 v126, 0', 's_mov_b64 exec, 1')
        for i in range(n):
            A(f'v_mov_b32 v127, s{64+2*i}', f'buffer_store_dword v127, v126, s[44:47], s60 offen offset:{4*i}')
        A('s_waitcnt vmcnt(0)')
    def rnd(dst, src, tmp=None):
        t = tmp or dst
        A(f'v_cvt_pk_bf16_f32 {t}, {src}, {src}', f'v_lshlrev_b32 {dst}, 16, {t}')
    def srd(base, ptr, size, off=None):
        if off is None:
            A(f's_mov_b32 s{base}, s{ptr}', f's_mov_b32 s{base+1}, s{ptr+1}')
        else:
            A(f's_add_u32 s{base}, s{ptr}, {off}', f's_addc_u32 s{base+1}, s{ptr+1}, 0')
        A(f's_mov_b32 s{base+2}, {size}', f's_mov_b32 s{base+3}, 0x20000')
    def tagcalc():
        A('s_mul_i32 s9, s9, 0x9e3779b1', 's_add_u32 s9, s9, 0x7f4a7c15')
    def check_tags(regs, acc, retry, done, modechk):
        A(f'v_xor_b32 {acc}, s9, {regs[0]}')
        for r in regs[1:]:
            A(f'v_bitop3_b32 {acc}, {acc}, {r}, s9 bitop3:0xf6')
        A(f'v_cmp_ne_u32 vcc, 0, {acc}')
        A(f's_cbranch_vccz {done}')
        if modechk:
            A('s_cmp_eq_u32 s12, 0', f's_cbranch_scc1 {done}')
        if sleep: A(f's_sleep {sleep}')
        A('s_sub_u32 s95, s95, 1', f's_cbranch_scc0 {retry}', 's_mov_b32 s95, 0')
    def lds_signal(cnt):
        A('s_mov_b64 exec, 1', f'ds_add_u32 v10, v11 offset:{cnt}', 's_mov_b64 exec, -1')
    def lds_wait(cnt, target, name):
        A.label(name)
        A(f'ds_read_b32 v12, v10 offset:{cnt}', 's_waitcnt lgkmcnt(0)', 'v_readfirstlane_b32 s3, v12', f's_cmp_ge_u32 s3, {target}', f's_cbranch_scc1 {name}_x', 's_sub_u32 s95, s95, 1', f's_cbranch_scc0 {name}', 's_mov_b32 s95, 0')
        A.label(name + '_x')
    def dma_loop(n, srd_, voff, step, name):
        A(f's_mov_b32 s3, {n}')
        A.label(name)
        A(f'buffer_load_dwordx4 {voff}, s[{srd_}:{srd_+3}], s13 offen {WPOL} lds')
        A('s_add_u32 m0, m0, 1024', f's_add_u32 s13, s13, {step}', 's_sub_u32 s3, s3, 1', 's_cmp_lg_u32 s3, 0', f's_cbranch_scc1 {name}')
    def allreduce_b(s1, s2, t):
        for r in (4, 8):
            A(f'v_add_f32_dpp {s1}, {s1}, {s1} row_ror:{r} row_mask:0xf bank_mask:0xf')
            A(f'v_add_f32_dpp {s2}, {s2}, {s2} row_ror:{r} row_mask:0xf bank_mask:0xf')
        A(f'v_permlane16_swap_b32 {s1}, {s2}', f'v_add_f32 {s1}, {s1}, {s2}')
        A(f'v_mov_b32 {t}, {s1}', f'v_permlane32_swap_b32 {s1}, {t}', f'v_add_f32 {s1}, {s1}, {t}')
        A(f'v_mov_b32 {s2}, {s1}', f'v_permlane16_swap_b32 {s1}, {s2}')
    def ln_stats(s1, s2, t):
        A(f'v_mul_f32 {s1}, {hex(f2u(1/640))}, {s1}', f'v_mul_f32 {s2}, {hex(f2u(1/640))}, {s2}')
        A(f'v_fma_f32 {s2}, -{s1}, {s1}, {s2}', f'v_max_f32 {s2}, 0, {s2}')
        rnd(s1, s1, t); rnd(s2, s2, t)
        A(f'v_add_f32 {s2}, {hex(f2u(1e-5))}, {s2}'); rnd(s2, s2, t)
        A(f'v_sqrt_f32 {s2}, {s2}'); rnd(s2, s2, t)
        A(f'v_rcp_f32 {s2}, {s2}')

    A('s_cmp_ge_u32 s2, 256', 's_cbranch_scc1 L_end')
    stamp(0)
    A('s_load_dwordx16 s[16:31], s[0:1], 0', 's_load_dwordx8 s[32:39], s[0:1], 64', 's_load_dwordx2 s[40:41], s[0:1], 104')
    A('v_lshrrev_b32 v1, 6, v0', 'v_and_b32 v0, 63, v0', 'v_readfirstlane_b32 s4, v1')
    A('s_and_b32 s5, s2, 7', 's_lshr_b32 s6, s2, 3', 's_lshr_b32 s3, s6, 3', 's_lshl_b32 s7, s5, 2', 's_add_u32 s7, s7, s3', 's_and_b32 s8, s6, 7')
    A('s_mov_b32 s12, 0' if dry else 's_mov_b32 s12, 1')
    A('s_mov_b32 s95, 0x80000')
    A('s_cmp_lt_u32 s4, 5', 's_cbranch_scc1 L_service')

    vOA, vOB = 'v1', 'v2'
    q = ['v4', 'v5', 'v6']
    acc = [f'v{8+i}' for i in range(6)]
    vM, vL = 'v14', 'v15'
    Kr = lambda j, i=0: f'v{32+4*j+i}'
    Krr = lambda j: f'v[{32+4*j}:{34+4*j}]'
    T = lambda j: f'v{35+4*j}'
    Vr = lambda j, i=0: f'v{64+4*j+i}'
    Vrr = lambda j: f'v[{64+4*j}:{66+4*j}]'
    def ld(kind, j):
        r = Krr(j) if kind == 'K' else Vrr(j)
        s = 48 if kind == 'K' else 52
        vo, off = (vOA, j * 768) if j < 5 else (vOB, (j - 5) * 768)
        A(f'buffer_load_dwordx3 {r}, {vo}, s[{s}:{s+3}], s10 offen offset:{off} {KPOL}')
    A(f'v_mul_u32_u24 {vOA}, 12, v0', f'v_add_u32 {vOB}, 3840, {vOA}')
    A('s_lshr_b32 s3, s8, 1', 's_lshl_b32 s3, s3, 5', 's_add_u32 s3, s3, s7')
    A('s_lshl_b32 s11, s3, 1', 's_and_b32 s13, s8, 1', 's_add_u32 s11, s11, s13', 's_mul_i32 s11, s11, 786432')
    A('s_sub_u32 s13, s4, 5', 's_mul_i32 s10, s13, 6144')
    A('s_waitcnt lgkmcnt(0)')
    srd(48, 18, 786432, 's11'); srd(52, 20, 786432, 's11')
    A('s_load_dword s9, s[40:41], 0 glc')
    order = [('K', j) for j in range(8)] + [('V', j) for j in range(8)]
    for n, (kd, j) in enumerate(order[:P]): ld(kd, j)
    A('s_barrier')
    srd(44, 40, WS_SIZE)
    A('s_mul_i32 s14, s3, 768', f's_add_u32 s14, s14, {WS_Q}')
    A('v_and_b32 v3, 31, v0', 'v_mul_u32_u24 v3, 24, v3')
    A('s_mov_b32 s56, 0xcccccccc', 's_mov_b32 s57, 0xcccccccc')
    A(f's_mov_b32 s58, {hex(LOG2E)}', f's_mov_b32 s59, {hex(SCALE)}')
    A(f's_lshl_b32 s13, s13, 10', f's_add_u32 s13, s13, {L_REC}', 'v_lshlrev_b32 v7, 4, v0', 'v_add_u32 v7, s13, v7')
    for n, (kd, j) in enumerate(order[P:]):
        A(f's_waitcnt vmcnt({P-1})'); ld(kd, j)
    if dry: A('s_branch L_sepi')
    A.label('L_sgo')
    A('s_mov_b32 s12, 1')
    for a in acc: A(f'v_mov_b32 {a}, 0')
    A(f'v_mov_b32 {vM}, 0xff7fffff', f'v_mov_b32 {vL}, 0')
    A('s_waitcnt lgkmcnt(0)')
    tagcalc()
    stamp(1)
    A.label('L_qpoll')
    for i in range(3): A(f'buffer_load_dwordx2 v[{16+2*i}:{17+2*i}], v3, s[44:47], s14 offen offset:{8*i} sc1')
    A('s_waitcnt vmcnt(0)')
    check_tags(['v17', 'v19', 'v21'], 'v22', 'L_qpoll', 'L_qok', False)
    A.label('L_qok')
    stamp(2)
    for i in range(3): A(f'v_mov_b32 {q[i]}, v{16+2*i}')
    A('s_mov_b32 s11, 16')
    A.label('L_loop')
    A('s_add_u32 s10, s10, 49152', 's_sub_u32 s11, s11, 1', 's_cmp_eq_u32 s11, 0', 's_cselect_b32 s50, 0, 786432', 's_cselect_b32 s54, 0, 786432')
    for j in range(8):
        A('s_waitcnt vmcnt(15)')
        A(f'v_dot2_f32_bf16 {T(j)}, {Kr(j,0)}, {q[0]}, 0')
        A(f'v_dot2_f32_bf16 {T(j)}, {Kr(j,1)}, {q[1]}, {T(j)}')
        A(f'v_dot2_f32_bf16 {T(j)}, {Kr(j,2)}, {q[2]}, {T(j)}')
        ld('K', j)
    u = ['v16', 'v17', 'v18', 'v19']
    for i in range(4): A(f'v_add_f32_dpp {u[i]}, {T(i)}, {T(i)} row_ror:8 row_mask:0xf bank_mask:0x3')
    for i in range(4): A(f'v_add_f32_dpp {u[i]}, {T(i+4)}, {T(i+4)} row_ror:8 row_mask:0xf bank_mask:0xc')
    w = ['v20', 'v21']
    for i in range(2): A(f'v_add_f32_dpp {w[i]}, {u[i]}, {u[i]} row_half_mirror row_mask:0xf bank_mask:0x5')
    for i in range(2): A(f'v_add_f32_dpp {w[i]}, {u[i+2]}, {u[i+2]} row_half_mirror row_mask:0xf bank_mask:0xa')
    A(f'v_add_f32_dpp v22, {w[0]}, {w[0]} quad_perm:[2,3,0,1] row_mask:0xf bank_mask:0xf')
    A(f'v_add_f32_dpp v23, {w[1]}, {w[1]} quad_perm:[2,3,0,1] row_mask:0xf bank_mask:0xf')
    A('v_cndmask_b32 v22, v22, v23, s[56:57]')
    A('v_add_f32_dpp v22, v22, v22 quad_perm:[1,0,3,2] row_mask:0xf bank_mask:0xf')
    A('v_mov_b32 v23, v22', 'v_permlane16_swap_b32 v22, v23', 'v_add_f32 v22, v22, v23')
    rnd('v22', 'v22'); A('v_mul_f32 v22, s59, v22'); rnd('v22', 'v22')
    A('v_max_f32_dpp v23, v22, v22 quad_perm:[2,3,0,1] row_mask:0xf bank_mask:0xf')
    A('v_max_f32_dpp v23, v23, v23 row_half_mirror row_mask:0xf bank_mask:0xf')
    A('v_max_f32_dpp v23, v23, v23 row_ror:8 row_mask:0xf bank_mask:0xf')
    A(f'v_max_f32 v23, v23, {vM}')
    A(f'v_sub_f32 v24, {vM}, v23', 'v_sub_f32 v22, v22, v23', f'v_mov_b32 {vM}, v23')
    A('v_mul_f32 v24, s58, v24', 'v_mul_f32 v22, s58, v22', 'v_exp_f32 v24, v24', 'v_exp_f32 v22, v22')
    for i in range(3): A(f'v_pk_mul_f32 v[{8+2*i}:{9+2*i}], v[{8+2*i}:{9+2*i}], v[24:25] op_sel_hi:[1,0]')
    A('v_cvt_pk_bf16_f32 v26, v22, 0', 'v_cvt_pk_bf16_f32 v27, 0, v22')
    A(f'v_fma_f32 {vL}, {vL}, v24, v22')
    for j in range(8):
        A('s_waitcnt vmcnt(15)')
        for i in range(3):
            A(f'v_dot2c_f32_bf16_dpp {acc[2*i]}, v26, {Vr(j,i)} row_newbcast:{2*j} row_mask:0xf bank_mask:0xf')
            A(f'v_dot2c_f32_bf16_dpp {acc[2*i+1]}, v27, {Vr(j,i)} row_newbcast:{2*j} row_mask:0xf bank_mask:0xf')
        ld('V', j)
    A('s_cmp_lg_u32 s11, 0', 's_cbranch_scc1 L_loop')
    stamp(3)
    A.label('L_sepi')
    A(f'v_mov_b32 v16, {vM}', f'v_mov_b32 v17, {vM}', 'v_permlane32_swap_b32 v16, v17', 'v_max_f32 v16, v16, v17')
    A(f'v_add_f32_dpp {vL}, {vL}, {vL} quad_perm:[2,3,0,1] row_mask:0xf bank_mask:0xf')
    A(f'v_sub_f32 v18, {vM}, v16', 'v_mul_f32 v18, s58, v18', 'v_exp_f32 v18, v18')
    A(f'v_add_f32_dpp {vL}, {vL}, {vL} row_half_mirror row_mask:0xf bank_mask:0xf')
    A('v_mul_f32 v16, 0.5, v16')
    A(f'v_add_f32_dpp {vL}, {vL}, {vL} row_ror:8 row_mask:0xf bank_mask:0xf')
    for i in range(3): A(f'v_pk_mul_f32 v[{8+2*i}:{9+2*i}], v[{8+2*i}:{9+2*i}], v[18:19] op_sel_hi:[1,0]')
    A(f'v_mul_f32 {vL}, {vL}, v18')
    for i in range(3): A(f'v_permlane32_swap_b32 {acc[2*i]}, {acc[2*i+1]}')
    A(f'v_permlane32_swap_b32 {vL}, v16')
    for i in range(3): A(f'v_add_f32 v{20+i}, {acc[2*i]}, {acc[2*i+1]}')
    A(f'v_add_f32 v23, {vL}, v16')
    A('ds_write_b128 v7, v[20:23]')
    if dry: A('s_cmp_eq_u32 s12, 0', 's_cbranch_scc1 L_sgo')
    A('s_waitcnt lgkmcnt(0)', 's_barrier')
    stamp(4); stamp_flush(5)
    A('s_endpgm')

    A.label('L_service')
    A('s_setprio 2')
    A('s_mov_b32 s60, 0', 's_mov_b32 s61, 0', 's_mul_i32 s63, s5, 12')
    A('s_add_u32 s62, s63, 11', 's_cmp_eq_u32 s6, 0', 's_cselect_b32 s62, s62, -1')
    A('s_cmp_lt_u32 s8, 4', 's_cbranch_scc1 L_roled')
    A('s_lshr_b32 s3, s6, 3', 's_lshl_b32 s3, s3, 2', 's_add_u32 s3, s3, s8', 's_sub_u32 s3, s3, 4')
    A('s_mul_i32 s61, s5, 5', 's_add_u32 s61, s61, s3', 's_add_u32 s62, s63, s3')
    A('s_mov_b32 s60, 1', 's_cmp_lt_u32 s3, 5', 's_cbranch_scc1 L_roled')
    A('s_mov_b32 s60, 2', 's_sub_u32 s61, s61, 5', 's_mov_b32 s62, -1', 's_cmp_lt_u32 s3, 10', 's_cbranch_scc1 L_roled')
    A('s_mov_b32 s60, 3', 's_sub_u32 s61, s61, 5', 's_add_u32 s62, s63, s3', 's_sub_u32 s62, s62, 5', 's_cmp_lt_u32 s3, 15', 's_cbranch_scc1 L_roled')
    A('s_mov_b32 s60, 4')
    A.label('L_roled')
    A('v_lshrrev_b32 v1, 1, v0', 'v_and_b32 v2, 1, v0', 'v_lshlrev_b32 v2, 4, v2')
    A('s_lshl_b32 s3, s4, 7', 'v_add_u32 v3, s3, v1')
    A('v_and_b32 v4, 3, v0', 'v_bfe_u32 v5, v0, 2, 2', 'v_lshrrev_b32 v6, 4, v0')
    A(f'v_mov_b32 v10, {L_CNT}', 'v_mov_b32 v11, 1', 'v_mov_b32 v12, 0')
    for r in (112, 113, 115, 116): A(f'v_mov_b32 v{r}, 0')
    A('s_cmp_eq_u32 s4, 0', 's_cbranch_scc0 L_nozero')
    A('ds_write_b32 v10, v12', 'ds_write_b32 v10, v12 offset:4')
    A.label('L_nozero')
    A('s_waitcnt lgkmcnt(0)')
    A('s_load_dword s9, s[40:41], 0 glc')
    A('s_cmp_eq_u32 s60, 4', 's_cbranch_scc1 L_nojob')
    A('s_cmp_eq_u32 s60, 0', 's_cbranch_scc0 L_modjob')
    srd(48, 22, 640 * 12288)
    A('s_mov_b32 s42, 12288', 's_mul_i32 s14, s7, 384', 's_mul_i32 s3, s8, 96', 's_add_u32 s14, s14, s3', 's_add_u32 s15, s14, 32', 's_add_u32 s43, s14, 64')
    A('s_branch L_dojob')
    A.label('L_modjob')
    srd(48, 36, 640 * 7680)
    A('s_mov_b32 s42, 7680', 's_lshl_b32 s3, s61, 5')
    A('s_mov_b32 s14, 0', 's_mov_b32 s15, 1280')
    A('s_cmp_eq_u32 s60, 2', 's_cselect_b32 s14, 2560, s14', 's_cselect_b32 s15, 6400, s15')
    A('s_cmp_eq_u32 s60, 3', 's_cselect_b32 s14, 3840, s14', 's_cselect_b32 s15, 5120, s15')
    A('s_add_u32 s14, s14, s3', 's_add_u32 s15, s15, s3')
    srd(52, 34, 5120)
    A('v_mul_u32_u24 v7, 1280, v4', 'v_lshl_add_u32 v7, v5, 6, v7', 'v_lshl_add_u32 v7, v6, 4, v7', 's_lshl_b32 s3, s4, 8')
    A('buffer_load_dwordx4 v[16:19], v7, s[52:55], s3 offen')
    A('s_cmp_eq_u32 s60, 1', 's_cbranch_scc0 L_dojob', 's_cmp_eq_u32 s4, 0', 's_cbranch_scc0 L_dojob')
    srd(44, 16, 5120)
    for t in range(5): A(f'buffer_load_dwordx4 v[{40+4*t}:{43+4*t}], v7, s[44:47], 0 offen offset:{256*t}')
    A('v_lshrrev_b32 v36, 2, v0', 'v_lshlrev_b32 v36, 1, v36', 'v_mul_u32_u24 v37, 1280, v4', 'v_add_u32 v36, v36, v37', 's_lshl_b32 s3, s61, 5')
    A('buffer_load_ushort v36, v36, s[44:47], s3 offen')
    A.label('L_dojob')
    A('v_mul_lo_u32 v8, v3, s42', 'v_add_u32 v8, v8, v2', 's_lshl_b32 s42, s42, 5')
    A('s_mul_i32 s3, s4, 12288', f's_add_u32 m0, s3, {L_INIT}', 's_mov_b32 s13, s14')
    dma_loop(4, 48, 'v8', 's42', 'L_dma0')
    A('s_mov_b32 s13, s15')
    dma_loop(4, 48, 'v8', 's42', 'L_dma1')
    A('s_cmp_eq_u32 s60, 0', 's_cbranch_scc0 L_nojob')
    A('s_mov_b32 s13, s43')
    dma_loop(4, 48, 'v8', 's42', 'L_dma2')
    A.label('L_nojob')
    A('s_barrier')
    srd(44, 40, WS_SIZE)
    A('v_lshlrev_b32 v13, 3, v4', 'v_lshl_add_u32 v14, v5, 5, v13')
    A('v_lshl_add_u32 v9, v6, 8, v14')
    A('v_mul_u32_u24 v15, 192, v6', 'v_add_u32 v14, v14, v15')
    A('v_add_u32 v15, v15, v13', 'v_and_b32 v13, 1, v5', 'v_lshl_add_u32 v15, v13, 5, v15', 'v_add_u32 v15, 128, v15')
    A('s_mul_i32 s3, s4, 6144', f's_add_u32 s3, s3, {L_WO}', 'v_add_u32 v14, s3, v14', 'v_add_u32 v15, s3, v15')
    A('v_mul_u32_u24 v13, 2560, v4', 'v_lshl_add_u32 v13, v5, 7, v13', 'v_lshl_add_u32 v13, v6, 5, v13', 's_lshl_b32 s3, s4, 9', 'v_add_u32 v13, s3, v13')
    A('s_cmp_eq_u32 s60, 4', 's_cbranch_scc1 L_tailw')
    A('s_cmp_eq_u32 s60, 0', 's_cbranch_scc1 L_btr')
    A('s_cmp_eq_u32 s60, 1', 's_cbranch_scc0 L_silu', 's_cmp_eq_u32 s4, 0', 's_cbranch_scc0 L_silu')
    A('s_mov_b32 s3, 0x3f803f80')
    A('s_waitcnt vmcnt(8)')
    for i in range(20):
        A(f'v_dot2_f32_bf16 v37, v{40+i}, s3, {"0" if i == 0 else "v37"}')
        A(f'v_dot2_f32_bf16 v38, v{40+i}, v{40+i}, {"0" if i == 0 else "v38"}')
    allreduce_b('v37', 'v38', 'v39')
    ln_stats('v37', 'v38', 'v39')
    A('v_lshlrev_b32 v36, 16, v36', 'v_sub_f32 v36, v36, v37'); rnd('v36', 'v36')
    A('v_mul_f32 v36, v36, v38'); rnd('v36', 'v36')
    A.label('L_silu')
    A('s_waitcnt vmcnt(8)')
    for i in range(4): A(f'v_lshlrev_b32 v{24+2*i}, 16, v{16+i}', f'v_and_b32 v{25+2*i}, 0xffff0000, v{16+i}')
    for i in range(8): A(f'v_mul_f32 v{16+i}, {hex(LOG2E ^ 0x80000000)}, v{24+i}')
    for i in range(8): A(f'v_exp_f32 v{16+i}, v{16+i}')
    for i in range(8): A(f'v_add_f32 v{16+i}, 1.0, v{16+i}')
    for i in range(8): A(f'v_rcp_f32 v{16+i}, v{16+i}')
    for i in range(8): A(f'v_mul_f32 v{24+i}, v{24+i}, v{16+i}')
    for i in range(4): A(f'v_cvt_pk_bf16_f32 v{20+i}, v{24+2*i}, v{25+2*i}')
    A.label('L_btr')
    A('s_waitcnt vmcnt(0)')
    stamp(1)
    A('s_mul_i32 s3, s4, 12288', f's_add_u32 s3, s3, {L_INIT}', 'v_add_u32 v16, s3, v9')
    for tl in range(3):
        if tl == 2: A('s_cmp_eq_u32 s60, 0', 's_cbranch_scc0 L_amov')
        for ks in range(4):
            r = 40 + 16 * tl + 4 * ks
            A(f'ds_read_b64_tr_b16 v[{r}:{r+1}], v16 offset:{4096*tl+1024*ks}', f'ds_read_b64_tr_b16 v[{r+2}:{r+3}], v16 offset:{4096*tl+1024*ks+128}')
    A('s_waitcnt lgkmcnt(0)')
    tagcalc()
    A.label('L_hpoll')
    A(f's_mov_b32 s3, {WS_H}')
    A('buffer_load_dwordx4 v[24:27], v13, s[44:47], s3 offen sc1', 'buffer_load_dwordx4 v[28:31], v13, s[44:47], s3 offen offset:16 sc1')
    A('s_waitcnt vmcnt(0)')
    check_tags(['v25', 'v27', 'v29', 'v31'], 'v32', 'L_hpoll', 'L_hok', False)
    A.label('L_hok')
    for i in range(4): A(f'v_mov_b32 v{20+i}, v{24+2*i}')
    A('s_branch L_amov2')
    A.label('L_amov')
    A('s_waitcnt lgkmcnt(0)')
    tagcalc()
    A.label('L_amov2')
    stamp(2)
    for ks in range(1, 4):
        for i in range(4): A(f'v_mov_b32_dpp v{20+4*ks+i}, v{20+i} row_shl:{4*ks} row_mask:0xf bank_mask:0xf bound_ctrl:0')
    for tl in range(3):
        if tl == 2: A('s_cmp_eq_u32 s60, 0', 's_cbranch_scc0 L_dwr')
        for ks in range(4):
            r = 40 + 16 * tl + 4 * ks
            A(f'v_mfma_f32_16x16x32_bf16 v[{88+4*tl}:{91+4*tl}], v[{20+4*ks}:{23+4*ks}], v[{r}:{r+3}], {"0" if ks == 0 else f"v[{88+4*tl}:{91+4*tl}]"}')
    A.label('L_dwr')
    A('s_mul_i32 s3, s4, 768', f's_add_u32 s3, s3, {L_DI}', 'v_lshlrev_b32 v16, 4, v0', 'v_add_u32 v16, s3, v16')
    A('s_mov_b64 exec, 0xffff')
    for tl in range(3): A(f'ds_write_b128 v16, v[{88+4*tl}:{91+4*tl}] offset:{256*tl}')
    lds_signal(0)
    A('s_cmp_eq_u32 s4, 0', 's_cbranch_scc1 L_fin0')
    lds_wait(4, 1, 'L_w1')
    A('s_branch L_tailw')
    A.label('L_fin0')
    A('v_lshlrev_b32 v16, 2, v0', f'v_add_u32 v16, {L_DI}, v16')
    A('v_lshrrev_b32 v17, 3, v0', 'v_lshlrev_b32 v17, 3, v17')
    lds_wait(0, 5, 'L_w0')
    for tl in range(3):
        A(f'ds_read2st64_b32 v[{40+6*tl}:{41+6*tl}], v16 offset0:{tl} offset1:{3+tl}', f'ds_read2st64_b32 v[{42+6*tl}:{43+6*tl}], v16 offset0:{6+tl} offset1:{9+tl}', f'ds_read_b32 v{44+6*tl}, v16 offset:{256*(12+tl)}')
    A('s_waitcnt lgkmcnt(0)')
    for tl in range(3):
        r = 40 + 6 * tl
        A(f'v_add_f32 v{r}, v{r}, v{r+1}', f'v_add_f32 v{r+2}, v{r+2}, v{r+3}')
    for tl in range(3):
        r = 40 + 6 * tl
        A(f'v_add_f32 v{r}, v{r}, v{r+4}')
    for tl in range(3):
        r = 40 + 6 * tl
        A(f'v_add_f32 v{r}, v{r}, v{r+2}')
    A('s_cmp_eq_u32 s60, 0', 's_cbranch_scc0 L_finmod')
    A('v_mul_u32_u24 v18, 24576, v4', 'v_add_u32 v17, v17, v18')
    A('s_mul_i32 s3, s7, 768', 's_mul_i32 s13, s8, 192', 's_add_u32 s3, s3, s13', f's_add_u32 s3, s3, {WS_Q}')
    for tl in range(3):
        r = 40 + 6 * tl
        A(f'v_mov_b32_dpp v{r+2}, v{r} row_shl:4 row_mask:0xf bank_mask:0xf bound_ctrl:0', f'v_mov_b32 v{r+1}, s9')
    for tl in range(3):
        r = 40 + 6 * tl
        A(f'v_cvt_pk_bf16_f32 v{r}, v{r}, v{r+2}')
    A('s_mov_b32 exec_lo, 0x0f0f0f0f', 's_mov_b32 exec_hi, 0x0f0f0f0f')
    for tl in range(3):
        r = 40 + 6 * tl
        A(f'buffer_store_dwordx2 v[{r}:{r+1}], v17, s[44:47], s3 offen offset:{64*tl} sc1')
    A('s_branch L_fin1')
    A.label('L_finmod')
    rnd('v40', 'v40'); rnd('v46', 'v46')
    A('s_cmp_eq_u32 s60, 2', 's_cbranch_scc0 L_finAC')
    A('v_lshlrev_b32 v16, 2, v0', f'ds_write_b32 v16, v40 offset:{L_GA}', f'ds_write_b32 v16, v46 offset:{L_GB}')
    A('s_branch L_fin1')
    A.label('L_finAC')
    A('v_add_f32 v46, 1.0, v46')
    A('s_cmp_eq_u32 s60, 1', 's_cbranch_scc1 L_finA')
    A('v_cvt_pk_bf16_f32 v40, v46, v40', 'v_mov_b32 v41, s9')
    A('v_lshrrev_b32 v17, 2, v0', 'v_lshlrev_b32 v17, 3, v17', 'v_mul_u32_u24 v18, 5120, v4', 'v_add_u32 v17, v17, v18')
    A('s_lshl_b32 s3, s61, 7', f's_add_u32 s3, s3, {WS_SC}')
    A('buffer_store_dwordx2 v[40:41], v17, s[44:47], s3 offen sc1')
    A('s_branch L_fin1')
    A.label('L_finA')
    rnd('v46', 'v46'); A('v_mul_f32 v46, v46, v36'); rnd('v46', 'v46'); A('v_add_f32 v40, v46, v40')
    A('v_mul_u32_u24 v18, 2560, v4', 'v_add_u32 v17, v17, v18', 's_lshl_b32 s3, s61, 6', f's_add_u32 s3, s3, {WS_H}')
    A('v_mov_b32_dpp v42, v40 row_shl:4 row_mask:0xf bank_mask:0xf bound_ctrl:0', 'v_mov_b32 v41, s9', 'v_cvt_pk_bf16_f32 v40, v40, v42')
    A('s_mov_b32 exec_lo, 0x0f0f0f0f', 's_mov_b32 exec_hi, 0x0f0f0f0f')
    A('buffer_store_dwordx2 v[40:41], v17, s[44:47], s3 offen sc1')
    A.label('L_fin1')
    stamp(3)
    lds_signal(4)
    A.label('L_tailw')
    A('s_cmp_eq_u32 s60, 4', 's_cbranch_scc0 L_tw0', 's_waitcnt lgkmcnt(0)')
    tagcalc()
    A.label('L_tw0')
    A('s_setprio 0')
    A('v_mul_u32_u24 v8, 1280, v1', 'v_add_u32 v8, v8, v2')
    srd(48, 24, 6144 * 1280)
    A('s_mul_i32 s13, s7, 245760', 's_mul_i32 s3, s8, 160', 's_add_u32 s13, s13, s3', 's_lshl_b32 s3, s4, 5', 's_add_u32 s13, s13, s3')
    A('s_mul_i32 s3, s4, 6144', f's_add_u32 m0, s3, {L_WO}')
    dma_loop(6, 48, 'v8', 40960, 'L_dma3')
    A('s_cmp_eq_u32 s60, 2', 's_cbranch_scc0 L_twF1')
    A('s_cmp_eq_u32 s4, 4', 's_cbranch_scc1 L_twR')
    srd(48, 32, 1536 * 1280)
    A('s_mul_i32 s13, s4, 491520', 's_lshl_b32 s3, s61, 5', 's_add_u32 s13, s13, s3')
    A('s_mul_i32 s3, s4, 12288', f's_add_u32 m0, s3, {L_FW}')
    dma_loop(12, 48, 'v8', 40960, 'L_dma4')
    A('v_mul_u32_u24 v13, 6144, v4', 'v_lshl_add_u32 v13, v5, 7, v13', 'v_lshl_add_u32 v13, v6, 5, v13', 's_mul_i32 s3, s4, 1536', 'v_add_u32 v13, s3, v13')
    A('s_branch L_tailgo')
    A.label('L_twR')
    A('v_and_b32 v16, 15, v0', 'v_and_b32 v17, 1, v6', 'v_lshrrev_b32 v18, 1, v6', 'v_lshl_add_u32 v17, v17, 1, v18')
    A('v_lshl_add_u32 v112, v16, 2, v17', 'v_lshlrev_b32 v112, 2, v112')
    A(f'ds_read_b32 v113, v112 offset:{L_GA}')
    srd(52, 16, 5120)
    A('v_mul_u32_u24 v18, 1280, v17', 'v_lshl_add_u32 v18, v16, 1, v18', 's_lshl_b32 s3, s61, 5')
    A('buffer_load_ushort v114, v18, s[52:55], s3 offen')
    A('v_mul_u32_u24 v115, 2560, v17', 'v_lshl_add_u32 v115, v16, 2, v115')
    A('v_lshlrev_b32 v116, 4, v17')
    A('s_waitcnt vmcnt(0) lgkmcnt(0)', 'v_lshlrev_b32 v114, 16, v114')
    A('s_branch L_tailgo')
    A.label('L_twF1')
    A('s_cmp_eq_u32 s62, -1', 's_cbranch_scc1 L_tailgo')
    A('v_mul_u32_u24 v8, 3072, v3', 'v_add_u32 v8, v8, v2')
    srd(48, 28, 640 * 3072)
    A('s_lshl_b32 s13, s62, 5', 's_lshl_b32 s3, s4, 13', f's_add_u32 m0, s3, {L_FW}')
    dma_loop(4, 48, 'v8', 98304, 'L_dma5')
    srd(48, 30, 640 * 3072)
    A('s_lshl_b32 s13, s62, 5')
    dma_loop(4, 48, 'v8', 98304, 'L_dma6')
    A('v_lshlrev_b32 v16, 1, v13', f's_mov_b32 s3, {WS_SC}')
    A.label('L_scpoll')
    for i in range(4): A(f'buffer_load_dwordx4 v[{40+4*i}:{43+4*i}], v16, s[44:47], s3 offen offset:{16*i} sc1')
    A('s_waitcnt vmcnt(0)')
    check_tags([f'v{41+2*i}' for i in range(8)], 'v17', 'L_scpoll', 'L_scok', False)
    A.label('L_scok')
    for i in range(8): A(f'v_lshlrev_b32 v{96+i}, 16, v{40+2*i}', f'v_and_b32 v{104+i}, 0xffff0000, v{40+2*i}')
    A('v_lshlrev_b32 v112, 4, v0', 'v_min_u32 v113, 31, v0', 'v_lshlrev_b32 v113, 4, v113')
    A('v_cmp_gt_u32 vcc, 32, v0', 'v_cndmask_b32 v114, 0, 1.0, vcc')

    A.label('L_tailgo')
    stamp(4)
    A(f's_mov_b32 s58, {hex(LOG2E)}')
    A('s_mov_b32 s56, 0', 's_mov_b32 s57, -1')
    srd(52, 38, 5120)
    A('s_mul_i32 s14, s7, 5120', f's_add_u32 s14, s14, {WS_REC}')
    A('s_mul_i32 s15, s8, 640', 's_add_u32 s15, s15, s14')
    A('v_and_b32 v16, 7, v0', 'v_mul_u32_u24 v117, 640, v16', 'v_lshl_add_u32 v117, v6, 4, v117')
    A('v_and_b32 v17, 1, v6', 'v_lshl_add_u32 v17, v17, 2, v4', 'v_mul_u32_u24 v118, 640, v17', 'v_add_u32 v118, 512, v118')
    A('v_lshlrev_b32 v119, 4, v0')
    A('v_lshrrev_b32 v17, 5, v0', 'v_lshlrev_b32 v18, 2, v17', 'v_xor_b32 v16, v16, v18', 'v_lshlrev_b32 v120, 10, v16', f'v_add_u32 v120, {L_REC}, v120')
    A('v_and_b32 v16, 31, v0', 'v_lshlrev_b32 v16, 4, v16', 'v_lshl_add_u32 v121, v17, 12, v16', f'v_add_u32 v121, {L_REC}, v121')
    A('s_mul_i32 s43, s8, 5', 's_add_u32 s43, s43, s4', 's_lshl_b32 s43, s43, 5', 's_add_u32 s43, s43, s7', 's_lshl_b32 s43, s43, 9', f's_add_u32 s43, s43, {WS_Y}')
    if dry:
        A('s_mov_b32 s46, 0', 's_mov_b32 s54, 0')
        A('s_branch L_tail')
    A.label('L_real')
    A('s_mov_b32 s12, 1', f's_mov_b32 s46, {WS_SIZE}', 's_mov_b32 s54, 5120')
    A('s_waitcnt vmcnt(0) lgkmcnt(0)')
    stamp(5)
    def wofrags():
        for kk in range(8):
            A(f'ds_read_b64_tr_b16 v[{64+4*kk}:{65+4*kk}], v14 offset:{768*kk}', f'ds_read_b64_tr_b16 v[{66+4*kk}:{67+4*kk}], v15 offset:{768*kk}')
    wofrags()
    A('s_waitcnt lgkmcnt(0)')
    A('s_setprio 2')
    A('s_barrier')
    A.label('L_tail')
    stamp(6)
    A('s_cmp_eq_u32 s4, 0', 's_cbranch_scc0 L_O')
    A('ds_read_b32 v16, v120 offset:524', 'ds_read_b32 v17, v120 offset:12')
    for i in range(4): A(f'ds_read_b128 v[{24+8*i}:{27+8*i}], v121 offset:{1024*i}', f'ds_read_b128 v[{28+8*i}:{31+8*i}], v121 offset:{1024*i+512}')
    A('s_waitcnt lgkmcnt(8)')
    A('v_max_f32_dpp v18, v16, v16 quad_perm:[1,0,3,2] row_mask:0xf bank_mask:0xf')
    A('v_max_f32_dpp v18, v18, v18 quad_perm:[2,3,0,1] row_mask:0xf bank_mask:0xf')
    A('v_max_f32_dpp v18, v18, v18 row_half_mirror row_mask:0xf bank_mask:0xf')
    A('v_sub_f32 v16, v16, v18', 'v_mul_f32 v16, s58, v16', 'v_exp_f32 v16, v16', 'v_mul_f32 v17, v17, v16')
    A('v_add_f32_dpp v17, v17, v17 quad_perm:[1,0,3,2] row_mask:0xf bank_mask:0xf')
    A('v_add_f32_dpp v17, v17, v17 quad_perm:[2,3,0,1] row_mask:0xf bank_mask:0xf')
    A('v_add_f32_dpp v17, v17, v17 row_half_mirror row_mask:0xf bank_mask:0xf')
    A('v_rcp_f32 v19, v17', 'v_mul_f32 v16, v16, v19')
    A('s_waitcnt lgkmcnt(0)')
    for i in range(4):
        for k in range(3):
            op = 'v_mul_f32_dpp' if i == 0 else 'v_fmac_f32_dpp'
            A(f'{op} v{56+2*k}, v16, v{24+8*i+k} row_newbcast:{i} row_mask:0xf bank_mask:0xf')
            A(f'{op} v{57+2*k}, v16, v{28+8*i+k} row_newbcast:{i} row_mask:0xf bank_mask:0xf')
    A('v_permlane32_swap_b32 v56, v60', 'v_permlane32_swap_b32 v57, v61', 'v_permlane32_swap_b32 v58, v59')
    A('v_add_f32 v56, v56, v60', 'v_add_f32 v57, v57, v61', 'v_add_f32 v58, v58, v59')
    A('v_cvt_pk_bf16_f32 v20, v56, v57', 'v_mov_b32 v59, v58', 'v_mov_b32 v23, s9', 'v_mov_b32 v22, v20')
    A('v_permlane32_swap_b32 v58, v59', 'v_permlane32_swap_b32 v20, v22')
    A('v_cvt_pk_bf16_f32 v21, v58, v59')
    A('v_cndmask_b32 v20, v20, v18, s[56:57]', 'v_cndmask_b32 v21, v21, v17, s[56:57]')
    A('s_mov_b32 exec_lo, -1', 's_mov_b32 exec_hi, 1')
    A('buffer_store_dwordx4 v[20:23], v119, s[44:47], s15 offen sc1')
    A('s_mov_b64 exec, -1')
    A.label('L_O')
    stamp(7)
    A.label('L_opoll')
    for kk in range(8): A(f'buffer_load_dwordx4 v[{24+4*kk}:{27+4*kk}], v117, s[44:47], s14 offen offset:{64*kk} sc1')
    A('buffer_load_dwordx4 v[16:19], v118, s[44:47], s14 offen sc1')
    A('s_waitcnt vmcnt(0)')
    check_tags([f'v{27+4*kk}' for kk in range(8)] + ['v19'], 'v20', 'L_opoll', 'L_ook', True)
    A.label('L_ook')
    stamp(8)
    for kk in range(8): A(f'v_mov_b32 v{27+4*kk}, 0')
    for kk in range(8):
        A(f'v_mfma_f32_16x16x32_bf16 v[56:59], v[{24+4*kk}:{27+4*kk}], v[{64+4*kk}:{67+4*kk}], {"0" if kk == 0 else "v[56:59]"}')
        if kk == 0:
            A('v_max_f32_dpp v18, v16, v16 quad_perm:[1,0,3,2] row_mask:0xf bank_mask:0xf')
        if kk == 1:
            A('v_sub_f32 v16, v16, v18', 'v_mul_f32 v16, s58, v16')
        if kk == 2:
            A('v_exp_f32 v16, v16')
        if kk == 3:
            A('v_mul_f32 v16, v16, v17')
        if kk == 4:
            A('v_add_f32_dpp v17, v16, v16 quad_perm:[1,0,3,2] row_mask:0xf bank_mask:0xf')
        if kk == 5:
            A('v_rcp_f32 v17, v17')
        if kk == 6:
            A('v_mul_f32 v16, v16, v17', 'v_mov_b32 v22, s9', 'v_mov_b32 v23, s9')
    A('v_mul_f32_dpp v20, v16, v56 quad_perm:[0,0,0,0] row_mask:0xf bank_mask:0xf')
    A('v_mul_f32_dpp v21, v16, v58 quad_perm:[2,2,2,2] row_mask:0xf bank_mask:0xf')
    A('v_fmac_f32_dpp v20, v16, v57 quad_perm:[1,1,1,1] row_mask:0xf bank_mask:0xf')
    A('v_fmac_f32_dpp v21, v16, v59 quad_perm:[3,3,3,3] row_mask:0xf bank_mask:0xf')
    A('s_mov_b32 exec_hi, 0')
    A('buffer_store_dwordx4 v[20:23], v119, s[44:47], s43 offen sc1')
    A('s_mov_b32 exec_hi, -1')
    stamp(9)
    A('s_cmp_eq_u32 s60, 2', 's_cbranch_scc1 L_B')
    A('s_cmp_eq_u32 s62, -1', 's_cbranch_scc1 L_tend')
    A('s_lshl_b32 s3, s4, 13', f's_add_u32 s3, s3, {L_FW}', 'v_add_u32 v16, s3, v9')
    for m in range(2):
        for ks in range(4):
            r = 64 + 16 * m + 4 * ks
            A(f'ds_read_b64_tr_b16 v[{r}:{r+1}], v16 offset:{4096*m+1024*ks}', f'ds_read_b64_tr_b16 v[{r+2}:{r+3}], v16 offset:{4096*m+1024*ks+128}')
    A(f's_mov_b32 s3, {WS_X1}', f's_mov_b32 s13, {WS_ST}')
    A('s_lshl_b32 s42, s4, 9', f's_add_u32 s42, s42, {L_DF}', 'v_add_u32 v62, s42, v119')
    A.label('L_xpoll')
    A('buffer_load_dwordx4 v[24:27], v112, s[44:47], s13 offen sc1', 'buffer_load_dwordx4 v[28:31], v112, s[44:47], s13 offen offset:1024 sc1', 'buffer_load_dwordx4 v[32:35], v113, s[44:47], s13 offen offset:2048 sc1')
    A('buffer_load_dwordx4 v[16:19], v13, s[44:47], s3 offen sc1', 'buffer_load_dwordx4 v[20:23], v13, s[44:47], s3 offen offset:16 sc1')
    A('s_waitcnt vmcnt(0)')
    check_tags(['v26', 'v30', 'v34', 'v17', 'v19', 'v21', 'v23'], 'v36', 'L_xpoll', 'L_xok', True)
    A.label('L_xok')
    stamp(10)
    A('v_add_f32 v24, v24, v28', 'v_add_f32 v25, v25, v29', 'v_fmac_f32 v24, v32, v114', 'v_fmac_f32 v25, v33, v114')
    for i in range(4): A(f'v_lshlrev_b32 v{40+2*i}, 16, v{16+2*i}', f'v_and_b32 v{41+2*i}, 0xffff0000, v{16+2*i}')
    allreduce_b('v24', 'v25', 'v26')
    ln_stats('v24', 'v25', 'v26')
    def rnd8():
        for i in range(4): A(f'v_cvt_pk_bf16_f32 v{48+i}, v{40+2*i}, v{41+2*i}')
        for i in range(4): A(f'v_lshlrev_b32 v{40+2*i}, 16, v{48+i}', f'v_and_b32 v{41+2*i}, 0xffff0000, v{48+i}')
    for i in range(4): A(f'v_pk_add_f32 v[{40+2*i}:{41+2*i}], v[{40+2*i}:{41+2*i}], v[24:25] op_sel_hi:[1,0] neg_lo:[0,1] neg_hi:[0,1]')
    rnd8()
    for i in range(4): A(f'v_pk_mul_f32 v[{40+2*i}:{41+2*i}], v[{40+2*i}:{41+2*i}], v[24:25] op_sel:[0,1] op_sel_hi:[1,1]')
    rnd8()
    for i in range(4): A(f'v_pk_mul_f32 v[{40+2*i}:{41+2*i}], v[{40+2*i}:{41+2*i}], v[{96+2*i}:{97+2*i}]')
    rnd8()
    for i in range(4): A(f'v_pk_add_f32 v[{40+2*i}:{41+2*i}], v[{40+2*i}:{41+2*i}], v[{104+2*i}:{105+2*i}]')
    for i in range(4): A(f'v_cvt_pk_bf16_f32 v{20+i}, v{40+2*i}, v{41+2*i}')
    for ks in range(1, 4):
        for i in range(4): A(f'v_mov_b32_dpp v{20+4*ks+i}, v{20+i} row_shl:{4*ks} row_mask:0xf bank_mask:0xf bound_ctrl:0')
    A('s_waitcnt lgkmcnt(0)')
    for ks in range(4):
        for m in range(2):
            r = 64 + 16 * m + 4 * ks
            A(f'v_mfma_f32_16x16x32_bf16 v[{40+4*m}:{43+4*m}], v[{20+4*ks}:{23+4*ks}], v[{r}:{r+3}], {"0" if ks == 0 else f"v[{40+4*m}:{43+4*m}]"}')
    A('v_lshlrev_b32 v16, 2, v0', f'v_add_u32 v16, {L_DF}, v16')
    A('v_lshrrev_b32 v17, 3, v0', 'v_lshlrev_b32 v17, 3, v17', 'v_mul_u32_u24 v18, 6144, v4', 'v_add_u32 v17, v17, v18')
    A('s_lshl_b32 s3, s62, 6', f's_add_u32 s3, s3, {WS_G}')
    A('s_mov_b64 exec, 0xffff')
    A('ds_write_b128 v62, v[40:43]', 'ds_write_b128 v62, v[44:47] offset:256')
    A('s_mov_b64 exec, -1')
    A('s_waitcnt lgkmcnt(0)')
    if dry: A('s_cmp_eq_u32 s12, 0', 's_cbranch_scc1 L_f1nb')
    A('s_barrier')
    A.label('L_f1nb')
    A('s_cmp_eq_u32 s4, 0', 's_cbranch_scc0 L_tend')
    for m in range(2):
        r = 40 + 6 * m
        A(f'ds_read2st64_b32 v[{r}:{r+1}], v16 offset0:{m} offset1:{2+m}', f'ds_read2st64_b32 v[{r+2}:{r+3}], v16 offset0:{4+m} offset1:{6+m}', f'ds_read_b32 v{r+4}, v16 offset:{256*(8+m)}')
    A('v_mov_b32 v53, s9')
    A('s_waitcnt lgkmcnt(0)')
    for m in range(2):
        r = 40 + 6 * m
        A(f'v_add_f32 v{r}, v{r}, v{r+1}', f'v_add_f32 v{r+2}, v{r+2}, v{r+3}')
    for m in range(2):
        r = 40 + 6 * m
        A(f'v_add_f32 v{r}, v{r}, v{r+4}')
    for m in range(2):
        r = 40 + 6 * m
        A(f'v_add_f32 v{r}, v{r}, v{r+2}')
    A('v_cvt_pk_bf16_f32 v41, v40, v46', 'v_lshlrev_b32 v40, 16, v41', 'v_and_b32 v46, 0xffff0000, v41')
    k0 = -2.0 * 1.4426950408889634 * 0.7978845608028654
    A('v_mul_f32 v41, v40, v40', f'v_mov_b32 v42, {hex(f2u(k0))}', f'v_fmac_f32 v42, {hex(f2u(k0*0.044715))}, v41', 'v_mul_f32 v42, v42, v40')
    A('v_exp_f32 v42, v42', 'v_add_f32 v42, 1.0, v42', 'v_rcp_f32 v42, v42', 'v_mul_f32 v40, v40, v42')
    rnd('v40', 'v40'); A('v_mul_f32 v40, v40, v46')
    A('v_mov_b32_dpp v42, v40 row_shl:4 row_mask:0xf bank_mask:0xf bound_ctrl:0', 'v_cvt_pk_bf16_f32 v52, v40, v42')
    A('s_mov_b32 exec_lo, 0x0f0f0f0f', 's_mov_b32 exec_hi, 0x0f0f0f0f')
    A('buffer_store_dwordx2 v[52:53], v17, s[44:47], s3 offen sc1')
    A('s_mov_b64 exec, -1')
    stamp(11)
    A('s_branch L_tend')
    A.label('L_B')
    A('s_cmp_eq_u32 s4, 4', 's_cbranch_scc0 L_F2')
    A('s_lshl_b32 s3, s61, 14', f's_add_u32 s3, s3, {WS_Y}')
    A('s_add_u32 s13, s3, 4096', 's_add_u32 s42, s3, 8192', 's_add_u32 s63, s3, 12288')
    A.label('L_ypoll')
    for i in range(16):
        A(f'buffer_load_dwordx4 v[{24+4*i}:{27+4*i}], v119, s[44:47], {["s3","s13","s42","s63"][i//4]} offen offset:{1024*(i%4)} sc1')
    A('s_waitcnt vmcnt(0)')
    check_tags([f'v{26+4*i}' for i in range(16)], 'v20', 'L_ypoll', 'L_yok', True)
    A.label('L_yok')
    stamp(10)
    n = 16; step = 4
    while n > 1:
        for i in range(n // 2):
            a = 24 + 2 * i * step; b = a + step
            A(f'v_pk_add_f32 v[{a}:{a+1}], v[{a}:{a+1}], v[{b}:{b+1}]')
        n //= 2; step *= 2
    A('v_permlane32_swap_b32 v24, v25', 'v_add_f32 v24, v24, v25')
    rnd('v24', 'v24'); A('v_mul_f32 v24, v24, v113'); rnd('v24', 'v24'); A('v_add_f32 v24, v24, v114'); rnd('v24', 'v24')
    A('s_lshl_b32 s3, s61, 6', f's_add_u32 s13, s3, {WS_X1}', f's_add_u32 s3, s3, {WS_ST}')
    A('v_mov_b32_dpp v26, v24 quad_perm:[1,1,3,3] row_mask:0xf bank_mask:0xf', 'v_mul_f32 v29, v24, v24', 'v_mov_b32 v21, s9', 'v_mov_b32 v30, s9')
    A('v_cvt_pk_bf16_f32 v20, v24, v26')
    A('v_add_f32_dpp v28, v24, v24 quad_perm:[1,0,3,2] row_mask:0xf bank_mask:0xf', 'v_add_f32_dpp v29, v29, v29 quad_perm:[1,0,3,2] row_mask:0xf bank_mask:0xf')
    A('s_mov_b32 exec_lo, 0x55555555', 's_mov_b32 exec_hi, 0x55555555')
    A('buffer_store_dwordx2 v[20:21], v115, s[44:47], s13 offen sc1')
    A('s_mov_b64 exec, -1')
    for p in ('quad_perm:[2,3,0,1]', 'row_half_mirror', 'row_ror:8'):
        A(f'v_add_f32_dpp v28, v28, v28 {p} row_mask:0xf bank_mask:0xf', f'v_add_f32_dpp v29, v29, v29 {p} row_mask:0xf bank_mask:0xf')
    A('s_mov_b32 exec_lo, 0x00010001', 's_mov_b32 exec_hi, 0x00010001')
    A('buffer_store_dwordx3 v[28:30], v116, s[44:47], s3 offen sc1')
    A('s_mov_b64 exec, -1')
    A(f'ds_write_b32 v112, v24 offset:{L_X1}')
    stamp(11)
    A('s_waitcnt lgkmcnt(0)')
    if dry: A('s_cmp_eq_u32 s12, 0', 's_cbranch_scc1 L_tend')
    A('s_barrier')
    A('s_branch L_tend')
    A.label('L_F2')
    A('s_mul_i32 s3, s4, 12288', f's_add_u32 s3, s3, {L_FW}', 'v_add_u32 v16, s3, v9')
    for ks in range(12):
        r = 64 + 4 * ks
        A(f'ds_read_b64_tr_b16 v[{r}:{r+1}], v16 offset:{1024*ks}', f'ds_read_b64_tr_b16 v[{r+2}:{r+3}], v16 offset:{1024*ks+128}')
    A(f's_mov_b32 s3, {WS_G}')
    A('s_lshl_b32 s42, s4, 8', f's_add_u32 s42, s42, {L_DF}', 'v_add_u32 v62, s42, v119')
    A.label('L_gpoll')
    for blk in range(3):
        A(f'buffer_load_dwordx4 v[{16+8*blk}:{19+8*blk}], v13, s[44:47], s3 offen offset:{512*blk} sc1', f'buffer_load_dwordx4 v[{20+8*blk}:{23+8*blk}], v13, s[44:47], s3 offen offset:{512*blk+16} sc1')
    A('s_waitcnt vmcnt(0)')
    check_tags([f'v{17+2*i}' for i in range(12)], 'v40', 'L_gpoll', 'L_gok', True)
    A.label('L_gok')
    stamp(10)
    A('s_waitcnt lgkmcnt(0)')
    first = True
    for blk in range(3):
        for ks in range(4):
            d = 44 + 4 * ((4 * blk + ks) % 4)
            for i in range(4):
                if ks == 0: A(f'v_mov_b32 v{d+i}, v{16+8*blk+2*i}')
                else: A(f'v_mov_b32_dpp v{d+i}, v{16+8*blk+2*i} row_shl:{4*ks} row_mask:0xf bank_mask:0xf bound_ctrl:0')
            if (blk, ks) != (0, 0):
                pb, pk = ((blk, ks - 1) if ks else (blk - 1, 3))
                pd = 44 + 4 * ((4 * pb + pk) % 4); r = 64 + 4 * (4 * pb + pk)
                A(f'v_mfma_f32_16x16x32_bf16 v[40:43], v[{pd}:{pd+3}], v[{r}:{r+3}], {"0" if first else "v[40:43]"}'); first = False
    A('v_lshlrev_b32 v16, 2, v0')
    A(f'v_mfma_f32_16x16x32_bf16 v[40:43], v[56:59], v[108:111], v[40:43]')
    A('v_lshrrev_b32 v17, 2, v0', 'v_lshlrev_b32 v17, 1, v17', 'v_mul_u32_u24 v18, 1280, v4', 'v_add_u32 v17, v17, v18', 's_lshl_b32 s3, s61, 5')
    A('s_mov_b64 exec, 0xffff')
    A('ds_write_b128 v62, v[40:43]')
    A('s_mov_b64 exec, -1')
    A('s_waitcnt lgkmcnt(0)')
    if dry: A('s_cmp_eq_u32 s12, 0', 's_cbranch_scc1 L_f2nb')
    A('s_barrier')
    A.label('L_f2nb')
    A('s_cmp_eq_u32 s4, 0', 's_cbranch_scc0 L_tend')
    A(f'v_add_u32 v18, {L_DF}, v16')
    A('ds_read2st64_b32 v[40:41], v18 offset0:0 offset1:1', 'ds_read2st64_b32 v[42:43], v18 offset0:2 offset1:3')
    A(f'ds_read_b32 v44, v16 offset:{L_X1}', f'ds_read_b32 v45, v16 offset:{L_GB}')
    A('s_waitcnt lgkmcnt(0)')
    A('v_add_f32 v40, v40, v41', 'v_add_f32 v42, v42, v43', 'v_add_f32 v40, v40, v42')
    rnd('v40', 'v40'); A('v_mul_f32 v40, v40, v45'); rnd('v40', 'v40'); A('v_add_f32 v40, v40, v44', 'v_cvt_pk_bf16_f32 v40, v40, v40')
    A('buffer_store_short v40, v17, s[52:55], s3 offen')
    stamp(11)
    A('s_cmp_eq_u32 s61, 0', 's_cbranch_scc0 L_tend')
    A('v_mov_b32 v40, s9', 'v_mov_b32 v41, 0', 's_mov_b64 exec, 1')
    A('buffer_store_dword v40, v41, s[44:47], 0 offen')
    A('s_mov_b64 exec, -1')
    A.label('L_tend')
    if dry: A('s_cmp_eq_u32 s12, 0', 's_cbranch_scc1 L_real')
    stamp_flush(12)
    A.label('L_end')
    A('s_endpgm')

    body = A.fix()
    hdr = open('adaLN_cond__gqa_block_cached__geglu_ffn__decode.s.ref').read().split('\n')
    hdr = [l for l in hdr if l.startswith(';') and '@launch' not in l and 'Override' not in l and 'grid=ceil' not in l]
    out = hdr + [f'; @launch grid=(256,1,1) block=(832,1,1) lds={LDS_SIZE}',
                 '.amdgcn_target "amdgcn-amd-amdhsa--gfx950"', '.text', f'.globl {KNAME}', '.p2align 8', f'.type {KNAME},@function', f'{KNAME}:']
    out += [('' if l.endswith(':') else '    ') + l for l in body]
    out += ['.section .rodata,"a"', '.p2align 6', f'.amdhsa_kernel {KNAME}',
            '  .amdhsa_next_free_vgpr 128', '  .amdhsa_next_free_sgpr 96', '  .amdhsa_accum_offset 128',
            '  .amdhsa_float_denorm_mode_32 3',
            '  .amdhsa_group_segment_fixed_size 0', '  .amdhsa_kernarg_size 112', '  .amdhsa_user_sgpr_count 2',
            '  .amdhsa_user_sgpr_kernarg_segment_ptr 1', '  .amdhsa_system_sgpr_workgroup_id_x 1', '.end_amdhsa_kernel']
    return '\n'.join(out) + '\n'

if __name__ == '__main__':
    kw = eval('dict(' + (sys.argv[2] if len(sys.argv) > 2 else '') + ')')
    open(sys.argv[1], 'w').write(gen(**kw))
```

```python
import struct, sys
from asmgen import Asm
KNAME = 'adaLN_cond__gqa_block_cached__geglu_ffn__decode_kernel'
def f2u(x): return struct.unpack('<I', struct.pack('<f', x))[0]
LOG2E = f2u(1.4426950408889634)
SCALE = f2u(192 ** -0.5)
DPPF = 'row_mask:0xf bank_mask:0xf'

WS_EP = 0
WS_X1 = 0x1000
WS_ST = 0x4000
WS_G = 0x5000
WS_MOD = 0xb000
WS_Q = 0x1a000
WS_REC = 0x32000
WS_Y = 0x5a000
WS_STAMP = 0x100000
WS_SIZE = 0x200000
L_CNT = 0
L_X1 = 256
L_ST = 128
L_Q = 5632 + 5248 + 8192 + 30720
L_D = 512
L_RC = 5632
L_REC = 10880
L_WO = 19072
L_W = 49792 + 384
L_TS = L_W + 81920
LDS_SIZE = L_W + 81920 + 1024
WS_TS = 0x180000
assert L_W % 128 == 0

def ngroups(D):
    out = []
    for i in range(256):
        x = i & 7; k = i >> 3; p = k >> 1
        d = 0 if p >= 11 else D[3] if p >= 9 else D[2] if x + 8 * p >= 60 else D[0] if p < 5 else D[1]
        out.append(128 + d if k & 1 else 128 - d)
    return out

def roles():
    ty, crit = [], []
    for i in range(256):
        x = i & 7; k = i >> 3; p = k >> 1; sp = k & 1; m = x + 8 * p
        if p >= 11: t = 0
        elif sp == 0: t = 3 if p < 5 else 2
        elif p >= 9: t = 0
        else: t = 1 if m < 60 else 4
        ty.append(t); crit.append(t == 1 and m < 20)
    return ty, crit

def gen(P=16, P0=0, H0=8, WW=0, S0=0, KA=False, SQ=True, HF=0, fl=0, IL=1, rot=0, hs=False, warm=True, noq=False, now=(), D=(0,0,0,0), xs=0, gs=0, hold=True, WPOL='nt', KPOL='nt', stamps=False, dry=True, sleep=1, qsleep=4, dyn=True, gate=True):
    A = Asm()
    def stamp(i):
        if stamps and not (hs and i >= 5): A(f's_memrealtime s[{64+2*i}:{65+2*i}]')
    def hstamp(i):
        if hs: A(f's_memrealtime s[{64+2*i}:{65+2*i}]')
    def stamp_flush(n):
        if not stamps: return
        A('s_waitcnt lgkmcnt(0)')
        A('s_lshl_b32 s60, s2, 4', 's_add_u32 s60, s60, s4', 's_lshl_b32 s60, s60, 6', f's_add_u32 s60, s60, {WS_STAMP}')
        A(f's_mov_b32 s46, {WS_SIZE}')
        A('v_mov_b32 v126, 0', 's_mov_b64 exec, 1')
        for i in range(n):
            A(f'v_mov_b32 v127, s{64+2*i}', f'buffer_store_dword v127, v126, s[44:47], s60 offen offset:{4*i}')
        A('s_waitcnt vmcnt(0)')
    def rnd(dst, src, tmp=None):
        t = tmp or dst
        A(f'v_cvt_pk_bf16_f32 {t}, {src}, {src}', f'v_lshlrev_b32 {dst}, 16, {t}')
    def srd(base, ptr, size, off=None):
        if off is None:
            A(f's_mov_b32 s{base}, s{ptr}', f's_mov_b32 s{base+1}, s{ptr+1}')
        else:
            A(f's_add_u32 s{base}, s{ptr}, {off}', f's_addc_u32 s{base+1}, s{ptr+1}, 0')
        A(f's_mov_b32 s{base+2}, {size}', f's_mov_b32 s{base+3}, 0x20000')
    def tagcalc():
        A('s_mul_i32 s9, s9, 0x9e3779b1', 's_add_u32 s9, s9, 0x7f4a7c15')
    def check_tags(regs, acc, retry, modechk, slp=None):
        slp = sleep if slp is None else slp
        done = retry + '_ok'
        if len(regs) == 1:
            A(f'v_cmp_ne_u32 vcc, s9, {regs[0]}')
        else:
            A(f'v_xor_b32 {acc}, s9, {regs[0]}')
            for r in regs[1:]:
                A(f'v_bitop3_b32 {acc}, {acc}, {r}, s9 bitop3:0xf6')
            A(f'v_cmp_ne_u32 vcc, 0, {acc}')
        A(f's_cbranch_vccz {done}')
        if modechk and dry:
            A('s_cmp_eq_u32 s12, 0', f's_cbranch_scc1 {done}')
        if slp: A(f's_sleep {slp}')
        A('s_sub_u32 s95, s95, 1', f's_cbranch_scc0 {retry}', 's_mov_b32 s95, 0')
        A.label(done)
    def lds_signal(cnt):
        A('s_mov_b64 exec, 1', f'ds_add_u32 v10, v11 offset:{cnt}', 's_mov_b64 exec, -1')
    def lds_wait(cnt, target, name):
        A.label(name)
        A(f'ds_read_b32 v12, v10 offset:{cnt}', 's_waitcnt lgkmcnt(0)', 'v_readfirstlane_b32 s3, v12', f's_cmp_ge_u32 s3, {target}',
          f's_cbranch_scc1 {name}_x', 's_sub_u32 s95, s95, 1', f's_cbranch_scc0 {name}', 's_mov_b32 s95, 0')
        A.label(name + '_x')
    def dma_loop(n, srd_, voff, step, name, extra=(), slow=0, win=0):
        if name in now: return
        A(f's_mov_b32 s3, {n}')
        A.label(name)
        A(f'buffer_load_dwordx4 {voff}, s[{srd_}:{srd_+3}], s13 offen {WPOL} lds')
        A(*extra)
        if slow:
            A(f's_cmp_gt_u32 s3, {n - slow}', f's_cbranch_scc0 {name}_f', 's_waitcnt vmcnt(0)')
            A.label(name + '_f')
        if win: A(f's_waitcnt vmcnt({win - 1})')
        A('s_add_u32 m0, m0, 1024')
        if step: A(f's_add_u32 s13, s13, {step}')
        A('s_sub_u32 s3, s3, 1', 's_cmp_lg_u32 s3, 0', f's_cbranch_scc1 {name}')
    def allreduce_b(s1, s2, t):
        for r in (4, 8):
            A(f'v_add_f32_dpp {s1}, {s1}, {s1} row_ror:{r} {DPPF}', f'v_add_f32_dpp {s2}, {s2}, {s2} row_ror:{r} {DPPF}')
        A(f'v_permlane16_swap_b32 {s1}, {s2}', f'v_add_f32 {s1}, {s1}, {s2}')
        A(f'v_mov_b32 {t}, {s1}', f'v_permlane32_swap_b32 {s1}, {t}', f'v_add_f32 {s1}, {s1}, {t}')
        A(f'v_mov_b32 {s2}, {s1}', f'v_permlane16_swap_b32 {s1}, {s2}')
    def ln_stats(s1, s2, t):
        A(f'v_mul_f32 {s1}, {hex(f2u(1/640))}, {s1}', f'v_mul_f32 {s2}, {hex(f2u(1/640))}, {s2}')
        A(f'v_fma_f32 {s2}, -{s1}, {s1}, {s2}', f'v_max_f32 {s2}, 0, {s2}')
        A(f'v_cvt_pk_bf16_f32 {t}, {s1}, {s2}', f'v_and_b32 {s2}, 0xffff0000, {t}', f'v_lshlrev_b32 {s1}, 16, {t}')
        A(f'v_add_f32 {s2}, {hex(f2u(1e-5))}, {s2}'); rnd(s2, s2, t)
        A(f'v_sqrt_f32 {s2}, {s2}'); rnd(s2, s2, t)
        A(f'v_rcp_f32 {s2}, {s2}')
    def rnd8(e, t):
        for i in range(4): A(f'v_cvt_pk_bf16_f32 v{t+i}, v{e+2*i}, v{e+2*i+1}')
        for i in range(4): A(f'v_lshlrev_b32 v{e+2*i}, 16, v{t+i}', f'v_and_b32 v{e+2*i+1}, 0xffff0000, v{t+i}')
    def unpack(dst, srcs):
        for i, s_ in enumerate(srcs): A(f'v_lshlrev_b32 v{dst+2*i}, 16, v{s_}', f'v_and_b32 v{dst+2*i+1}, 0xffff0000, v{s_}')
    def pk(op, d, a, b, mod=''):
        A(f'v_pk_{op}_f32 v[{d}:{d+1}], v[{a}:{a+1}], v[{b}:{b+1}] {mod}')
    def ashift(a0):
        for ks in range(1, 4):
            for i in range(4): A(f'v_mov_b32_dpp v{a0+4*ks+i}, v{a0+i} row_shl:{4*ks} {DPPF} bound_ctrl:0')
    def vpub(dst, c, b, tmp):
        A(f'v_bfe_u32 {tmp}, {c}, 2, 1', f'v_lshlrev_b32 {dst}, 7, {tmp}', f'v_lshrrev_b32 {tmp}, 3, {c}', f'v_lshl_add_u32 {dst}, {tmp}, 6, {dst}',
          f'v_bfe_u32 {tmp}, {c}, 1, 1', f'v_lshl_add_u32 {dst}, {tmp}, 2, {dst}', f'v_lshl_add_u32 {dst}, {b}, 4, {dst}')
    def pub4(val, g, soff):
        A(f'v_mov_b32_dpp v{g+1}, {val} row_shl:4 {DPPF} bound_ctrl:0', f'v_cvt_pk_bf16_f32 v{g}, {val}, v{g+1}', f'v_mov_b32_dpp v{g+1}, v{g} row_shl:8 {DPPF} bound_ctrl:0')
        A('s_mov_b32 exec_lo, 0x000f000f', 's_mov_b32 exec_hi, 0x000f000f')
        A(f'buffer_store_dwordx4 v[{g}:{g+3}], v3, s[44:47], {soff} offen sc1')

    A('s_cmp_ge_u32 s2, 256', 's_cbranch_scc1 L_end')
    stamp(0)
    if stamps: A('s_memtime s[88:89]')
    A('s_load_dwordx16 s[16:31], s[0:1], 0', 's_load_dwordx8 s[32:39], s[0:1], 64', 's_load_dwordx2 s[40:41], s[0:1], 104')
    A('v_lshrrev_b32 v1, 6, v0', 'v_and_b32 v0, 63, v0', 'v_readfirstlane_b32 s4, v1')
    A('s_and_b32 s5, s2, 7', 's_lshr_b32 s6, s2, 3', 's_lshr_b32 s3, s6, 3', 's_lshl_b32 s7, s5, 2', 's_add_u32 s7, s7, s3', 's_and_b32 s8, s6, 7')
    A('s_mov_b32 s12, 0')
    A('s_mov_b32 s95, 0x80000')
    A('s_lshr_b32 s3, s6, 1', 's_and_b32 s13, s6, 1')
    A('s_mov_b32 s60, 0', 's_sub_u32 s61, s6, 20', 's_mov_b32 s63, 0')
    A('s_cmp_ge_u32 s3, 11', 's_cbranch_scc1 L_roled')
    A('s_lshl_b32 s14, s3, 3', 's_add_u32 s14, s14, s5')
    A('s_cmp_lt_u32 s3, 5', f's_cselect_b32 s63, {D[0]}, {D[1]}', 's_cmp_ge_u32 s14, 60', f's_cselect_b32 s63, {D[2]}, s63', 's_cmp_ge_u32 s3, 9', f's_cselect_b32 s63, {D[3]}, s63')
    A('s_cmp_eq_u32 s13, 0', 's_cbranch_scc1 L_role0')
    A('s_sub_u32 s61, s3, 9', 's_cmp_ge_u32 s3, 9', 's_cbranch_scc1 L_roled')
    A('s_mov_b32 s61, s14', 's_cmp_lt_u32 s14, 60', 's_cselect_b32 s60, 1, 4', 's_branch L_roled')
    A.label('L_role0')
    A('s_cmp_lt_u32 s3, 5', 's_cselect_b32 s60, 3, 2', 's_cselect_b32 s14, 5, 6', 's_cselect_b32 s15, 0, 5', 's_mul_i32 s61, s5, s14', 's_add_u32 s61, s61, s3', 's_sub_u32 s61, s61, s15')
    A.label('L_roled')
    A('s_cmp_lt_u32 s4, 5', 's_cbranch_scc1 L_service')

    vOA, vOB = 'v1', 'v2'
    q = ['v4', 'v5', 'v6']
    acc = [f'v{8+i}' for i in range(6)]
    vM, vL = 'v14', 'v15'
    KB = [32, 96]
    Kr = lambda j, i=0, e=0: f'v{KB[e]+4*j+i}'
    Krr = lambda j, e=0: f'v[{KB[e]+4*j}:{KB[e]+2+4*j}]'
    T = lambda j, e=0: f'v{KB[e]+3+4*j}'
    Vr = lambda j, i=0: f'v{64+4*j+i}'
    Vrr = lambda j: f'v[{64+4*j}:{66+4*j}]'
    def ld(kind, j, e=0, so=None):
        r = Krr(j, e) if kind == 'K' else Vrr(j)
        s = 48 if kind == 'K' else 52
        so = so or ('s10' if kind == 'K' or not KA else 's42')
        vo, off = (vOA, j * 768) if j < 5 else (vOB, (j - 5) * 768)
        A(f'buffer_load_dwordx3 {r}, {vo}, s[{s}:{s+3}], {so} offen offset:{off} {KPOL}')
    def ticket():
        A('s_mov_b64 exec, 1', 'ds_add_rtn_u32 v28, v29, v30 offset:8', 's_mov_b64 exec, -1')
    A(f'v_mul_u32_u24 {vOA}, 12, v0', f'v_add_u32 {vOB}, 3840, {vOA}')
    A('s_lshr_b32 s3, s8, 1', 's_lshl_b32 s3, s3, 5', 's_add_u32 s3, s3, s7')
    A('s_mul_i32 s11, s3, 1572864', 's_sub_u32 s42, 128, s63', 's_add_u32 s43, s63, 128', 's_and_b32 s13, s8, 1', 's_cselect_b32 s63, s43, s42', 's_cselect_b32 s42, s42, 0')
    if IL:
        A('s_mov_b32 s43, 1572864', 's_lshl_b32 s86, s13, 3', 's_mul_i32 s87, s13, 255', 's_add_u32 s87, s87, 112', 's_cmp_eq_u32 s13, 0', 's_cselect_b32 s94, 1, -1')
    else:
        A('s_mul_i32 s42, s42, 6144', 's_add_u32 s11, s11, s42', 's_mul_i32 s43, s63, 6144')
    def goff(dst, t):
        if IL:
            A(f's_and_b32 {dst}, {t}, -8', f's_add_u32 {dst}, {dst}, {t}', f's_add_u32 {dst}, {dst}, s86')
            if any(D):
                A(f's_mul_i32 s3, {t}, s94', 's_add_u32 s3, s3, s87', f's_cmp_lt_u32 {t}, 112', f's_cselect_b32 {dst}, {dst}, s3')
            A(f's_mul_i32 {dst}, {dst}, 6144')
        else:
            A(f's_mul_i32 {dst}, {t}, 6144')
    A('s_sub_u32 s13, s4, 5')
    goff('s10', 's13')
    A('s_waitcnt lgkmcnt(0)')
    srd(48, 18, 's43', 's11'); srd(52, 20, 's43', 's11')
    order = [('K', j, 0, 's10') for j in range(8)] + [('V', j, 0, 's10') for j in range(8)]
    if KA:
        if SQ: order = order[:8] + [('K', j, 1, 's42') for j in range(8)] + order[8:]
        else: order += [('K', j, 1, 's42') for j in range(8)]
        A('s_add_u32 s14, s13, 8'); goff('s42', 's14')
    A('v_mov_b32 v30, 1', f's_mov_b32 s58, {hex(LOG2E)}', f's_lshl_b32 s3, s13, 10', f's_add_u32 s3, s3, {L_REC}', 'v_lshlrev_b32 v7, 4, v0', 'v_add_u32 v7, s3, v7')
    if warm:
        A('s_cmp_eq_u32 s4, 12', 's_cbranch_scc0 L_nowarm')
        A('s_mov_b32 s14, s63', 's_mov_b32 s63, 0', 's_mov_b32 s92, 200', 's_mov_b32 s93, 200', 'v_mov_b32 v29, 16', 'v_mov_b32 v28, 0')
        A('s_branch L_loop')
        A.label('L_warmed')
        A('s_mov_b32 s63, s14', 's_mov_b32 s50, s43', 's_mov_b32 s54, s43', 's_sub_u32 s13, s4, 5', 's_waitcnt vmcnt(0)')
        goff('s10', 's13')
        if KA: A('s_add_u32 s14, s13, 8'); goff('s42', 's14')
        A.label('L_nowarm')
    A('s_load_dword s9, s[40:41], 0', 'v_mov_b32 v29, 0')
    A('s_cmp_lt_u32 s61, 20', 's_cselect_b32 s15, 2, 0', 's_cmp_eq_u32 s60, 1', 's_cselect_b32 s15, s15, 0', 's_cmp_eq_u32 s60, 0', 's_cselect_b32 s15, 1, s15')
    if HF: A('s_and_b32 s3, s60, 6', 's_cmp_eq_u32 s3, 2', 's_cselect_b32 s15, 2, s15')
    if not hold: A('s_mov_b32 s15, 0')
    def holdwait(name):
        A.label(name)
        A('s_sleep 2', 'ds_read_b32 v16, v29 offset:4', 's_waitcnt lgkmcnt(0)', 'v_readfirstlane_b32 s14, v16', 's_cmp_ge_u32 s14, 4',
          f's_cbranch_scc1 {name}_x', 's_sub_u32 s95, s95, 1', f's_cbranch_scc0 {name}', 's_mov_b32 s95, 0')
        A.label(name + '_x')
    A('s_cmp_eq_u32 s15, 0', 's_cbranch_scc1 L_hold2_x')
    A('s_barrier')
    A('s_cmp_eq_u32 s15, 2', 's_cbranch_scc0 L_hold2_x')
    holdwait('L_hold2')
    for n, o in enumerate(order[:P]):
        if n == H0:
            A('s_cmp_eq_u32 s15, 1', 's_cbranch_scc0 L_hold1_x')
            holdwait('L_hold1')
        if KA and SQ and n == 8:
            A('s_mov_b32 s54, 0')
            for j in range(8): ld('V', j, 0, 's10')
            A('s_mov_b32 s54, s43')
        ld(*o)
        if n < P0:
            A('s_cmp_eq_u32 s15, 0', f's_cbranch_scc0 L_p0_{n}', 's_waitcnt vmcnt(0)')
            A.label(f'L_p0_{n}')
    A('s_cmp_eq_u32 s15, 0', 's_cbranch_scc0 L_nobar')
    if not fl: A('s_barrier')
    A.label('L_nobar')
    srd(44, 40, WS_SIZE)
    A('s_mul_i32 s14, s7, 3072', 's_lshr_b32 s3, s8, 1', 's_lshl_b32 s3, s3, 6', 's_add_u32 s14, s14, s3', f's_add_u32 s14, s14, {WS_Q}')
    A('v_and_b32 v3, 31, v0', 'v_mul_u32_u24 v3, 3, v3')
    if SQ:
        A('s_lshl_b32 s3, s13, 9', 's_add_u32 s14, s14, s3', 's_add_u32 s84, s40, s14', 's_addc_u32 s85, s41, 0')
        A('v_lshlrev_b32 v3, 2, v3', 's_lshl_b32 s3, s13, 6', 'v_lshlrev_b32 v31, 2, v0', 'v_add_u32 v31, s3, v31')
    else:
        for i in range(3):
            if i: A('v_add_u32 v3, 1, v3')
            A(f'v_lshrrev_b32 v31, 3, v3', f'v_and_b32 {q[i]}, 7, v3', f'v_lshlrev_b32 {q[i]}, 3, {q[i]}', f'v_lshl_add_u32 {q[i]}, v31, 8, {q[i]}')
    A('s_mov_b32 s56, 0xcccccccc', 's_mov_b32 s57, 0xcccccccc')
    A(f's_mov_b32 s59, {hex(SCALE)}')
    A('s_mov_b32 s11, s13')
    for n, o in enumerate(order[P:]):
        A(f's_waitcnt vmcnt({P-1})'); ld(*o)
    if hs:
        for i in range(4):
            A(f's_waitcnt vmcnt({(3-i)*len(order)//4})'); hstamp(5 + i)
    if dry and not warm: A('s_branch L_sepi')
    A.label('L_sgo')
    A('s_mov_b32 s12, 1')
    for a in acc: A(f'v_mov_b32 {a}, 0')
    A(f'v_mov_b32 {vM}, 0xff7fffff', f'v_mov_b32 {vL}, 0')
    A('s_waitcnt lgkmcnt(0)')
    tagcalc()
    stamp(1)
    if fl:
        stamp(2)
    elif SQ:
        A('s_cmp_lt_u32 s11, 6', 's_cbranch_scc0 L_qw')
        A('s_branch L_qpoll')
        A.label('L_qretry')
        A(f's_sleep {qsleep}', 's_sub_u32 s95, s95, 1', 's_cbranch_scc0 L_qpoll', 's_mov_b32 s95, 0', 's_branch L_qgot')
        A.label('L_qpoll')
        A('s_load_dwordx16 s[16:31], s[84:85], 0 glc', 's_load_dwordx8 s[32:39], s[84:85], 256 glc', 's_load_dwordx8 s[76:83], s[84:85], 288 glc', 's_waitcnt lgkmcnt(0)')
        sq = list(range(16, 40, 2)) + list(range(76, 84, 2))
        if not noq:
            for r in sq: A(f's_cmp_eq_u32 s{r+1}, s9', 's_cbranch_scc0 L_qretry')
        A.label('L_qgot')
        for i, r in enumerate(sq): A(f'v_writelane_b32 v16, s{r}, {i}')
        A('s_mov_b64 exec, 0xffff', f'ds_write_b32 v31, v16 offset:{L_Q}', 's_mov_b64 exec, 1', 'ds_add_u32 v29, v30 offset:12', 's_mov_b64 exec, -1')
        A.label('L_qw')
        A('ds_read_b32 v16, v29 offset:12', 's_waitcnt lgkmcnt(0)', 'v_readfirstlane_b32 s14, v16', 's_cmp_ge_u32 s14, 6',
          's_cbranch_scc1 L_qw_x', 's_sleep 1', 's_sub_u32 s95, s95, 1', 's_cbranch_scc0 L_qw', 's_mov_b32 s95, 0')
        A.label('L_qw_x')
        stamp(2)
        for i in range(3): A(f'ds_read_b32 {q[i]}, v3 offset:{L_Q + 4*i}')
        if dyn: ticket()
        else: A('s_waitcnt lgkmcnt(0)')
    else:
        A.label('L_qpoll')
        for i in range(3): A(f'buffer_load_dwordx2 v[{16+2*i}:{17+2*i}], {q[i]}, s[44:47], s14 offen sc1')
        A('s_waitcnt vmcnt(0)')
        if not noq: check_tags(['v17', 'v19', 'v21'], 'v22', 'L_qpoll', False, qsleep)
        stamp(2)
        if dyn: ticket()
        for i in range(3): A(f'v_mov_b32 {q[i]}, v{16+2*i}')
    if stamps: A('s_mov_b32 s92, 200')
    if stamps: A('s_mov_b32 s93, s11')
    if KA: A('s_add_u32 s11, s11, 8', 's_mov_b32 s10, s42')
    def body(e):
        if stamps:
            A('s_memrealtime s[90:91]', 's_waitcnt lgkmcnt(0)', 's_lshl_b32 s92, s92, 2', f's_add_u32 s92, s92, {L_TS}', 'v_mov_b32 v16, s92', 'v_mov_b32 v17, s90', 'ds_write_b32 v16, v17', 's_mov_b32 s92, s93')
        if KA:
            A('s_mov_b32 s13, s11', 's_mov_b32 s42, s10', 's_cmp_ge_u32 s13, s63', 's_cselect_b32 s54, 0, s43')
        if dyn:
            A('s_waitcnt lgkmcnt(0)', 'v_readfirstlane_b32 s11, v28')
            ticket()
            A(f's_add_u32 s11, s11, {16 if KA else 8}')
        else:
            A('s_add_u32 s11, s11, 8')
        goff('s10', 's11')
        A('s_cmp_ge_u32 s11, s63', 's_cselect_b32 s50, 0, s43')
        if not KA: A('s_cselect_b32 s54, 0, s43', 's_mov_b32 s13, s11')
        if stamps: A('s_mov_b32 s93, s13')
        for j in range(8):
            A(f's_waitcnt vmcnt({31 if KA else 15})')
            A(f'v_dot2_f32_bf16 {T(j,e)}, {Kr(j,0,e)}, {q[0]}, 0')
            A(f'v_dot2_f32_bf16 {T(j,e)}, {Kr(j,1,e)}, {q[1]}, {T(j,e)}')
            A(f'v_dot2_f32_bf16 {T(j,e)}, {Kr(j,2,e)}, {q[2]}, {T(j,e)}')
            ld('K', j, e)
        u = ['v16', 'v17', 'v18', 'v19']
        for i in range(4): A(f'v_add_f32_dpp {u[i]}, {T(i,e)}, {T(i,e)} row_ror:8 row_mask:0xf bank_mask:0x3')
        for i in range(4): A(f'v_add_f32_dpp {u[i]}, {T(i+4,e)}, {T(i+4,e)} row_ror:8 row_mask:0xf bank_mask:0xc')
        w = ['v20', 'v21']
        for i in range(2): A(f'v_add_f32_dpp {w[i]}, {u[i]}, {u[i]} row_half_mirror row_mask:0xf bank_mask:0x5')
        for i in range(2): A(f'v_add_f32_dpp {w[i]}, {u[i+2]}, {u[i+2]} row_half_mirror row_mask:0xf bank_mask:0xa')
        A(f'v_add_f32_dpp v22, {w[0]}, {w[0]} quad_perm:[2,3,0,1] {DPPF}', f'v_add_f32_dpp v23, {w[1]}, {w[1]} quad_perm:[2,3,0,1] {DPPF}')
        A('v_cndmask_b32 v22, v22, v23, s[56:57]')
        A(f'v_add_f32_dpp v22, v22, v22 quad_perm:[1,0,3,2] {DPPF}')
        A('v_mov_b32 v23, v22', 'v_permlane16_swap_b32 v22, v23', 'v_add_f32 v22, v22, v23')
        rnd('v22', 'v22'); A('v_mul_f32 v22, s59, v22'); rnd('v22', 'v22')
        A(f'v_max_f32_dpp v23, v22, v22 quad_perm:[2,3,0,1] {DPPF}', f'v_max_f32_dpp v23, v23, v23 row_half_mirror {DPPF}', f'v_max_f32_dpp v23, v23, v23 row_ror:8 {DPPF}')
        A(f'v_max_f32 v23, v23, {vM}')
        A(f'v_sub_f32 v24, {vM}, v23', 'v_sub_f32 v22, v22, v23', f'v_mov_b32 {vM}, v23')
        A('v_mul_f32 v24, s58, v24', 'v_mul_f32 v22, s58, v22', 'v_exp_f32 v24, v24', 'v_exp_f32 v22, v22')
        for i in range(3): pk('mul', 8+2*i, 8+2*i, 24, 'op_sel_hi:[1,0]')
        A('v_cvt_pk_bf16_f32 v26, v22, 0', 'v_cvt_pk_bf16_f32 v27, 0, v22')
        A(f'v_fma_f32 {vL}, {vL}, v24, v22')
        for j in range(8):
            A('s_waitcnt vmcnt(15)')
            for i in range(3):
                A(f'v_dot2c_f32_bf16_dpp {acc[2*i]}, v26, {Vr(j,i)} row_newbcast:{2*j} {DPPF}')
                A(f'v_dot2c_f32_bf16_dpp {acc[2*i+1]}, v27, {Vr(j,i)} row_newbcast:{2*j} {DPPF}')
            ld('V', j)
    A.label('L_loop')
    body(0)
    if KA:
        if warm: A('s_cmp_eq_u32 s12, 0', 's_cbranch_scc1 L_loop1')
        A('s_cmp_lt_u32 s13, s63', 's_cbranch_scc0 L_loopx')
        A.label('L_loop1')
        body(1)
    A('s_cmp_lt_u32 s13, s63', 's_cbranch_scc1 L_loop')
    A.label('L_loopx')
    stamp(3)
    if stamps:
        A('s_waitcnt lgkmcnt(0)', 's_lshl_b32 s92, s92, 2', f's_add_u32 s92, s92, {L_TS}', 'v_mov_b32 v16, s92', 'v_mov_b32 v17, s70', 'ds_write_b32 v16, v17')
    A.label('L_sepi')
    A(f'v_mov_b32 v16, {vM}', f'v_mov_b32 v17, {vM}', 'v_permlane32_swap_b32 v16, v17', 'v_max_f32 v16, v16, v17')
    A(f'v_add_f32_dpp {vL}, {vL}, {vL} quad_perm:[2,3,0,1] {DPPF}')
    A(f'v_sub_f32 v18, {vM}, v16', 'v_mul_f32 v18, s58, v18', 'v_exp_f32 v18, v18')
    A(f'v_add_f32_dpp {vL}, {vL}, {vL} row_half_mirror {DPPF}')
    A('v_mul_f32 v16, 0.5, v16')
    A(f'v_add_f32_dpp {vL}, {vL}, {vL} row_ror:8 {DPPF}')
    for i in range(3): pk('mul', 8+2*i, 8+2*i, 18, 'op_sel_hi:[1,0]')
    A(f'v_mul_f32 {vL}, {vL}, v18')
    for i in range(3): A(f'v_permlane32_swap_b32 {acc[2*i]}, {acc[2*i+1]}')
    A(f'v_permlane32_swap_b32 {vL}, v16')
    for i in range(3): A(f'v_add_f32 v{20+i}, {acc[2*i]}, {acc[2*i+1]}')
    A(f'v_add_f32 v23, {vL}, v16')
    A('ds_write_b128 v7, v[20:23]')
    if dry or warm: A('s_cmp_eq_u32 s12, 0', 's_cbranch_scc1 ' + ('L_warmed' if warm else 'L_sgo'))
    A('s_waitcnt lgkmcnt(0)', 's_barrier')
    stamp(4); stamp_flush(9 if hs else 5)
    A('s_endpgm')

    A.label('L_service')
    if fl == 1:
        A('s_waitcnt lgkmcnt(0)')
        srd(44, 40, WS_SIZE)
        A('s_barrier')
        stamp(6); stamp(7); stamp(8); stamp(9); stamp(10); stamp(11)
        A('s_mov_b32 s12, 1', 's_branch L_tend')
    A('s_setprio 2')
    A('v_and_b32 v4, 3, v0', 'v_bfe_u32 v5, v0, 2, 2', 'v_lshrrev_b32 v6, 4, v0', 'v_mov_b32 v15, 0')
    A(f'v_mov_b32 v10, {L_CNT}', 'v_mov_b32 v11, 1', 'v_mov_b32 v12, 0', 'v_lshlrev_b32 v1, 4, v0')
    A('s_cmp_eq_u32 s4, 0', 's_cbranch_scc0 L_nozero')
    A('ds_write_b32 v10, v12', 'ds_write_b32 v10, v12 offset:4', 'ds_write_b32 v10, v12 offset:8', 'ds_write_b32 v10, v12 offset:12')
    A.label('L_nozero')
    A('s_lshl_b32 s62, s4, 14', f's_add_u32 s62, s62, {L_W}')
    A('s_waitcnt lgkmcnt(0)')
    A('s_load_dword s9, s[40:41], 0')
    A('s_cmp_gt_u32 s60, 1', 's_cbranch_scc1 L_nojob')
    A('v_mul_u32_u24 v7, 1280, v4', 'v_lshl_add_u32 v7, v5, 6, v7', 'v_lshl_add_u32 v7, v6, 4, v7', 's_lshl_b32 s3, s4, 8')
    A('s_cmp_eq_u32 s60, 0', 's_cbranch_scc0 L_modjob')
    srd(52, 16, 5120)
    for t in range(5): A(f'buffer_load_dwordx4 v[{64+4*t}:{67+4*t}], v7, s[52:55], 0 offen offset:{256*t}')
    A('buffer_load_dwordx4 v[36:39], v7, s[52:55], s3 offen')
    srd(48, 22, 640 * 12288)
    A('s_mov_b32 s42, 12288', 's_mul_i32 s13, s5, 12', 's_add_u32 s61, s61, s13', 's_lshl_b32 s13, s61, 7')
    A('s_branch L_dojob')
    A.label('L_modjob')
    srd(52, 34, 5120)
    A('buffer_load_dwordx4 v[36:39], v7, s[52:55], s3 offen')
    srd(48, 36, 640 * 7680)
    A('s_mov_b32 s42, 7680', 's_lshl_b32 s13, s61, 7')
    A.label('L_dojob')
    A('v_lshrrev_b32 v8, 3, v0', 's_lshl_b32 s3, s4, 7', 'v_add_u32 v8, s3, v8', 'v_mul_lo_u32 v8, v8, s42')
    A('v_and_b32 v9, 7, v0', 'v_lshlrev_b32 v9, 4, v9', 'v_and_b32 v12, 1, v6', 'v_lshlrev_b32 v12, 5, v12', 'v_xor_b32 v9, v9, v12', 'v_add_u32 v8, v8, v9')
    A('s_lshl_b32 s42, s42, 3', 's_mov_b32 m0, s62')
    if S0:
        A('s_cmp_eq_u32 s60, 1', 's_cselect_b32 s3, s61, 99', 's_cmp_lt_u32 s3, 20', 's_cbranch_scc1 L_nos0', 's_waitcnt vmcnt(0)')
        A.label('L_nos0')
    dma_loop(16, 48, 'v8', 's42', 'L_dma0', ['v_xor_b32 v8, 64, v8'])
    A.label('L_nojob')
    if not fl: A('s_barrier')
    srd(44, 40, WS_SIZE)
    A('v_lshrrev_b32 v2, 2, v0')
    vpub('v3', 'v2', 'v4', 'v12')
    A('v_lshrrev_b32 v12, 1, v6', 'v_lshlrev_b32 v2, 8, v12', 'v_lshl_add_u32 v2, v5, 9, v2', 'v_and_b32 v12, 1, v6', 'v_lshl_add_u32 v2, v12, 6, v2', 'v_lshl_add_u32 v2, v4, 4, v2')
    A('s_lshl_b32 s63, s4, 11')
    A('s_lshl_b32 s3, s4, 10', f's_add_u32 s3, s3, {L_D}', 'v_add_u32 v13, s3, v1')
    A('s_lshl_b32 s3, s4, 8', f's_add_u32 s3, s3, {L_D}', 'v_lshlrev_b32 v14, 2, v0', 'v_add_u32 v14, s3, v14')
    A('s_cmp_gt_u32 s60, 1', 's_cbranch_scc1 L_tailw0')
    if fl: A('s_branch L_tailw')
    A('v_lshlrev_b32 v9, 10, v6', 'v_lshl_add_u32 v9, v5, 7, v9', 'v_lshl_add_u32 v9, v4, 3, v9')
    A('v_lshrrev_b32 v12, 1, v5', 'v_lshl_add_u32 v9, v12, 5, v9', 'v_and_b32 v12, 1, v6', 'v_lshl_add_u32 v9, v12, 6, v9', 'v_add_u32 v9, s62, v9')
    A('s_waitcnt vmcnt(16)')
    unpack(56, [36, 37, 38, 39])
    A('s_cmp_eq_u32 s60, 0', 's_cbranch_scc0 L_silu')
    A('s_mov_b32 s3, 0x3f803f80')
    for i in range(20):
        A(f'v_dot2_f32_bf16 v36, v{64+i}, s3, {"0" if i == 0 else "v36"}')
        A(f'v_dot2_f32_bf16 v37, v{64+i}, v{64+i}, {"0" if i == 0 else "v37"}')
    allreduce_b('v36', 'v37', 'v38')
    ln_stats('v36', 'v37', 'v38')
    for i in range(4): pk('add', 56+2*i, 56+2*i, 36, 'op_sel_hi:[1,0] neg_lo:[0,1] neg_hi:[0,1]')
    rnd8(56, 40)
    for i in range(4): pk('mul', 56+2*i, 56+2*i, 36, 'op_sel:[0,1] op_sel_hi:[1,1]')
    rnd8(56, 40)
    A('v_lshlrev_b32 v15, 6, v4', 'v_lshrrev_b32 v12, 3, v0', 'v_lshl_add_u32 v15, v12, 3, v15')
    A('s_lshl_b32 s43, s61, 2', 's_add_u32 s43, s43, s4', 's_lshl_b32 s43, s43, 8', f's_add_u32 s43, s43, {WS_Q}')
    A('s_branch L_btr')
    A.label('L_silu')
    for i in range(8): A(f'v_mul_f32 v{44+i}, {hex(LOG2E ^ 0x80000000)}, v{56+i}')
    for i in range(8): A(f'v_exp_f32 v{44+i}, v{44+i}')
    for i in range(4): A(f'v_pk_add_f32 v[{44+2*i}:{45+2*i}], v[{44+2*i}:{45+2*i}], 1.0 op_sel_hi:[1,0]')
    for i in range(8): A(f'v_rcp_f32 v{44+i}, v{44+i}')
    for i in range(4): pk('mul', 56+2*i, 56+2*i, 44+2*i)
    for i in range(4): A(f'v_cvt_pk_bf16_f32 v{40+i}, v{56+2*i}, v{57+2*i}')
    ashift(40)
    A('s_lshl_b32 s43, s61, 2', 's_add_u32 s43, s43, s4', 's_lshl_b32 s43, s43, 8', f's_add_u32 s43, s43, {WS_MOD}')
    A.label('L_btr')
    A('v_xor_b32 v16, 32, v9', 'v_xor_b32 v17, 64, v9', 'v_xor_b32 v18, 0x60, v9')
    A('s_waitcnt lgkmcnt(0)')
    tagcalc()
    def trs(ks):
        for tl in range(4):
            r = 64 + 16 * tl + 4 * ks; a = ['v9', 'v16', 'v17', 'v18'][tl]
            A(f'ds_read_b64_tr_b16 v[{r}:{r+1}], {a} offset:{4096*ks}', f'ds_read_b64_tr_b16 v[{r+2}:{r+3}], {a} offset:{4096*ks+512}')
    def mfs(ks):
        for tl in range(4):
            r = 64 + 16 * tl + 4 * ks; d = 20 + 4 * tl
            A(f'v_mfma_f32_16x16x32_bf16 v[{d}:{d+3}], v[{40+4*ks}:{43+4*ks}], v[{r}:{r+3}], {"0" if ks == 0 else f"v[{d}:{d+3}]"}')
    for ks in range(4):
        A(f's_waitcnt vmcnt({12-4*ks})')
        hstamp(5 + ks)
        trs(ks)
    stamp(1)
    A('s_cmp_eq_u32 s60, 0', 's_cbranch_scc0 L_amov')
    A(f's_add_u32 s3, s63, {WS_MOD}', f's_add_u32 s13, s63, {WS_MOD + 10240}')
    A.label('L_hpoll')
    A('buffer_load_dwordx4 v[28:31], v2, s[44:47], s13 offen sc1', 'buffer_load_dwordx4 v[32:35], v2, s[44:47], s13 offen offset:128 sc1')
    A('buffer_load_dwordx4 v[20:23], v2, s[44:47], s3 offen sc1', 'buffer_load_dwordx4 v[24:27], v2, s[44:47], s3 offen offset:128 sc1')
    A('s_waitcnt vmcnt(0)')
    check_tags(['v22', 'v26', 'v30', 'v34'], 'v36', 'L_hpoll', False, 1)
    stamp(2)
    unpack(44, [28, 29, 32, 33])
    for i in range(4): A(f'v_pk_add_f32 v[{44+2*i}:{45+2*i}], v[{44+2*i}:{45+2*i}], 1.0 op_sel_hi:[1,0]')
    rnd8(44, 36)
    for i in range(4): pk('mul', 44+2*i, 44+2*i, 56+2*i)
    unpack(56, [20, 21, 24, 25])
    rnd8(44, 36)
    for i in range(4): pk('add', 44+2*i, 44+2*i, 56+2*i)
    for i in range(4): A(f'v_cvt_pk_bf16_f32 v{40+i}, v{44+2*i}, v{45+2*i}')
    ashift(40)
    A.label('L_amov')
    A('s_waitcnt lgkmcnt(8)' if not stamps else 's_waitcnt lgkmcnt(0)')
    for ks in range(3): mfs(ks)
    A('s_waitcnt lgkmcnt(0)')
    mfs(3)
    A('s_mov_b64 exec, 0xffff')
    for tl in range(4): A(f'ds_write_b128 v13, v[{20+4*tl}:{23+4*tl}] offset:{256*tl}')
    lds_signal(0)
    A('s_cmp_eq_u32 s4, 4', 's_cbranch_scc0 L_fin0')
    lds_wait(4, 4, 'L_w1')
    A('s_branch L_tailw')
    A.label('L_fin0')
    A('v_mov_b32 v50, s9', 'v_mov_b32 v51, s9', 'v_mov_b32 v41, s9')
    lds_wait(0, 5, 'L_w0')
    A('ds_read2st64_b32 v[42:43], v14 offset0:0 offset1:4', 'ds_read2st64_b32 v[44:45], v14 offset0:8 offset1:12', 'ds_read_b32 v46, v14 offset:4096')
    A('s_waitcnt lgkmcnt(0)')
    A('v_add_f32 v42, v42, v43', 'v_add_f32 v44, v44, v45', 'v_add_f32 v42, v42, v46', 'v_add_f32 v42, v42, v44')
    A('s_cmp_eq_u32 s60, 0', 's_cbranch_scc1 L_finq')
    pub4('v42', 48, 's43')
    A('s_branch L_fin1')
    A.label('L_finq')
    A(f'v_mov_b32_dpp v43, v42 row_shl:4 {DPPF} bound_ctrl:0', 'v_cvt_pk_bf16_f32 v40, v42, v43')
    A('s_mov_b32 exec_lo, 0x0f0f0f0f', 's_mov_b32 exec_hi, 0x0f0f0f0f')
    A('buffer_store_dwordx2 v[40:41], v15, s[44:47], s43 offen sc1')
    A.label('L_fin1')
    stamp(3)
    lds_signal(4)
    A('s_branch L_tailw')
    A.label('L_tailw0')
    A('s_waitcnt lgkmcnt(0)')
    tagcalc()
    A('s_cmp_eq_u32 s60, 2', 's_cbranch_scc0 L_twF2')
    A('v_lshrrev_b32 v8, 2, v0', 's_lshl_b32 s3, s4, 7', 'v_add_u32 v8, s3, v8', 'v_mul_u32_u24 v8, 3072, v8', 'v_lshl_add_u32 v8, v4, 4, v8')
    srd(48, 28, 640 * 3072)
    A('s_lshl_b32 s13, s61, 6', 's_mov_b32 m0, s62')
    dma_loop(8, 48, 'v8', 49152, 'L_dma5', slow=P0, win=WW)
    srd(48, 30, 640 * 3072)
    A('s_lshl_b32 s13, s61, 6')
    dma_loop(8, 48, 'v8', 49152, 'L_dma6', win=WW)
    A('s_branch L_tailw')
    A.label('L_twF2')
    A('s_cmp_eq_u32 s60, 3', 's_cbranch_scc0 L_tailw', 's_cmp_eq_u32 s4, 4', 's_cbranch_scc1 L_tailw')
    A('v_lshrrev_b32 v8, 1, v0', 'v_mul_u32_u24 v8, 1280, v8', 'v_and_b32 v12, 1, v0', 'v_lshl_add_u32 v8, v12, 4, v8')
    srd(48, 32, 1536 * 1280)
    A('s_mul_i32 s13, s4, 491520', 's_lshl_b32 s3, s61, 5', 's_add_u32 s13, s13, s3', 's_mov_b32 m0, s62')
    dma_loop(12, 48, 'v8', 40960, 'L_dma4', slow=P0, win=WW)
    A.label('L_tailw')
    A('s_setprio 0')
    srd(48, 24, 6144 * 1280)
    A('s_mul_i32 s13, s7, 245760', 's_mul_i32 s3, s8, 160', 's_add_u32 s13, s13, s3')
    A('s_mul_i32 s3, s4, 6144', f's_add_u32 m0, s3, {L_WO}', 's_mul_i32 s3, s4, 384', 'v_add_u32 v9, s3, v0')
    wo_addr = ['v_mul_u32_u24 v8, 6554, v9', 'v_lshrrev_b32 v8, 16, v8', 'v_mul_u32_u24 v8, 1120, v8', 'v_lshl_add_u32 v8, v9, 4, v8']
    A(*wo_addr)
    dma_loop(6, 48, 'v8', None, 'L_dma3', ['v_add_u32 v9, 64, v9'] + wo_addr, win=WW)

    if HF:
        A('s_and_b32 s3, s60, 6', 's_cmp_eq_u32 s3, 2', 's_cbranch_scc0 L_nosig')
        lds_signal(4)
        A.label('L_nosig')
    if fl:
        A('s_waitcnt vmcnt(0)', 's_barrier')
        stamp(6); stamp(7); stamp(8); stamp(9); stamp(10); stamp(11)
        A('s_mov_b32 s12, 1', 's_branch L_tend')
    if hs:
        A('s_waitcnt vmcnt(14)'); hstamp(9); A('s_waitcnt vmcnt(6)'); hstamp(10); A('s_waitcnt vmcnt(0)'); hstamp(11)
    stamp(4)
    A(f's_mov_b32 s58, {hex(LOG2E)}', 's_mov_b32 s56, 0', 's_mov_b32 s57, -1')
    srd(52, 38, 5120)
    A('s_mul_i32 s14, s7, 5120', f's_add_u32 s14, s14, {WS_REC}')
    A('s_mul_i32 s15, s8, 640', 's_add_u32 s15, s15, s14')
    A('s_lshl_b32 s3, s4, 10', 's_add_u32 s14, s14, s3')
    A('s_lshl_b32 s3, s4, 6', 'v_add_u32 v12, s3, v0', 'v_mul_u32_u24 v15, 1639, v12', 'v_lshrrev_b32 v15, 16, v15')
    A('v_mul_u32_u24 v16, 40, v15', 'v_sub_u32 v16, v12, v16', 'v_cmp_gt_u32 s[96:97], 33, v16')
    A('v_add_u32 v15, v15, v12', 'v_lshlrev_b32 v15, 4, v15', f'v_add_u32 v15, {L_RC}, v15')
    A('v_and_b32 v12, 7, v0', 'v_mul_u32_u24 v16, 656, v12', 'v_lshl_add_u32 v16, v6, 4, v16', f'v_add_u32 v16, {L_RC}, v16')
    A('v_and_b32 v17, 1, v6', 'v_lshl_add_u32 v17, v17, 2, v4', 'v_mul_u32_u24 v17, 656, v17', f'v_add_u32 v17, {L_RC + 512}, v17')
    A('v_lshrrev_b32 v19, 5, v0', 'v_lshlrev_b32 v18, 2, v19', 'v_xor_b32 v12, v12, v18', 'v_lshlrev_b32 v18, 10, v12', f'v_add_u32 v18, {L_REC}, v18')
    A('v_and_b32 v12, 31, v0', 'v_lshlrev_b32 v12, 4, v12', 'v_lshl_add_u32 v19, v19, 12, v12', f'v_add_u32 v19, {L_REC}, v19')
    A('v_mul_u32_u24 v12, 960, v6', 'v_lshl_add_u32 v12, v4, 3, v12', 's_lshl_b32 s3, s4, 5', f's_add_u32 s3, s3, {L_WO}', 'v_add_u32 v12, s3, v12')
    A('v_mul_u32_u24 v7, 160, v5', 'v_add_u32 v7, v7, v12', 'v_and_b32 v8, 1, v5', 'v_mul_u32_u24 v8, 160, v8', 'v_add_u32 v8, v8, v12', 'v_add_u32 v8, 640, v8')
    A('s_mul_i32 s43, s8, 5', 's_add_u32 s43, s43, s4', 's_lshl_b32 s43, s43, 5', 's_add_u32 s43, s43, s7', 's_lshl_b32 s43, s43, 9', f's_add_u32 s43, s43, {WS_Y}')
    A('v_mov_b32 v11, 0', 'v_mov_b32 v12, 0')
    A('s_cmp_eq_u32 s60, 2', 's_cselect_b32 s3, 6, 5', 's_add_u32 s13, s3, 3')
    A('v_lshlrev_b32 v9, s13, v6', 'v_lshlrev_b32 v20, s3, v5', 'v_add_u32 v9, v9, v20', 'v_lshl_add_u32 v9, v4, 3, v9', 'v_add_u32 v9, s62, v9')
    if dry:
        A('s_mov_b32 s46, 0', 's_mov_b32 s54, 0')
        A('s_branch L_tail')
    A.label('L_real')
    A('s_mov_b32 s12, 1', f's_mov_b32 s46, {WS_SIZE}', 's_mov_b32 s54, 5120')
    A('s_cmp_eq_u32 s60, 2', 's_cbranch_scc0 L_preB')
    A(f's_add_u32 s3, s63, {WS_MOD + 3*10240}', f's_add_u32 s13, s63, {WS_MOD + 4*10240}')
    A.label('L_scpoll')
    A('buffer_load_dwordx4 v[36:39], v2, s[44:47], s13 offen sc1', 'buffer_load_dwordx4 v[40:43], v2, s[44:47], s13 offen offset:128 sc1')
    A('buffer_load_dwordx4 v[44:47], v2, s[44:47], s3 offen sc1', 'buffer_load_dwordx4 v[48:51], v2, s[44:47], s3 offen offset:128 sc1')
    A('s_waitcnt vmcnt(0)')
    check_tags(['v38', 'v42', 'v46', 'v50'], 'v52', 'L_scpoll', False, 8)
    unpack(20, [36, 37, 40, 41]); unpack(28, [44, 45, 48, 49])
    for i in range(4): A(f'v_pk_add_f32 v[{20+2*i}:{21+2*i}], v[{20+2*i}:{21+2*i}], 1.0 op_sel_hi:[1,0]')
    rnd8(20, 36)
    A('v_lshlrev_b32 v11, 3, v4', 's_lshl_b32 s3, s4, 5', 'v_add_u32 v12, s3, v11')
    A('s_branch L_preD')
    A.label('L_preB')
    A('s_cmp_eq_u32 s60, 3', 's_cbranch_scc0 L_preD')
    A('s_lshl_b32 s13, s61, 8')
    A('s_cmp_eq_u32 s4, 4', 's_cbranch_scc1 L_preR')
    A(f's_add_u32 s13, s13, {WS_MOD + 5*10240}', 'v_mov_b32 v12, v3', 'v_lshrrev_b32 v21, 2, v0')
    A('s_branch L_preG0')
    A.label('L_preR')
    A('v_and_b32 v21, 15, v0', 'v_and_b32 v22, 1, v6', 'v_lshrrev_b32 v23, 1, v6', 'v_lshl_add_u32 v22, v22, 1, v23')
    vpub('v12', 'v21', 'v22', 'v23')
    A('v_lshl_add_u32 v11, v21, 2, v22', 'v_lshlrev_b32 v11, 2, v11')
    srd(48, 16, 5120)
    A('v_mul_u32_u24 v23, 1280, v22', 'v_lshl_add_u32 v23, v21, 1, v23', 's_lshl_b32 s3, s61, 5')
    A('buffer_load_ushort v20, v23, s[48:51], s3 offen')
    A(f's_add_u32 s13, s13, {WS_MOD + 2*10240}')
    A.label('L_preG0')
    A('v_and_b32 v23, -16, v12')
    A.label('L_preG')
    A('buffer_load_dwordx4 v[24:27], v23, s[44:47], s13 offen sc1')
    A('s_waitcnt vmcnt(0)')
    check_tags(['v26'], None, 'L_preG', False, 8)
    A('v_and_b32 v23, 2, v21', 'v_cmp_eq_u32 vcc, 0, v23', 'v_cndmask_b32 v24, v25, v24, vcc')
    A('v_and_b32 v21, 1, v21', 'v_lshlrev_b32 v21, 4, v21', 'v_sub_u32 v21, 16, v21', 'v_lshlrev_b32 v21, v21, v24', 'v_and_b32 v21, 0xffff0000, v21')
    A('v_lshlrev_b32 v20, 16, v20')
    A.label('L_preD')
    A('s_waitcnt vmcnt(0) lgkmcnt(0)')
    stamp(5)
    A('s_setprio 2')
    A('s_barrier')
    A.label('L_tail')
    stamp(6)
    def wofrags():
        for kk in range(8):
            A(f'ds_read_b64_tr_b16 v[{64+4*kk}:{65+4*kk}], v7 offset:{3840*kk}', f'ds_read_b64_tr_b16 v[{66+4*kk}:{67+4*kk}], v8 offset:{3840*kk}')
    A('s_cmp_eq_u32 s4, 0', 's_cbranch_scc0 L_O')
    A('ds_read_b32 v36, v18 offset:524', 'ds_read_b32 v37, v18 offset:12')
    for i in range(4): A(f'ds_read_b128 v[{96+8*i}:{99+8*i}], v19 offset:{1024*i}', f'ds_read_b128 v[{100+8*i}:{103+8*i}], v19 offset:{1024*i+512}')
    A('s_waitcnt lgkmcnt(8)')
    A(f'v_max_f32_dpp v38, v36, v36 quad_perm:[1,0,3,2] {DPPF}', f'v_max_f32_dpp v38, v38, v38 quad_perm:[2,3,0,1] {DPPF}', f'v_max_f32_dpp v38, v38, v38 row_half_mirror {DPPF}')
    A('v_sub_f32 v36, v36, v38', 'v_mul_f32 v36, s58, v36', 'v_exp_f32 v36, v36', 'v_mul_f32 v37, v37, v36')
    A(f'v_add_f32_dpp v37, v37, v37 quad_perm:[1,0,3,2] {DPPF}', f'v_add_f32_dpp v37, v37, v37 quad_perm:[2,3,0,1] {DPPF}', f'v_add_f32_dpp v37, v37, v37 row_half_mirror {DPPF}')
    A('v_rcp_f32 v39, v37', 'v_mul_f32 v36, v36, v39')
    A('s_waitcnt lgkmcnt(0)')
    for i in range(4):
        for k in range(3):
            op = 'v_mul_f32_dpp' if i == 0 else 'v_fmac_f32_dpp'
            A(f'{op} v{56+2*k}, v36, v{96+8*i+k} row_newbcast:{i} {DPPF}', f'{op} v{57+2*k}, v36, v{100+8*i+k} row_newbcast:{i} {DPPF}')
    A('v_permlane32_swap_b32 v56, v60', 'v_permlane32_swap_b32 v57, v61', 'v_permlane32_swap_b32 v58, v59')
    A('v_add_f32 v56, v56, v60', 'v_add_f32 v57, v57, v61', 'v_add_f32 v58, v58, v59')
    A('v_cvt_pk_bf16_f32 v40, v56, v57', 'v_mov_b32 v59, v58', 'v_mov_b32 v43, s9', 'v_mov_b32 v42, v40')
    A('v_permlane32_swap_b32 v58, v59', 'v_permlane32_swap_b32 v40, v42')
    A('v_cvt_pk_bf16_f32 v41, v58, v59')
    A('v_cndmask_b32 v40, v40, v38, s[56:57]', 'v_cndmask_b32 v41, v41, v37, s[56:57]')
    A('s_mov_b32 exec_hi, 1')
    A('buffer_store_dwordx4 v[40:43], v1, s[44:47], s15 offen sc1')
    A('s_mov_b32 exec_hi, -1')
    A.label('L_O')
    stamp(7)
    wofrags()
    A('s_mov_b64 exec, s[96:97]')
    A.label('L_opoll')
    A('buffer_load_dwordx4 v[44:47], v1, s[44:47], s14 offen sc1')
    A('s_waitcnt vmcnt(0)')
    check_tags(['v47'], None, 'L_opoll', True)
    A('v_mov_b32 v47, 0')
    A('ds_write_b128 v15, v[44:47]')
    A('s_mov_b64 exec, -1')
    A('s_waitcnt lgkmcnt(0)')
    if dry: A('s_cmp_eq_u32 s12, 0', 's_cbranch_scc1 L_onb')
    A('s_barrier')
    A.label('L_onb')
    stamp(8)
    A('ds_read_b64 v[36:37], v17')
    for kk in range(8): A(f'ds_read_b128 v[{96+4*kk}:{99+4*kk}], v16 offset:{64*kk}')
    A('v_mov_b32 v46, s9', 'v_mov_b32 v47, s9')
    A('s_waitcnt lgkmcnt(8)')
    A(f'v_max_f32_dpp v38, v36, v36 quad_perm:[1,0,3,2] {DPPF}')
    A('v_sub_f32 v36, v36, v38', 'v_mul_f32 v36, s58, v36', 'v_exp_f32 v36, v36')
    for kk in range(8):
        A(f's_waitcnt lgkmcnt({7-kk})')
        A(f'v_mfma_f32_16x16x32_bf16 v[40:43], v[{96+4*kk}:{99+4*kk}], v[{64+4*kk}:{67+4*kk}], {"0" if kk == 0 else "v[40:43]"}')
        if kk == 0: A('v_mul_f32 v36, v36, v37')
        if kk == 2: A(f'v_add_f32_dpp v37, v36, v36 quad_perm:[1,0,3,2] {DPPF}')
        if kk == 3: A('v_rcp_f32 v37, v37')
        if kk == 5: A('v_mul_f32 v36, v36, v37')
    A(f'v_mul_f32_dpp v44, v36, v40 quad_perm:[0,0,0,0] {DPPF}', f'v_mul_f32_dpp v45, v36, v42 quad_perm:[2,2,2,2] {DPPF}')
    A(f'v_fmac_f32_dpp v44, v36, v41 quad_perm:[1,1,1,1] {DPPF}', f'v_fmac_f32_dpp v45, v36, v43 quad_perm:[3,3,3,3] {DPPF}')
    A('s_mov_b32 exec_hi, 0')
    A('buffer_store_dwordx4 v[44:47], v1, s[44:47], s43 offen sc1')
    A('s_mov_b32 exec_hi, -1')
    stamp(9)
    A('s_cmp_eq_u32 s60, 3', 's_cbranch_scc1 L_B')
    A('s_cmp_eq_u32 s60, 2', 's_cbranch_scc0 L_tend')
    for m in range(2):
        for tl in range(2):
            for ks in range(4):
                r = 64 + 32 * m + 16 * tl + 4 * ks; o = 8192 * m + 2048 * ks + 32 * tl
                A(f'ds_read_b64_tr_b16 v[{r}:{r+1}], v9 offset:{o}', f'ds_read_b64_tr_b16 v[{r+2}:{r+3}], v9 offset:{o+256}')
    def gatepoll(name, soff):
        if not gate: return
        A('s_mov_b64 exec, 1')
        A.label(name)
        A(f'buffer_load_dword v36, v10, s[44:47], {soff} offen sc1', 's_waitcnt vmcnt(0)')
        check_tags(['v36'], None, name, True)
        A('s_mov_b64 exec, -1')
    if gate:
        A('s_cmp_eq_u32 s4, 0', 's_cbranch_scc0 L_xg1')
        A('s_min_u32 s3, s61, 39', 's_lshl_b32 s3, s3, 14', f's_add_u32 s3, s3, {WS_Y + 8}', 'v_lshlrev_b32 v37, 9, v0', 's_mov_b32 exec_hi, 0')
        A.label('L_xgate')
        A('buffer_load_dword v36, v37, s[44:47], s3 offen sc1', 's_waitcnt vmcnt(0)')
        check_tags(['v36'], None, 'L_xgate', True)
        A('s_mov_b32 exec_hi, -1')
        A.label('L_xg1')
        if dry: A('s_cmp_eq_u32 s12, 0', 's_cbranch_scc1 L_xg2')
        A('s_barrier')
        A.label('L_xg2')
    A(f's_add_u32 s3, s63, {WS_X1}', 's_mov_b32 s13, 0x3f803f80')
    A.label('L_xpoll')
    A('buffer_load_dwordx4 v[48:51], v2, s[44:47], s3 offen sc1', 'buffer_load_dwordx4 v[52:55], v2, s[44:47], s3 offen offset:128 sc1')
    A('s_waitcnt vmcnt(0)')
    check_tags(['v50', 'v54'], 'v39', 'L_xpoll', True, xs)
    stamp(10)
    for i, r in enumerate([48, 49, 52, 53]):
        A(f'v_dot2_f32_bf16 v36, v{r}, s13, {"0" if i == 0 else "v36"}', f'v_dot2_f32_bf16 v37, v{r}, v{r}, {"0" if i == 0 else "v37"}')
    unpack(56, [48, 49])
    allreduce_b('v36', 'v37', 'v38')
    A('s_mov_b64 exec, 15', f'ds_write_b64 v12, v[36:37] offset:{L_ST}', 's_mov_b64 exec, -1')
    unpack(60, [52, 53])
    A('s_waitcnt lgkmcnt(0)')
    if dry: A('s_cmp_eq_u32 s12, 0', 's_cbranch_scc1 L_stnb')
    A('s_barrier')
    A.label('L_stnb')
    A(f'ds_read2_b64 v[40:43], v11 offset0:{L_ST//8} offset1:{L_ST//8+4}', f'ds_read2_b64 v[44:47], v11 offset0:{L_ST//8+8} offset1:{L_ST//8+12}', f'ds_read_b64 v[36:37], v11 offset:{L_ST+128}')
    A('s_waitcnt lgkmcnt(0)')
    pk('add', 40, 40, 42); pk('add', 44, 44, 46); pk('add', 36, 36, 40); pk('add', 36, 36, 44)
    ln_stats('v36', 'v37', 'v38')
    for i in range(4): pk('add', 56+2*i, 56+2*i, 36, 'op_sel_hi:[1,0] neg_lo:[0,1] neg_hi:[0,1]')
    rnd8(56, 40)
    for i in range(4): pk('mul', 56+2*i, 56+2*i, 36, 'op_sel:[0,1] op_sel_hi:[1,1]')
    rnd8(56, 40)
    for i in range(4): pk('mul', 56+2*i, 56+2*i, 20+2*i)
    rnd8(56, 40)
    for i in range(4): pk('add', 56+2*i, 56+2*i, 28+2*i)
    for i in range(4): A(f'v_cvt_pk_bf16_f32 v{40+i}, v{56+2*i}, v{57+2*i}')
    ashift(40)
    A('s_waitcnt lgkmcnt(0)')
    for ks in range(4):
        for a_ in range(4):
            r = 64 + 16 * a_ + 4 * ks; d = 20 + 4 * a_
            A(f'v_mfma_f32_16x16x32_bf16 v[{d}:{d+3}], v[{40+4*ks}:{43+4*ks}], v[{r}:{r+3}], {"0" if ks == 0 else f"v[{d}:{d+3}]"}')
    A('s_lshl_b32 s3, s61, 1', 's_add_u32 s3, s3, s4', 's_lshl_b32 s3, s3, 8', f's_add_u32 s3, s3, {WS_G}', 'v_mov_b32 v58, s9', 'v_mov_b32 v59, s9')
    A('s_mov_b64 exec, 0xffff')
    for a_ in range(4): A(f'ds_write_b128 v13, v[{20+4*a_}:{23+4*a_}] offset:{256*a_}')
    A('s_mov_b64 exec, -1')
    A('s_waitcnt lgkmcnt(0)')
    if dry: A('s_cmp_eq_u32 s12, 0', 's_cbranch_scc1 L_f1nb')
    A('s_barrier')
    A.label('L_f1nb')
    A('s_cmp_lt_u32 s4, 2', 's_cbranch_scc0 L_tend')
    for m in range(2):
        r = 40 + 6 * m
        A(f'ds_read2st64_b32 v[{r}:{r+1}], v14 offset0:{2*m} offset1:{4+2*m}', f'ds_read2st64_b32 v[{r+2}:{r+3}], v14 offset0:{8+2*m} offset1:{12+2*m}', f'ds_read_b32 v{r+4}, v14 offset:{4096+512*m}')
    A('s_waitcnt lgkmcnt(0)')
    for m in range(2):
        r = 40 + 6 * m
        A(f'v_add_f32 v{r}, v{r}, v{r+1}', f'v_add_f32 v{r+2}, v{r+2}, v{r+3}')
    for m in range(2):
        r = 40 + 6 * m
        A(f'v_add_f32 v{r}, v{r}, v{r+4}')
    for m in range(2):
        r = 40 + 6 * m
        A(f'v_add_f32 v{r}, v{r}, v{r+2}')
    A('v_cvt_pk_bf16_f32 v41, v40, v46', 'v_lshlrev_b32 v40, 16, v41', 'v_and_b32 v46, 0xffff0000, v41')
    k0 = -2.0 * 1.4426950408889634 * 0.7978845608028654
    A('v_mul_f32 v41, v40, v40', f'v_mov_b32 v42, {hex(f2u(k0))}', f'v_fmac_f32 v42, {hex(f2u(k0*0.044715))}, v41', 'v_mul_f32 v42, v42, v40')
    A('v_exp_f32 v42, v42', 'v_add_f32 v42, 1.0, v42', 'v_rcp_f32 v42, v42', 'v_mul_f32 v40, v40, v42')
    rnd('v40', 'v40'); A('v_mul_f32 v40, v40, v46')
    pub4('v40', 56, 's3')
    A('s_mov_b64 exec, -1')
    stamp(11)
    A('s_branch L_tend')
    A.label('L_B')
    A('s_cmp_eq_u32 s4, 4', 's_cbranch_scc0 L_F2')
    A('s_lshl_b32 s13, s61, 8', f's_add_u32 s13, s13, {WS_X1}')
    A('v_mov_b32 v42, s9', 'v_mov_b32 v43, s9', 'v_lshlrev_b32 v36, 2, v0')
    if dry: A('s_cmp_eq_u32 s12, 0', 's_cbranch_scc1 L_rnb')
    A('s_barrier')
    A.label('L_rnb')
    stamp(10)
    A(f'ds_read2st64_b32 v[44:45], v36 offset0:{L_D//256} offset1:{L_D//256+1}', f'ds_read2st64_b32 v[46:47], v36 offset0:{L_D//256+2} offset1:{L_D//256+3}')
    A('s_waitcnt lgkmcnt(0)')
    pk('add', 44, 44, 46)
    A('v_add_f32 v44, v44, v45')
    rnd('v44', 'v44'); A('v_mul_f32 v44, v44, v21'); rnd('v44', 'v44'); A('v_add_f32 v44, v44, v20')
    A(f'v_mov_b32_dpp v46, v44 quad_perm:[1,1,3,3] {DPPF}', 'v_cvt_pk_bf16_f32 v40, v44, v46', f'v_mov_b32_dpp v41, v40 quad_perm:[2,2,2,2] {DPPF}')
    A('s_mov_b32 exec_lo, 0x11111111', 's_mov_b32 exec_hi, 0x11111111')
    A('buffer_store_dwordx4 v[40:43], v12, s[44:47], s13 offen sc1')
    A('s_mov_b64 exec, -1')
    rnd('v44', 'v44')
    A(f'ds_write_b32 v11, v44 offset:{L_X1}')
    stamp(11)
    A('s_waitcnt lgkmcnt(0)')
    if dry: A('s_cmp_eq_u32 s12, 0', 's_cbranch_scc1 L_tend')
    A('s_barrier')
    A('s_branch L_tend')
    A.label('L_F2')
    for ks in range(12):
        r = 64 + 4 * ks
        A(f'ds_read_b64_tr_b16 v[{r}:{r+1}], v9 offset:{1024*ks}', f'ds_read_b64_tr_b16 v[{r+2}:{r+3}], v9 offset:{1024*ks+128}')
    A('s_lshl_b32 s3, s61, 2', 's_add_u32 s3, s3, s4', 's_lshl_b32 s3, s3, 12', f's_add_u32 s3, s3, {WS_Y}')
    A.label('L_ypoll')
    for i in range(4):
        A(f'buffer_load_dwordx4 v[{36+4*i}:{39+4*i}], v1, s[44:47], s3 offen offset:{1024*i} sc1')
    A('s_waitcnt vmcnt(0)')
    check_tags([f'v{38+4*i}' for i in range(4)], 'v39', 'L_ypoll', True)
    pk('add', 36, 36, 40); pk('add', 44, 44, 48); pk('add', 36, 36, 44)
    A('v_permlane32_swap_b32 v36, v37', 'v_add_f32 v36, v36, v37')
    A('ds_write_b32 v14, v36')
    A('s_waitcnt lgkmcnt(0)')
    if dry: A('s_cmp_eq_u32 s12, 0', 's_cbranch_scc1 L_ynb')
    A('s_barrier')
    A.label('L_ynb')
    A('s_mul_i32 s3, s4, 6144', f's_add_u32 s3, s3, {WS_G}', 's_add_u32 s13, s3, 4096')
    A.label('L_gpoll')
    for i in range(6):
        A(f'buffer_load_dwordx4 v[{36+4*i}:{39+4*i}], v2, s[44:47], {"s3" if i < 4 else "s13"} offen offset:{2048*((i//2)%2)+128*(i%2)} sc1')
    A('s_waitcnt vmcnt(0)')
    check_tags([f'v{38+4*i}' for i in range(6)], 'v60', 'L_gpoll', True, gs)
    stamp(10)
    A('s_waitcnt lgkmcnt(0)')
    first = True
    for blk in range(3):
        for ks in range(4):
            d = 112 + 4 * ks
            for i in range(4):
                sr = 36 + 8 * blk + (i & 1) + 4 * (i >> 1)
                if ks == 0: A(f'v_mov_b32 v{d+i}, v{sr}')
                else: A(f'v_mov_b32_dpp v{d+i}, v{sr} row_shl:{4*ks} {DPPF} bound_ctrl:0')
            if (blk, ks) != (0, 0):
                pb, pk_ = ((blk, ks - 1) if ks else (blk - 1, 3))
                pd = 112 + 4 * pk_; r = 64 + 4 * (4 * pb + pk_)
                A(f'v_mfma_f32_16x16x32_bf16 v[60:63], v[{pd}:{pd+3}], v[{r}:{r+3}], {"0" if first else "v[60:63]"}'); first = False
    A('v_lshlrev_b32 v36, 2, v0')
    A('v_mfma_f32_16x16x32_bf16 v[60:63], v[124:127], v[108:111], v[60:63]')
    A('v_lshrrev_b32 v37, 2, v0', 'v_lshlrev_b32 v37, 1, v37', 'v_mul_u32_u24 v38, 1280, v4', 'v_add_u32 v37, v37, v38', 's_lshl_b32 s3, s61, 5')
    A('s_mov_b64 exec, 0xffff')
    A('ds_write_b128 v13, v[60:63]')
    A('s_mov_b64 exec, -1')
    A('s_waitcnt lgkmcnt(0)')
    if dry: A('s_cmp_eq_u32 s12, 0', 's_cbranch_scc1 L_f2nb')
    A('s_barrier')
    A.label('L_f2nb')
    A('s_cmp_eq_u32 s4, 0', 's_cbranch_scc0 L_tend')
    A('ds_read2st64_b32 v[40:41], v14 offset0:0 offset1:4', 'ds_read2st64_b32 v[42:43], v14 offset0:8 offset1:12')
    A(f'ds_read_b32 v44, v36 offset:{L_X1}')
    A('s_waitcnt lgkmcnt(0)')
    A('v_add_f32 v40, v40, v41', 'v_add_f32 v42, v42, v43', 'v_add_f32 v40, v40, v42')
    rnd('v40', 'v40'); A('v_mul_f32 v40, v40, v21'); rnd('v40', 'v40'); A('v_add_f32 v40, v40, v44', 'v_cvt_pk_bf16_f32 v40, v40, v40')
    A('buffer_store_short v40, v37, s[52:55], s3 offen')
    stamp(11)
    A('s_cmp_eq_u32 s61, 0', 's_cbranch_scc0 L_tend')
    A('v_mov_b32 v40, s9', 's_mov_b64 exec, 1')
    A('buffer_store_dword v40, v10, s[44:47], 0 offen')
    A('s_mov_b64 exec, -1')
    A.label('L_tend')
    if dry: A('s_cmp_eq_u32 s12, 0', 's_cbranch_scc1 L_real')
    if stamps:
        A('s_mov_b64 exec, -1', 'v_lshlrev_b32 v40, 4, v0', f'v_add_u32 v41, {L_TS}, v40', 'ds_read_b128 v[44:47], v41', 's_lshl_b32 s3, s2, 10', f's_add_u32 s3, s3, {WS_TS}', 's_waitcnt lgkmcnt(0)',
          'buffer_store_dwordx4 v[44:47], v40, s[44:47], s3 offen')
        A('s_memtime s[90:91]', 's_memrealtime s[92:93]')
    stamp_flush(15)
    A.label('L_end')
    A('s_endpgm')

    body = A.fix()
    hdr = open('adaLN_cond__gqa_block_cached__geglu_ffn__decode.s.ref').read().split('\n')
    hdr = [l for l in hdr if l.startswith(';') and '@launch' not in l and 'Override' not in l and 'grid=ceil' not in l]
    out = hdr + [f'; @launch grid=(256,1,1) block=(832,1,1) lds={LDS_SIZE}',
                 '.amdgcn_target "amdgcn-amd-amdhsa--gfx950"', '.text', f'.globl {KNAME}', '.p2align 8', f'.type {KNAME},@function', f'{KNAME}:']
    out += [('' if l.endswith(':') else '    ') + l for l in body]
    out += ['.section .rodata,"a"', '.p2align 6', f'.amdhsa_kernel {KNAME}',
            '  .amdhsa_next_free_vgpr 128', '  .amdhsa_next_free_sgpr 98', '  .amdhsa_accum_offset 128',
            '  .amdhsa_float_denorm_mode_32 3',
            '  .amdhsa_group_segment_fixed_size 0', '  .amdhsa_kernarg_size 112', '  .amdhsa_user_sgpr_count 2',
            '  .amdhsa_user_sgpr_kernarg_segment_ptr 1', '  .amdhsa_system_sgpr_workgroup_id_x 1', '.end_amdhsa_kernel']
    return '\n'.join(out) + '\n'

if __name__ == '__main__':
    kw = eval('dict(' + (sys.argv[2] if len(sys.argv) > 2 else '') + ')')
    open(sys.argv[1], 'w').write(gen(**kw))
```

```python
import struct, sys
from asmgen import Asm
KNAME = 'adaLN_cond__gqa_block_cached__geglu_ffn__decode_kernel'
def f2u(x): return struct.unpack('<I', struct.pack('<f', x))[0]
LOG2E = f2u(1.4426950408889634)
SCALE = f2u(192 ** -0.5)
DPPF = 'row_mask:0xf bank_mask:0xf'

WS_EP = 0
WS_X1 = 0x1000
WS_ST = 0x4000
WS_G = 0x5000
WS_MOD = 0xb000
WS_Q = 0x1a000
WS_REC = 0x32000
WS_Y = 0x5a000
WS_STAMP = 0x100000
WS_SIZE = 0x200000
L_CNT = 0
L_X1 = 256
L_ST = 128
L_Q = 5632 + 5248 + 8192 + 30720
L_D = 512
L_RC = 5632
L_REC = 10880
L_WO = 19072
L_W = 49792 + 384
L_TS = L_W + 81920
LDS_SIZE = L_W + 81920 + 1024
WS_TS = 0x180000
assert L_W % 128 == 0

def ngroups(D):
    out = []
    for i in range(256):
        x = i & 7; k = i >> 3; p = k >> 1
        d = 0 if p >= 11 else D[3] if p >= 9 else D[2] if x + 8 * p >= 60 else D[0] if p < 5 else D[1]
        out.append(128 + d if k & 1 else 128 - d)
    return out

def roles():
    ty, crit = [], []
    for i in range(256):
        x = i & 7; k = i >> 3; p = k >> 1; sp = k & 1; m = x + 8 * p
        if p >= 11: t = 0
        elif sp == 0: t = 3 if p < 5 else 2
        elif p >= 9: t = 0
        else: t = 1 if m < 60 else 4
        ty.append(t); crit.append(t == 1 and m < 20)
    return ty, crit

def gen(P=16, P0=0, H0=12, WW=0, S0=0, KA=False, SQ=True, HF=0, nocomp=0, gst=1, QP=2, QF=1, DX=0, nornd=0, TW=16, xm=0, sprio=0, fl=0, IL=1, rot=0, hs=False, warm=False, noq=False, now=(), D=(3,4,7,2), xs=0, gs=0, hold=True, WPOL='nt', KPOL='nt', stamps=False, dry=False, sleep=1, qsleep=4, dyn=False, gate=True):
    A = Asm()
    def stamp(i):
        if stamps and not (hs and i >= 5): A(f's_memrealtime s[{64+2*i}:{65+2*i}]')
    def hstamp(i):
        if hs: A(f's_memrealtime s[{64+2*i}:{65+2*i}]')
    def stamp_flush(n):
        if not stamps: return
        A('s_waitcnt lgkmcnt(0)')
        A('s_lshl_b32 s60, s2, 4', 's_add_u32 s60, s60, s4', 's_lshl_b32 s60, s60, 6', f's_add_u32 s60, s60, {WS_STAMP}')
        A(f's_mov_b32 s46, {WS_SIZE}')
        A('v_mov_b32 v126, 0', 's_mov_b64 exec, 1')
        for i in range(n):
            A(f'v_mov_b32 v127, s{64+2*i}', f'buffer_store_dword v127, v126, s[44:47], s60 offen offset:{4*i}')
        A('s_waitcnt vmcnt(0)')
    def rnd(dst, src, tmp=None):
        t = tmp or dst
        A(f'v_cvt_pk_bf16_f32 {t}, {src}, {src}', f'v_lshlrev_b32 {dst}, 16, {t}')
    def srd(base, ptr, size, off=None):
        if off is None:
            A(f's_mov_b32 s{base}, s{ptr}', f's_mov_b32 s{base+1}, s{ptr+1}')
        else:
            A(f's_add_u32 s{base}, s{ptr}, {off}', f's_addc_u32 s{base+1}, s{ptr+1}, 0')
        A(f's_mov_b32 s{base+2}, {size}', f's_mov_b32 s{base+3}, 0x20000')
    def tagcalc():
        A('s_mul_i32 s9, s9, 0x9e3779b1', 's_add_u32 s9, s9, 0x7f4a7c15')
    def check_tags(regs, acc, retry, modechk, slp=None):
        slp = sleep if slp is None else slp
        done = retry + '_ok'
        if len(regs) == 1:
            A(f'v_cmp_ne_u32 vcc, s9, {regs[0]}')
        else:
            A(f'v_xor_b32 {acc}, s9, {regs[0]}')
            for r in regs[1:]:
                A(f'v_bitop3_b32 {acc}, {acc}, {r}, s9 bitop3:0xf6')
            A(f'v_cmp_ne_u32 vcc, 0, {acc}')
        A(f's_cbranch_vccz {done}')
        if modechk and dry:
            A('s_cmp_eq_u32 s12, 0', f's_cbranch_scc1 {done}')
        if slp: A(f's_sleep {slp}')
        A('s_sub_u32 s95, s95, 1', f's_cbranch_scc0 {retry}', 's_mov_b32 s95, 0')
        A.label(done)
    def lds_signal(cnt):
        A('s_mov_b64 exec, 1', f'ds_add_u32 v10, v11 offset:{cnt}', 's_mov_b64 exec, -1')
    def lds_wait(cnt, target, name):
        A.label(name)
        A(f'ds_read_b32 v12, v10 offset:{cnt}', 's_waitcnt lgkmcnt(0)', 'v_readfirstlane_b32 s3, v12', f's_cmp_ge_u32 s3, {target}',
          f's_cbranch_scc1 {name}_x', 's_sub_u32 s95, s95, 1', f's_cbranch_scc0 {name}', 's_mov_b32 s95, 0')
        A.label(name + '_x')
    def dma_loop(n, srd_, voff, step, name, extra=(), slow=0, win=0):
        if name in now: return
        A(f's_mov_b32 s3, {n}')
        A.label(name)
        A(f'buffer_load_dwordx4 {voff}, s[{srd_}:{srd_+3}], s13 offen {WPOL} lds')
        A(*extra)
        if slow:
            A(f's_cmp_gt_u32 s3, {n - slow}', f's_cbranch_scc0 {name}_f', 's_waitcnt vmcnt(0)')
            A.label(name + '_f')
        if win: A(f's_waitcnt vmcnt({win - 1})')
        A('s_add_u32 m0, m0, 1024')
        if step: A(f's_add_u32 s13, s13, {step}')
        A('s_sub_u32 s3, s3, 1', 's_cmp_lg_u32 s3, 0', f's_cbranch_scc1 {name}')
    def allreduce_b(s1, s2, t):
        for r in (4, 8):
            A(f'v_add_f32_dpp {s1}, {s1}, {s1} row_ror:{r} {DPPF}', f'v_add_f32_dpp {s2}, {s2}, {s2} row_ror:{r} {DPPF}')
        A(f'v_permlane16_swap_b32 {s1}, {s2}', f'v_add_f32 {s1}, {s1}, {s2}')
        A(f'v_mov_b32 {t}, {s1}', f'v_permlane32_swap_b32 {s1}, {t}', f'v_add_f32 {s1}, {s1}, {t}')
        A(f'v_mov_b32 {s2}, {s1}', f'v_permlane16_swap_b32 {s1}, {s2}')
    def ln_stats(s1, s2, t):
        A(f'v_mul_f32 {s1}, {hex(f2u(1/640))}, {s1}', f'v_mul_f32 {s2}, {hex(f2u(1/640))}, {s2}')
        A(f'v_fma_f32 {s2}, -{s1}, {s1}, {s2}', f'v_max_f32 {s2}, 0, {s2}')
        A(f'v_cvt_pk_bf16_f32 {t}, {s1}, {s2}', f'v_and_b32 {s2}, 0xffff0000, {t}', f'v_lshlrev_b32 {s1}, 16, {t}')
        A(f'v_add_f32 {s2}, {hex(f2u(1e-5))}, {s2}'); rnd(s2, s2, t)
        A(f'v_sqrt_f32 {s2}, {s2}'); rnd(s2, s2, t)
        A(f'v_rcp_f32 {s2}, {s2}')
    def rnd8(e, t):
        for i in range(4): A(f'v_cvt_pk_bf16_f32 v{t+i}, v{e+2*i}, v{e+2*i+1}')
        for i in range(4): A(f'v_lshlrev_b32 v{e+2*i}, 16, v{t+i}', f'v_and_b32 v{e+2*i+1}, 0xffff0000, v{t+i}')
    def unpack(dst, srcs):
        for i, s_ in enumerate(srcs): A(f'v_lshlrev_b32 v{dst+2*i}, 16, v{s_}', f'v_and_b32 v{dst+2*i+1}, 0xffff0000, v{s_}')
    def pk(op, d, a, b, mod=''):
        A(f'v_pk_{op}_f32 v[{d}:{d+1}], v[{a}:{a+1}], v[{b}:{b+1}] {mod}')
    def ashift(a0):
        for ks in range(1, 4):
            for i in range(4): A(f'v_mov_b32_dpp v{a0+4*ks+i}, v{a0+i} row_shl:{4*ks} {DPPF} bound_ctrl:0')
    def vpub(dst, c, b, tmp):
        A(f'v_bfe_u32 {tmp}, {c}, 2, 1', f'v_lshlrev_b32 {dst}, 7, {tmp}', f'v_lshrrev_b32 {tmp}, 3, {c}', f'v_lshl_add_u32 {dst}, {tmp}, 6, {dst}',
          f'v_bfe_u32 {tmp}, {c}, 1, 1', f'v_lshl_add_u32 {dst}, {tmp}, 2, {dst}', f'v_lshl_add_u32 {dst}, {b}, 4, {dst}')
    def pub4(val, g, soff):
        A(f'v_mov_b32_dpp v{g+1}, {val} row_shl:4 {DPPF} bound_ctrl:0', f'v_cvt_pk_bf16_f32 v{g}, {val}, v{g+1}', f'v_mov_b32_dpp v{g+1}, v{g} row_shl:8 {DPPF} bound_ctrl:0')
        A('s_mov_b32 exec_lo, 0x000f000f', 's_mov_b32 exec_hi, 0x000f000f')
        A(f'buffer_store_dwordx4 v[{g}:{g+3}], v3, s[44:47], {soff} offen sc1')

    A('s_cmp_ge_u32 s2, 256', 's_cbranch_scc1 L_end')
    stamp(0)
    if stamps: A('s_memtime s[88:89]')
    A('s_load_dwordx16 s[16:31], s[0:1], 0', 's_load_dwordx8 s[32:39], s[0:1], 64', 's_load_dwordx2 s[40:41], s[0:1], 104')
    A('v_lshrrev_b32 v1, 6, v0', 'v_and_b32 v0, 63, v0', 'v_readfirstlane_b32 s4, v1')
    A('s_and_b32 s5, s2, 7', 's_lshr_b32 s6, s2, 3', 's_lshr_b32 s3, s6, 3', 's_lshl_b32 s7, s5, 2', 's_add_u32 s7, s7, s3', 's_and_b32 s8, s6, 7')
    A('s_mov_b32 s12, 0')
    A('s_mov_b32 s95, 0x80000')
    A('s_lshr_b32 s3, s6, 1', 's_and_b32 s13, s6, 1')
    A('s_mov_b32 s60, 0', 's_sub_u32 s61, s6, 20', 's_mov_b32 s63, 0')
    A('s_cmp_ge_u32 s3, 11', 's_cbranch_scc1 L_roled')
    A('s_lshl_b32 s14, s3, 3', 's_add_u32 s14, s14, s5')
    A('s_cmp_lt_u32 s3, 5', f's_cselect_b32 s63, {D[0]}, {D[1]}', 's_cmp_ge_u32 s14, 60', f's_cselect_b32 s63, {D[2]}, s63', 's_cmp_ge_u32 s3, 9', f's_cselect_b32 s63, {D[3]}, s63')
    A('s_cmp_eq_u32 s13, 0', 's_cbranch_scc1 L_role0')
    A('s_sub_u32 s61, s3, 9', 's_cmp_ge_u32 s3, 9', 's_cbranch_scc1 L_roled')
    A('s_mov_b32 s61, s14', 's_cmp_lt_u32 s14, 60', 's_cselect_b32 s60, 1, 4', 's_branch L_roled')
    A.label('L_role0')
    A('s_cmp_lt_u32 s3, 5', 's_cselect_b32 s60, 3, 2', 's_cselect_b32 s14, 5, 6', 's_cselect_b32 s15, 0, 5', 's_mul_i32 s61, s5, s14', 's_add_u32 s61, s61, s3', 's_sub_u32 s61, s61, s15')
    A.label('L_roled')
    A('s_cmp_lt_u32 s4, 5', 's_cbranch_scc1 L_service')

    vOA, vOB = 'v1', 'v2'
    q = ['v4', 'v5', 'v6']
    acc = [f'v{8+i}' for i in range(6)]
    vM, vL = 'v14', 'v15'
    KB = [32, 96]
    Kr = lambda j, i=0, e=0: f'v{KB[e]+4*j+i}'
    Krr = lambda j, e=0: f'v[{KB[e]+4*j}:{KB[e]+2+4*j}]'
    T = lambda j, e=0: f'v{KB[e]+3+4*j}'
    Vr = lambda j, i=0: f'v{64+4*j+i}'
    Vrr = lambda j: f'v[{64+4*j}:{66+4*j}]'
    def ld(kind, j, e=0, so=None):
        r = Krr(j, e) if kind == 'K' else Vrr(j)
        s = 48 if kind == 'K' else 52
        so = so or ('s10' if kind == 'K' or not KA else 's42')
        vo, off = (vOA, j * 768) if j < 5 else (vOB, (j - 5) * 768)
        A(f'buffer_load_dwordx3 {r}, {vo}, s[{s}:{s+3}], {so} offen offset:{off} {KPOL}')
    def ticket():
        A('s_mov_b64 exec, 1', 'ds_add_rtn_u32 v28, v29, v30 offset:8', 's_mov_b64 exec, -1')
    A(f'v_mul_u32_u24 {vOA}, 12, v0', f'v_add_u32 {vOB}, 3840, {vOA}')
    A('s_lshr_b32 s3, s8, 1', 's_lshl_b32 s3, s3, 5', 's_add_u32 s3, s3, s7')
    A('s_mul_i32 s11, s3, 1572864', 's_sub_u32 s42, 128, s63', 's_add_u32 s43, s63, 128', 's_and_b32 s13, s8, 1', 's_cselect_b32 s63, s43, s42', 's_cselect_b32 s42, s42, 0')
    if IL:
        A('s_mov_b32 s43, 1572864', 's_lshl_b32 s86, s13, 3', 's_mul_i32 s87, s13, 255', 's_add_u32 s87, s87, 112', 's_cmp_eq_u32 s13, 0', 's_cselect_b32 s94, 1, -1')
    else:
        A('s_mul_i32 s42, s42, 6144', 's_add_u32 s11, s11, s42', 's_mul_i32 s43, s63, 6144')
    if xm == 1:
        A('s_lshr_b32 s3, s2, 1', 's_mul_i32 s11, s3, 1572864', 's_and_b32 s13, s2, 1', 's_lshl_b32 s86, s13, 3')
        A('s_mul_i32 s87, s13, 255', 's_add_u32 s87, s87, 112', 's_cmp_eq_u32 s13, 0', 's_cselect_b32 s94, 1, -1', f's_mul_i32 s63, s94, {DX}', 's_add_u32 s63, s63, 128')
    if xm == 2:
        A('s_lshr_b32 s3, s2, 3', 's_mul_i32 s11, s3, 6291456', 's_and_b32 s13, s2, 7', 's_lshl_b32 s86, s13, 3', 's_mov_b32 s43, 6291456')
    if xm == 3:
        A('s_mul_i32 s11, s7, 1572864', 's_lshl_b32 s86, s8, 3', 's_mov_b32 s43, 152567808')
    def goff(dst, t):
        if xm == 2:
            A(f's_and_b32 {dst}, {t}, -8', f's_mul_i32 {dst}, {dst}, 7', f's_add_u32 {dst}, {dst}, {t}', f's_add_u32 {dst}, {dst}, s86', f's_mul_i32 {dst}, {dst}, 6144')
        elif xm == 3:
            A(f's_and_b32 {dst}, {t}, 24', f's_mul_i32 {dst}, {dst}, 8', f's_and_b32 s3, {t}, 7', f's_add_u32 {dst}, {dst}, s3', f's_add_u32 {dst}, {dst}, s86', f's_mul_i32 {dst}, {dst}, 6144',
              f's_lshr_b32 s3, {t}, 5', 's_mul_i32 s3, s3, 50331648', f's_add_u32 {dst}, {dst}, s3')
        elif IL:
            A(f's_and_b32 {dst}, {t}, -8', f's_add_u32 {dst}, {dst}, {t}', f's_add_u32 {dst}, {dst}, s86')
            if any(D) or DX:
                A(f's_mul_i32 s3, {t}, s94', 's_add_u32 s3, s3, s87', f's_cmp_lt_u32 {t}, 112', f's_cselect_b32 {dst}, {dst}, s3')
            A(f's_mul_i32 {dst}, {dst}, 6144')
        else:
            A(f's_mul_i32 {dst}, {t}, 6144')
    A('s_sub_u32 s13, s4, 5')
    goff('s10', 's13')
    A('s_waitcnt lgkmcnt(0)')
    srd(48, 18, 's43', 's11'); srd(52, 20, 's43', 's11')
    order = [('K', j, 0, 's10') for j in range(8)] + [('V', j, 0, 's10') for j in range(8)]
    if KA:
        if SQ: order = order[:8] + [('K', j, 1, 's42') for j in range(8)] + order[8:]
        else: order += [('K', j, 1, 's42') for j in range(8)]
        A('s_add_u32 s14, s13, 8'); goff('s42', 's14')
    A('v_mov_b32 v30, 1', f's_mov_b32 s58, {hex(LOG2E)}', f's_lshl_b32 s3, s13, 10', f's_add_u32 s3, s3, {L_REC}', 'v_lshlrev_b32 v7, 4, v0', 'v_add_u32 v7, s3, v7')
    if warm:
        A('s_cmp_eq_u32 s4, 12', 's_cbranch_scc0 L_nowarm')
        A('s_mov_b32 s14, s63', 's_mov_b32 s63, 0', 's_mov_b32 s92, 200', 's_mov_b32 s93, 200', 'v_mov_b32 v29, 16', 'v_mov_b32 v28, 0')
        A('s_branch L_loop')
        A.label('L_warmed')
        A('s_mov_b32 s63, s14', 's_mov_b32 s50, s43', 's_mov_b32 s54, s43', 's_sub_u32 s13, s4, 5', 's_waitcnt vmcnt(0)')
        goff('s10', 's13')
        if KA: A('s_add_u32 s14, s13, 8'); goff('s42', 's14')
        A.label('L_nowarm')
    A('s_load_dword s9, s[40:41], 0', 'v_mov_b32 v29, 0')
    A('s_cmp_lt_u32 s61, 20', 's_cselect_b32 s15, 2, 0', 's_cmp_eq_u32 s60, 1', 's_cselect_b32 s15, s15, 0', 's_cmp_eq_u32 s60, 0', 's_cselect_b32 s15, 1, s15')
    if HF: A('s_and_b32 s3, s60, 6', 's_cmp_eq_u32 s3, 2', 's_cselect_b32 s15, 2, s15')
    if not hold: A('s_mov_b32 s15, 0')
    def holdwait(name):
        A.label(name)
        A('s_sleep 2', 'ds_read_b32 v16, v29 offset:4', 's_waitcnt lgkmcnt(0)', 'v_readfirstlane_b32 s14, v16', 's_cmp_ge_u32 s14, 4',
          f's_cbranch_scc1 {name}_x', 's_sub_u32 s95, s95, 1', f's_cbranch_scc0 {name}', 's_mov_b32 s95, 0')
        A.label(name + '_x')
    A('s_cmp_eq_u32 s15, 0', 's_cbranch_scc1 L_hold2_x')
    A('s_barrier')
    A('s_cmp_eq_u32 s15, 2', 's_cbranch_scc0 L_hold2_x')
    holdwait('L_hold2')
    for n, o in enumerate(order[:P]):
        if n == H0:
            A('s_cmp_eq_u32 s15, 1', 's_cbranch_scc0 L_hold1_x')
            holdwait('L_hold1')
        if QP and QP <= n < H0:
            A('s_cmp_eq_u32 s15, 1', f's_cbranch_scc0 L_qp{n}', f's_waitcnt vmcnt({QP - 1})')
            if QF: A('ds_read_b32 v16, v29 offset:4', 's_waitcnt lgkmcnt(0)', 'v_readfirstlane_b32 s14, v16', 's_cmp_ge_u32 s14, 4', 's_cselect_b32 s15, 3, 1')
            A.label(f'L_qp{n}')
        if KA and SQ and n == 8:
            A('s_mov_b32 s54, 0')
            for j in range(8): ld('V', j, 0, 's10')
            A('s_mov_b32 s54, s43')
        ld(*o)
        if n < P0:
            A('s_cmp_eq_u32 s15, 0', f's_cbranch_scc0 L_p0_{n}', 's_waitcnt vmcnt(0)')
            A.label(f'L_p0_{n}')
    A('s_cmp_eq_u32 s15, 0', 's_cbranch_scc0 L_nobar')
    if not fl: A('s_barrier')
    A.label('L_nobar')
    srd(44, 40, WS_SIZE)
    A('s_mul_i32 s14, s7, 3072', 's_lshr_b32 s3, s8, 1', 's_lshl_b32 s3, s3, 6', 's_add_u32 s14, s14, s3', f's_add_u32 s14, s14, {WS_Q}')
    A('v_and_b32 v3, 31, v0', 'v_mul_u32_u24 v3, 3, v3')
    if SQ:
        A('s_lshl_b32 s3, s13, 9', 's_add_u32 s14, s14, s3', 's_add_u32 s84, s40, s14', 's_addc_u32 s85, s41, 0')
        A('v_lshlrev_b32 v3, 2, v3', 's_lshl_b32 s3, s13, 6', 'v_lshlrev_b32 v31, 2, v0', 'v_add_u32 v31, s3, v31')
    else:
        for i in range(3):
            if i: A('v_add_u32 v3, 1, v3')
            A(f'v_lshrrev_b32 v31, 3, v3', f'v_and_b32 {q[i]}, 7, v3', f'v_lshlrev_b32 {q[i]}, 3, {q[i]}', f'v_lshl_add_u32 {q[i]}, v31, 8, {q[i]}')
    A('s_mov_b32 s56, 0xcccccccc', 's_mov_b32 s57, 0xcccccccc')
    A(f's_mov_b32 s59, {hex(SCALE)}')
    A('s_mov_b32 s11, s13')
    for n, o in enumerate(order[P:]):
        A(f's_waitcnt vmcnt({P-1})'); ld(*o)
    if hs:
        for i in range(4):
            A(f's_waitcnt vmcnt({(3-i)*len(order)//4})'); hstamp(5 + i)
    if dry and not warm: A('s_branch L_sepi')
    A.label('L_sgo')
    A('s_mov_b32 s12, 1')
    for a in acc: A(f'v_mov_b32 {a}, 0')
    A(f'v_mov_b32 {vM}, 0xff7fffff', f'v_mov_b32 {vL}, 0')
    A('s_waitcnt lgkmcnt(0)')
    tagcalc()
    stamp(1)
    if fl:
        stamp(2)
    elif SQ:
        A('s_cmp_lt_u32 s11, 6', 's_cbranch_scc0 L_qw')
        A('s_branch L_qpoll')
        A.label('L_qretry')
        A(f's_sleep {qsleep}', 's_sub_u32 s95, s95, 1', 's_cbranch_scc0 L_qpoll', 's_mov_b32 s95, 0', 's_branch L_qgot')
        A.label('L_qpoll')
        A('s_load_dwordx16 s[16:31], s[84:85], 0 glc', 's_load_dwordx8 s[32:39], s[84:85], 256 glc', 's_load_dwordx8 s[76:83], s[84:85], 288 glc', 's_waitcnt lgkmcnt(0)')
        sq = list(range(16, 40, 2)) + list(range(76, 84, 2))
        if not noq:
            for r in sq: A(f's_cmp_eq_u32 s{r+1}, s9', 's_cbranch_scc0 L_qretry')
        A.label('L_qgot')
        for i, r in enumerate(sq): A(f'v_writelane_b32 v16, s{r}, {i}')
        A('s_mov_b64 exec, 0xffff', f'ds_write_b32 v31, v16 offset:{L_Q}', 's_mov_b64 exec, 1', 'ds_add_u32 v29, v30 offset:12', 's_mov_b64 exec, -1')
        A.label('L_qw')
        A('ds_read_b32 v16, v29 offset:12', 's_waitcnt lgkmcnt(0)', 'v_readfirstlane_b32 s14, v16', 's_cmp_ge_u32 s14, 6',
          's_cbranch_scc1 L_qw_x', 's_sleep 1', 's_sub_u32 s95, s95, 1', 's_cbranch_scc0 L_qw', 's_mov_b32 s95, 0')
        A.label('L_qw_x')
        stamp(2)
        for i in range(3): A(f'ds_read_b32 {q[i]}, v3 offset:{L_Q + 4*i}')
        if dyn: ticket()
        else: A('s_waitcnt lgkmcnt(0)')
    else:
        A.label('L_qpoll')
        for i in range(3): A(f'buffer_load_dwordx2 v[{16+2*i}:{17+2*i}], {q[i]}, s[44:47], s14 offen sc1')
        A('s_waitcnt vmcnt(0)')
        if not noq: check_tags(['v17', 'v19', 'v21'], 'v22', 'L_qpoll', False, qsleep)
        stamp(2)
        if dyn: ticket()
        for i in range(3): A(f'v_mov_b32 {q[i]}, v{16+2*i}')
    if stamps: A('s_mov_b32 s92, 200')
    if stamps: A('s_mov_b32 s93, s11')
    if KA: A('s_add_u32 s11, s11, 8', 's_mov_b32 s10, s42')
    def body(e):
        if stamps and gst:
            A('s_memrealtime s[90:91]', 's_waitcnt lgkmcnt(0)', 's_lshl_b32 s92, s92, 2', f's_add_u32 s92, s92, {L_TS}', 'v_mov_b32 v16, s92', 'v_mov_b32 v17, s90', 'ds_write_b32 v16, v17', 's_mov_b32 s92, s93')
        if KA:
            A('s_mov_b32 s13, s11', 's_mov_b32 s42, s10', 's_cmp_ge_u32 s13, s63', 's_cselect_b32 s54, 0, s43')
        if dyn:
            A('s_waitcnt lgkmcnt(0)', 'v_readfirstlane_b32 s11, v28')
            ticket()
            A(f's_add_u32 s11, s11, {16 if KA else 8}')
        else:
            A('s_add_u32 s11, s11, 8')
        goff('s10', 's11')
        A('s_cmp_ge_u32 s11, s63', 's_cselect_b32 s50, 0, s43')
        if not KA: A('s_cselect_b32 s54, 0, s43', 's_mov_b32 s13, s11')
        if stamps: A('s_mov_b32 s93, s13')
        for j in range(8):
            A(f's_waitcnt vmcnt({31 if KA else TW - 1})')
            if nocomp < 2:
                A(f'v_dot2_f32_bf16 {T(j,e)}, {Kr(j,0,e)}, {q[0]}, 0')
                A(f'v_dot2_f32_bf16 {T(j,e)}, {Kr(j,1,e)}, {q[1]}, {T(j,e)}')
                A(f'v_dot2_f32_bf16 {T(j,e)}, {Kr(j,2,e)}, {q[2]}, {T(j,e)}')
            ld('K', j, e)
        if nocomp:
            for j in range(8):
                A('s_waitcnt vmcnt(15)')
                if nocomp < 2:
                    for i in range(3):
                        A(f'v_dot2c_f32_bf16_dpp {acc[2*i]}, v26, {Vr(j,i)} row_newbcast:{2*j} {DPPF}')
                        A(f'v_dot2c_f32_bf16_dpp {acc[2*i+1]}, v27, {Vr(j,i)} row_newbcast:{2*j} {DPPF}')
                ld('V', j)
            return
        u = ['v16', 'v17', 'v18', 'v19']
        for i in range(4): A(f'v_add_f32_dpp {u[i]}, {T(i,e)}, {T(i,e)} row_ror:8 row_mask:0xf bank_mask:0x3')
        for i in range(4): A(f'v_add_f32_dpp {u[i]}, {T(i+4,e)}, {T(i+4,e)} row_ror:8 row_mask:0xf bank_mask:0xc')
        w = ['v20', 'v21']
        for i in range(2): A(f'v_add_f32_dpp {w[i]}, {u[i]}, {u[i]} row_half_mirror row_mask:0xf bank_mask:0x5')
        for i in range(2): A(f'v_add_f32_dpp {w[i]}, {u[i+2]}, {u[i+2]} row_half_mirror row_mask:0xf bank_mask:0xa')
        A(f'v_add_f32_dpp v22, {w[0]}, {w[0]} quad_perm:[2,3,0,1] {DPPF}', f'v_add_f32_dpp v23, {w[1]}, {w[1]} quad_perm:[2,3,0,1] {DPPF}')
        A('v_cndmask_b32 v22, v22, v23, s[56:57]')
        A(f'v_add_f32_dpp v22, v22, v22 quad_perm:[1,0,3,2] {DPPF}')
        A('v_mov_b32 v23, v22', 'v_permlane16_swap_b32 v22, v23', 'v_add_f32 v22, v22, v23')
        if nornd: A('v_mul_f32 v22, s59, v22')
        else: rnd('v22', 'v22'); A('v_mul_f32 v22, s59, v22'); rnd('v22', 'v22')
        A(f'v_max_f32_dpp v23, v22, v22 quad_perm:[2,3,0,1] {DPPF}', f'v_max_f32_dpp v23, v23, v23 row_half_mirror {DPPF}', f'v_max_f32_dpp v23, v23, v23 row_ror:8 {DPPF}')
        A(f'v_max_f32 v23, v23, {vM}')
        A(f'v_sub_f32 v24, {vM}, v23', 'v_sub_f32 v22, v22, v23', f'v_mov_b32 {vM}, v23')
        A('v_mul_f32 v24, s58, v24', 'v_mul_f32 v22, s58, v22', 'v_exp_f32 v24, v24', 'v_exp_f32 v22, v22')
        for i in range(3): pk('mul', 8+2*i, 8+2*i, 24, 'op_sel_hi:[1,0]')
        A('v_cvt_pk_bf16_f32 v26, v22, 0', 'v_cvt_pk_bf16_f32 v27, 0, v22')
        A(f'v_fma_f32 {vL}, {vL}, v24, v22')
        for j in range(8):
            A(f's_waitcnt vmcnt({TW - 1})')
            for i in range(3):
                A(f'v_dot2c_f32_bf16_dpp {acc[2*i]}, v26, {Vr(j,i)} row_newbcast:{2*j} {DPPF}')
                A(f'v_dot2c_f32_bf16_dpp {acc[2*i+1]}, v27, {Vr(j,i)} row_newbcast:{2*j} {DPPF}')
            ld('V', j)
    A.label('L_loop')
    body(0)
    if KA:
        if warm: A('s_cmp_eq_u32 s12, 0', 's_cbranch_scc1 L_loop1')
        A('s_cmp_lt_u32 s13, s63', 's_cbranch_scc0 L_loopx')
        A.label('L_loop1')
        body(1)
    A('s_cmp_lt_u32 s13, s63', 's_cbranch_scc1 L_loop')
    A.label('L_loopx')
    stamp(3)
    if stamps:
        A('s_waitcnt lgkmcnt(0)', 's_lshl_b32 s92, s92, 2', f's_add_u32 s92, s92, {L_TS}', 'v_mov_b32 v16, s92', 'v_mov_b32 v17, s70', 'ds_write_b32 v16, v17')
    A.label('L_sepi')
    A(f'v_mov_b32 v16, {vM}', f'v_mov_b32 v17, {vM}', 'v_permlane32_swap_b32 v16, v17', 'v_max_f32 v16, v16, v17')
    A(f'v_add_f32_dpp {vL}, {vL}, {vL} quad_perm:[2,3,0,1] {DPPF}')
    A(f'v_sub_f32 v18, {vM}, v16', 'v_mul_f32 v18, s58, v18', 'v_exp_f32 v18, v18')
    A(f'v_add_f32_dpp {vL}, {vL}, {vL} row_half_mirror {DPPF}')
    A('v_mul_f32 v16, 0.5, v16')
    A(f'v_add_f32_dpp {vL}, {vL}, {vL} row_ror:8 {DPPF}')
    for i in range(3): pk('mul', 8+2*i, 8+2*i, 18, 'op_sel_hi:[1,0]')
    A(f'v_mul_f32 {vL}, {vL}, v18')
    for i in range(3): A(f'v_permlane32_swap_b32 {acc[2*i]}, {acc[2*i+1]}')
    A(f'v_permlane32_swap_b32 {vL}, v16')
    for i in range(3): A(f'v_add_f32 v{20+i}, {acc[2*i]}, {acc[2*i+1]}')
    A(f'v_add_f32 v23, {vL}, v16')
    A('ds_write_b128 v7, v[20:23]')
    if dry or warm: A('s_cmp_eq_u32 s12, 0', 's_cbranch_scc1 ' + ('L_warmed' if warm else 'L_sgo'))
    A('s_waitcnt lgkmcnt(0)', 's_barrier')
    stamp(4); stamp_flush(9 if hs else 5)
    A('s_endpgm')

    A.label('L_service')
    if fl == 1:
        A('s_waitcnt lgkmcnt(0)')
        srd(44, 40, WS_SIZE)
        A('s_barrier')
        stamp(6); stamp(7); stamp(8); stamp(9); stamp(10); stamp(11)
        A('s_mov_b32 s12, 1', 's_branch L_tend')
    A('s_setprio 2')
    A('v_and_b32 v4, 3, v0', 'v_bfe_u32 v5, v0, 2, 2', 'v_lshrrev_b32 v6, 4, v0', 'v_mov_b32 v15, 0')
    A(f'v_mov_b32 v10, {L_CNT}', 'v_mov_b32 v11, 1', 'v_mov_b32 v12, 0', 'v_lshlrev_b32 v1, 4, v0')
    A('s_cmp_eq_u32 s4, 0', 's_cbranch_scc0 L_nozero')
    A('ds_write_b32 v10, v12', 'ds_write_b32 v10, v12 offset:4', 'ds_write_b32 v10, v12 offset:8', 'ds_write_b32 v10, v12 offset:12')
    A.label('L_nozero')
    A('s_lshl_b32 s62, s4, 14', f's_add_u32 s62, s62, {L_W}')
    A('s_waitcnt lgkmcnt(0)')
    A('s_load_dword s9, s[40:41], 0')
    A('s_cmp_gt_u32 s60, 1', 's_cbranch_scc1 L_nojob')
    A('v_mul_u32_u24 v7, 1280, v4', 'v_lshl_add_u32 v7, v5, 6, v7', 'v_lshl_add_u32 v7, v6, 4, v7', 's_lshl_b32 s3, s4, 8')
    A('s_cmp_eq_u32 s60, 0', 's_cbranch_scc0 L_modjob')
    srd(52, 16, 5120)
    for t in range(5): A(f'buffer_load_dwordx4 v[{64+4*t}:{67+4*t}], v7, s[52:55], 0 offen offset:{256*t}')
    A('buffer_load_dwordx4 v[36:39], v7, s[52:55], s3 offen')
    srd(48, 22, 640 * 12288)
    A('s_mov_b32 s42, 12288', 's_mul_i32 s13, s5, 12', 's_add_u32 s61, s61, s13', 's_lshl_b32 s13, s61, 7')
    A('s_branch L_dojob')
    A.label('L_modjob')
    srd(52, 34, 5120)
    A('buffer_load_dwordx4 v[36:39], v7, s[52:55], s3 offen')
    srd(48, 36, 640 * 7680)
    A('s_mov_b32 s42, 7680', 's_lshl_b32 s13, s61, 7')
    A.label('L_dojob')
    A('v_lshrrev_b32 v8, 3, v0', 's_lshl_b32 s3, s4, 7', 'v_add_u32 v8, s3, v8', 'v_mul_lo_u32 v8, v8, s42')
    A('v_and_b32 v9, 7, v0', 'v_lshlrev_b32 v9, 4, v9', 'v_and_b32 v12, 1, v6', 'v_lshlrev_b32 v12, 5, v12', 'v_xor_b32 v9, v9, v12', 'v_add_u32 v8, v8, v9')
    A('s_lshl_b32 s42, s42, 3', 's_mov_b32 m0, s62')
    if S0:
        A('s_cmp_eq_u32 s60, 1', 's_cselect_b32 s3, s61, 99', 's_cmp_lt_u32 s3, 20', 's_cbranch_scc1 L_nos0', 's_waitcnt vmcnt(0)')
        A.label('L_nos0')
    dma_loop(16, 48, 'v8', 's42', 'L_dma0', ['v_xor_b32 v8, 64, v8'])
    A.label('L_nojob')
    if not fl: A('s_barrier')
    srd(44, 40, WS_SIZE)
    A('v_lshrrev_b32 v2, 2, v0')
    vpub('v3', 'v2', 'v4', 'v12')
    A('v_lshrrev_b32 v12, 1, v6', 'v_lshlrev_b32 v2, 8, v12', 'v_lshl_add_u32 v2, v5, 9, v2', 'v_and_b32 v12, 1, v6', 'v_lshl_add_u32 v2, v12, 6, v2', 'v_lshl_add_u32 v2, v4, 4, v2')
    A('s_lshl_b32 s63, s4, 11')
    A('s_lshl_b32 s3, s4, 10', f's_add_u32 s3, s3, {L_D}', 'v_add_u32 v13, s3, v1')
    A('s_lshl_b32 s3, s4, 8', f's_add_u32 s3, s3, {L_D}', 'v_lshlrev_b32 v14, 2, v0', 'v_add_u32 v14, s3, v14')
    A('s_cmp_gt_u32 s60, 1', 's_cbranch_scc1 L_tailw0')
    if fl: A('s_branch L_tailw')
    A('v_lshlrev_b32 v9, 10, v6', 'v_lshl_add_u32 v9, v5, 7, v9', 'v_lshl_add_u32 v9, v4, 3, v9')
    A('v_lshrrev_b32 v12, 1, v5', 'v_lshl_add_u32 v9, v12, 5, v9', 'v_and_b32 v12, 1, v6', 'v_lshl_add_u32 v9, v12, 6, v9', 'v_add_u32 v9, s62, v9')
    A('s_waitcnt vmcnt(16)')
    unpack(56, [36, 37, 38, 39])
    A('s_cmp_eq_u32 s60, 0', 's_cbranch_scc0 L_silu')
    A('s_mov_b32 s3, 0x3f803f80')
    for i in range(20):
        A(f'v_dot2_f32_bf16 v36, v{64+i}, s3, {"0" if i == 0 else "v36"}')
        A(f'v_dot2_f32_bf16 v37, v{64+i}, v{64+i}, {"0" if i == 0 else "v37"}')
    allreduce_b('v36', 'v37', 'v38')
    ln_stats('v36', 'v37', 'v38')
    for i in range(4): pk('add', 56+2*i, 56+2*i, 36, 'op_sel_hi:[1,0] neg_lo:[0,1] neg_hi:[0,1]')
    rnd8(56, 40)
    for i in range(4): pk('mul', 56+2*i, 56+2*i, 36, 'op_sel:[0,1] op_sel_hi:[1,1]')
    rnd8(56, 40)
    A('v_lshlrev_b32 v15, 6, v4', 'v_lshrrev_b32 v12, 3, v0', 'v_lshl_add_u32 v15, v12, 3, v15')
    A('s_lshl_b32 s43, s61, 2', 's_add_u32 s43, s43, s4', 's_lshl_b32 s43, s43, 8', f's_add_u32 s43, s43, {WS_Q}')
    A('s_branch L_btr')
    A.label('L_silu')
    for i in range(8): A(f'v_mul_f32 v{44+i}, {hex(LOG2E ^ 0x80000000)}, v{56+i}')
    for i in range(8): A(f'v_exp_f32 v{44+i}, v{44+i}')
    for i in range(4): A(f'v_pk_add_f32 v[{44+2*i}:{45+2*i}], v[{44+2*i}:{45+2*i}], 1.0 op_sel_hi:[1,0]')
    for i in range(8): A(f'v_rcp_f32 v{44+i}, v{44+i}')
    for i in range(4): pk('mul', 56+2*i, 56+2*i, 44+2*i)
    for i in range(4): A(f'v_cvt_pk_bf16_f32 v{40+i}, v{56+2*i}, v{57+2*i}')
    ashift(40)
    A('s_lshl_b32 s43, s61, 2', 's_add_u32 s43, s43, s4', 's_lshl_b32 s43, s43, 8', f's_add_u32 s43, s43, {WS_MOD}')
    A.label('L_btr')
    A('v_xor_b32 v16, 32, v9', 'v_xor_b32 v17, 64, v9', 'v_xor_b32 v18, 0x60, v9')
    A('s_waitcnt lgkmcnt(0)')
    tagcalc()
    def trs(ks):
        for tl in range(4):
            r = 64 + 16 * tl + 4 * ks; a = ['v9', 'v16', 'v17', 'v18'][tl]
            A(f'ds_read_b64_tr_b16 v[{r}:{r+1}], {a} offset:{4096*ks}', f'ds_read_b64_tr_b16 v[{r+2}:{r+3}], {a} offset:{4096*ks+512}')
    def mfs(ks):
        for tl in range(4):
            r = 64 + 16 * tl + 4 * ks; d = 20 + 4 * tl
            A(f'v_mfma_f32_16x16x32_bf16 v[{d}:{d+3}], v[{40+4*ks}:{43+4*ks}], v[{r}:{r+3}], {"0" if ks == 0 else f"v[{d}:{d+3}]"}')
    for ks in range(4):
        A(f's_waitcnt vmcnt({12-4*ks})')
        hstamp(5 + ks)
        trs(ks)
    stamp(1)
    A('s_cmp_eq_u32 s60, 0', 's_cbranch_scc0 L_amov')
    A(f's_add_u32 s3, s63, {WS_MOD}', f's_add_u32 s13, s63, {WS_MOD + 10240}')
    A.label('L_hpoll')
    A('buffer_load_dwordx4 v[28:31], v2, s[44:47], s13 offen sc1', 'buffer_load_dwordx4 v[32:35], v2, s[44:47], s13 offen offset:128 sc1')
    A('buffer_load_dwordx4 v[20:23], v2, s[44:47], s3 offen sc1', 'buffer_load_dwordx4 v[24:27], v2, s[44:47], s3 offen offset:128 sc1')
    A('s_waitcnt vmcnt(0)')
    check_tags(['v22', 'v26', 'v30', 'v34'], 'v36', 'L_hpoll', False, 1)
    stamp(2)
    unpack(44, [28, 29, 32, 33])
    for i in range(4): A(f'v_pk_add_f32 v[{44+2*i}:{45+2*i}], v[{44+2*i}:{45+2*i}], 1.0 op_sel_hi:[1,0]')
    rnd8(44, 36)
    for i in range(4): pk('mul', 44+2*i, 44+2*i, 56+2*i)
    unpack(56, [20, 21, 24, 25])
    rnd8(44, 36)
    for i in range(4): pk('add', 44+2*i, 44+2*i, 56+2*i)
    for i in range(4): A(f'v_cvt_pk_bf16_f32 v{40+i}, v{44+2*i}, v{45+2*i}')
    ashift(40)
    A.label('L_amov')
    A('s_waitcnt lgkmcnt(8)' if not stamps else 's_waitcnt lgkmcnt(0)')
    for ks in range(3): mfs(ks)
    A('s_waitcnt lgkmcnt(0)')
    mfs(3)
    A('s_mov_b64 exec, 0xffff')
    for tl in range(4): A(f'ds_write_b128 v13, v[{20+4*tl}:{23+4*tl}] offset:{256*tl}')
    lds_signal(0)
    A('s_cmp_eq_u32 s4, 4', 's_cbranch_scc0 L_fin0')
    lds_wait(4, 4, 'L_w1')
    A('s_branch L_tailw')
    A.label('L_fin0')
    A('v_mov_b32 v50, s9', 'v_mov_b32 v51, s9', 'v_mov_b32 v41, s9')
    lds_wait(0, 5, 'L_w0')
    A('ds_read2st64_b32 v[42:43], v14 offset0:0 offset1:4', 'ds_read2st64_b32 v[44:45], v14 offset0:8 offset1:12', 'ds_read_b32 v46, v14 offset:4096')
    A('s_waitcnt lgkmcnt(0)')
    A('v_add_f32 v42, v42, v43', 'v_add_f32 v44, v44, v45', 'v_add_f32 v42, v42, v46', 'v_add_f32 v42, v42, v44')
    A('s_cmp_eq_u32 s60, 0', 's_cbranch_scc1 L_finq')
    pub4('v42', 48, 's43')
    A('s_branch L_fin1')
    A.label('L_finq')
    A(f'v_mov_b32_dpp v43, v42 row_shl:4 {DPPF} bound_ctrl:0', 'v_cvt_pk_bf16_f32 v40, v42, v43')
    A('s_mov_b32 exec_lo, 0x0f0f0f0f', 's_mov_b32 exec_hi, 0x0f0f0f0f')
    A('buffer_store_dwordx2 v[40:41], v15, s[44:47], s43 offen sc1')
    A.label('L_fin1')
    stamp(3)
    lds_signal(4)
    A('s_branch L_tailw')
    A.label('L_tailw0')
    A('s_waitcnt lgkmcnt(0)')
    tagcalc()
    A('s_cmp_eq_u32 s60, 2', 's_cbranch_scc0 L_twF2')
    A('v_lshrrev_b32 v8, 2, v0', 's_lshl_b32 s3, s4, 7', 'v_add_u32 v8, s3, v8', 'v_mul_u32_u24 v8, 3072, v8', 'v_lshl_add_u32 v8, v4, 4, v8')
    srd(48, 28, 640 * 3072)
    A('s_lshl_b32 s13, s61, 6', 's_mov_b32 m0, s62')
    dma_loop(8, 48, 'v8', 49152, 'L_dma5', slow=P0, win=WW)
    srd(48, 30, 640 * 3072)
    A('s_lshl_b32 s13, s61, 6')
    dma_loop(8, 48, 'v8', 49152, 'L_dma6', win=WW)
    A('s_branch L_tailw')
    A.label('L_twF2')
    A('s_cmp_eq_u32 s60, 3', 's_cbranch_scc0 L_tailw', 's_cmp_eq_u32 s4, 4', 's_cbranch_scc1 L_tailw')
    A('v_lshrrev_b32 v8, 1, v0', 'v_mul_u32_u24 v8, 1280, v8', 'v_and_b32 v12, 1, v0', 'v_lshl_add_u32 v8, v12, 4, v8')
    srd(48, 32, 1536 * 1280)
    A('s_mul_i32 s13, s4, 491520', 's_lshl_b32 s3, s61, 5', 's_add_u32 s13, s13, s3', 's_mov_b32 m0, s62')
    dma_loop(12, 48, 'v8', 40960, 'L_dma4', slow=P0, win=WW)
    A.label('L_tailw')
    A('s_setprio 0')
    srd(48, 24, 6144 * 1280)
    A('s_mul_i32 s13, s7, 245760', 's_mul_i32 s3, s8, 160', 's_add_u32 s13, s13, s3')
    A('s_mul_i32 s3, s4, 6144', f's_add_u32 m0, s3, {L_WO}', 's_mul_i32 s3, s4, 384', 'v_add_u32 v9, s3, v0')
    wo_addr = ['v_mul_u32_u24 v8, 6554, v9', 'v_lshrrev_b32 v8, 16, v8', 'v_mul_u32_u24 v8, 1120, v8', 'v_lshl_add_u32 v8, v9, 4, v8']
    A(*wo_addr)
    dma_loop(6, 48, 'v8', None, 'L_dma3', ['v_add_u32 v9, 64, v9'] + wo_addr, win=WW)

    if HF:
        A('s_and_b32 s3, s60, 6', 's_cmp_eq_u32 s3, 2', 's_cbranch_scc0 L_nosig')
        lds_signal(4)
        A.label('L_nosig')
    if fl:
        A('s_waitcnt vmcnt(0)', 's_barrier')
        stamp(6); stamp(7); stamp(8); stamp(9); stamp(10); stamp(11)
        A('s_mov_b32 s12, 1', 's_branch L_tend')
    if hs:
        A('s_waitcnt vmcnt(14)'); hstamp(9); A('s_waitcnt vmcnt(6)'); hstamp(10); A('s_waitcnt vmcnt(0)'); hstamp(11)
    stamp(4)
    A(f's_mov_b32 s58, {hex(LOG2E)}', 's_mov_b32 s56, 0', 's_mov_b32 s57, -1')
    srd(52, 38, 5120)
    A('s_mul_i32 s14, s7, 5120', f's_add_u32 s14, s14, {WS_REC}')
    A('s_mul_i32 s15, s8, 640', 's_add_u32 s15, s15, s14')
    A('s_lshl_b32 s3, s4, 10', 's_add_u32 s14, s14, s3')
    A('s_lshl_b32 s3, s4, 6', 'v_add_u32 v12, s3, v0', 'v_mul_u32_u24 v15, 1639, v12', 'v_lshrrev_b32 v15, 16, v15')
    A('v_mul_u32_u24 v16, 40, v15', 'v_sub_u32 v16, v12, v16', 'v_cmp_gt_u32 s[96:97], 33, v16')
    A('v_add_u32 v15, v15, v12', 'v_lshlrev_b32 v15, 4, v15', f'v_add_u32 v15, {L_RC}, v15')
    A('v_and_b32 v12, 7, v0', 'v_mul_u32_u24 v16, 656, v12', 'v_lshl_add_u32 v16, v6, 4, v16', f'v_add_u32 v16, {L_RC}, v16')
    A('v_and_b32 v17, 1, v6', 'v_lshl_add_u32 v17, v17, 2, v4', 'v_mul_u32_u24 v17, 656, v17', f'v_add_u32 v17, {L_RC + 512}, v17')
    A('v_lshrrev_b32 v19, 5, v0', 'v_lshlrev_b32 v18, 2, v19', 'v_xor_b32 v12, v12, v18', 'v_lshlrev_b32 v18, 10, v12', f'v_add_u32 v18, {L_REC}, v18')
    A('v_and_b32 v12, 31, v0', 'v_lshlrev_b32 v12, 4, v12', 'v_lshl_add_u32 v19, v19, 12, v12', f'v_add_u32 v19, {L_REC}, v19')
    A('v_mul_u32_u24 v12, 960, v6', 'v_lshl_add_u32 v12, v4, 3, v12', 's_lshl_b32 s3, s4, 5', f's_add_u32 s3, s3, {L_WO}', 'v_add_u32 v12, s3, v12')
    A('v_mul_u32_u24 v7, 160, v5', 'v_add_u32 v7, v7, v12', 'v_and_b32 v8, 1, v5', 'v_mul_u32_u24 v8, 160, v8', 'v_add_u32 v8, v8, v12', 'v_add_u32 v8, 640, v8')
    A('s_mul_i32 s43, s8, 5', 's_add_u32 s43, s43, s4', 's_lshl_b32 s43, s43, 5', 's_add_u32 s43, s43, s7', 's_lshl_b32 s43, s43, 9', f's_add_u32 s43, s43, {WS_Y}')
    A('v_mov_b32 v11, 0', 'v_mov_b32 v12, 0')
    A('s_cmp_eq_u32 s60, 2', 's_cselect_b32 s3, 6, 5', 's_add_u32 s13, s3, 3')
    A('v_lshlrev_b32 v9, s13, v6', 'v_lshlrev_b32 v20, s3, v5', 'v_add_u32 v9, v9, v20', 'v_lshl_add_u32 v9, v4, 3, v9', 'v_add_u32 v9, s62, v9')
    if dry:
        A('s_mov_b32 s46, 0', 's_mov_b32 s54, 0')
        A('s_branch L_tail')
    A.label('L_real')
    A('s_mov_b32 s12, 1', f's_mov_b32 s46, {WS_SIZE}', 's_mov_b32 s54, 5120')
    A('s_cmp_eq_u32 s60, 2', 's_cbranch_scc0 L_preB')
    A(f's_add_u32 s3, s63, {WS_MOD + 3*10240}', f's_add_u32 s13, s63, {WS_MOD + 4*10240}')
    A.label('L_scpoll')
    A('buffer_load_dwordx4 v[36:39], v2, s[44:47], s13 offen sc1', 'buffer_load_dwordx4 v[40:43], v2, s[44:47], s13 offen offset:128 sc1')
    A('buffer_load_dwordx4 v[44:47], v2, s[44:47], s3 offen sc1', 'buffer_load_dwordx4 v[48:51], v2, s[44:47], s3 offen offset:128 sc1')
    A('s_waitcnt vmcnt(0)')
    check_tags(['v38', 'v42', 'v46', 'v50'], 'v52', 'L_scpoll', False, 8)
    unpack(20, [36, 37, 40, 41]); unpack(28, [44, 45, 48, 49])
    for i in range(4): A(f'v_pk_add_f32 v[{20+2*i}:{21+2*i}], v[{20+2*i}:{21+2*i}], 1.0 op_sel_hi:[1,0]')
    rnd8(20, 36)
    A('v_lshlrev_b32 v11, 3, v4', 's_lshl_b32 s3, s4, 5', 'v_add_u32 v12, s3, v11')
    A('s_branch L_preD')
    A.label('L_preB')
    A('s_cmp_eq_u32 s60, 3', 's_cbranch_scc0 L_preD')
    A('s_lshl_b32 s13, s61, 8')
    A('s_cmp_eq_u32 s4, 4', 's_cbranch_scc1 L_preR')
    A(f's_add_u32 s13, s13, {WS_MOD + 5*10240}', 'v_mov_b32 v12, v3', 'v_lshrrev_b32 v21, 2, v0')
    A('s_branch L_preG0')
    A.label('L_preR')
    A('v_and_b32 v21, 15, v0', 'v_and_b32 v22, 1, v6', 'v_lshrrev_b32 v23, 1, v6', 'v_lshl_add_u32 v22, v22, 1, v23')
    vpub('v12', 'v21', 'v22', 'v23')
    A('v_lshl_add_u32 v11, v21, 2, v22', 'v_lshlrev_b32 v11, 2, v11')
    srd(48, 16, 5120)
    A('v_mul_u32_u24 v23, 1280, v22', 'v_lshl_add_u32 v23, v21, 1, v23', 's_lshl_b32 s3, s61, 5')
    A('buffer_load_ushort v20, v23, s[48:51], s3 offen')
    A(f's_add_u32 s13, s13, {WS_MOD + 2*10240}')
    A.label('L_preG0')
    A('v_and_b32 v23, -16, v12')
    A.label('L_preG')
    A('buffer_load_dwordx4 v[24:27], v23, s[44:47], s13 offen sc1')
    A('s_waitcnt vmcnt(0)')
    check_tags(['v26'], None, 'L_preG', False, 8)
    A('v_and_b32 v23, 2, v21', 'v_cmp_eq_u32 vcc, 0, v23', 'v_cndmask_b32 v24, v25, v24, vcc')
    A('v_and_b32 v21, 1, v21', 'v_lshlrev_b32 v21, 4, v21', 'v_sub_u32 v21, 16, v21', 'v_lshlrev_b32 v21, v21, v24', 'v_and_b32 v21, 0xffff0000, v21')
    A('v_lshlrev_b32 v20, 16, v20')
    A.label('L_preD')
    A('s_waitcnt vmcnt(0) lgkmcnt(0)')
    stamp(5)
    A('s_setprio 2')
    A('s_barrier')
    A.label('L_tail')
    stamp(6)
    def wofrags():
        for kk in range(8):
            A(f'ds_read_b64_tr_b16 v[{64+4*kk}:{65+4*kk}], v7 offset:{3840*kk}', f'ds_read_b64_tr_b16 v[{66+4*kk}:{67+4*kk}], v8 offset:{3840*kk}')
    A('s_cmp_eq_u32 s4, 0', 's_cbranch_scc0 L_O')
    A('ds_read_b32 v36, v18 offset:524', 'ds_read_b32 v37, v18 offset:12')
    for i in range(4): A(f'ds_read_b128 v[{96+8*i}:{99+8*i}], v19 offset:{1024*i}', f'ds_read_b128 v[{100+8*i}:{103+8*i}], v19 offset:{1024*i+512}')
    A('s_waitcnt lgkmcnt(8)')
    A(f'v_max_f32_dpp v38, v36, v36 quad_perm:[1,0,3,2] {DPPF}', f'v_max_f32_dpp v38, v38, v38 quad_perm:[2,3,0,1] {DPPF}', f'v_max_f32_dpp v38, v38, v38 row_half_mirror {DPPF}')
    A('v_sub_f32 v36, v36, v38', 'v_mul_f32 v36, s58, v36', 'v_exp_f32 v36, v36', 'v_mul_f32 v37, v37, v36')
    A(f'v_add_f32_dpp v37, v37, v37 quad_perm:[1,0,3,2] {DPPF}', f'v_add_f32_dpp v37, v37, v37 quad_perm:[2,3,0,1] {DPPF}', f'v_add_f32_dpp v37, v37, v37 row_half_mirror {DPPF}')
    A('v_rcp_f32 v39, v37', 'v_mul_f32 v36, v36, v39')
    A('s_waitcnt lgkmcnt(0)')
    for i in range(4):
        for k in range(3):
            op = 'v_mul_f32_dpp' if i == 0 else 'v_fmac_f32_dpp'
            A(f'{op} v{56+2*k}, v36, v{96+8*i+k} row_newbcast:{i} {DPPF}', f'{op} v{57+2*k}, v36, v{100+8*i+k} row_newbcast:{i} {DPPF}')
    A('v_permlane32_swap_b32 v56, v60', 'v_permlane32_swap_b32 v57, v61', 'v_permlane32_swap_b32 v58, v59')
    A('v_add_f32 v56, v56, v60', 'v_add_f32 v57, v57, v61', 'v_add_f32 v58, v58, v59')
    A('v_cvt_pk_bf16_f32 v40, v56, v57', 'v_mov_b32 v59, v58', 'v_mov_b32 v43, s9', 'v_mov_b32 v42, v40')
    A('v_permlane32_swap_b32 v58, v59', 'v_permlane32_swap_b32 v40, v42')
    A('v_cvt_pk_bf16_f32 v41, v58, v59')
    A('v_cndmask_b32 v40, v40, v38, s[56:57]', 'v_cndmask_b32 v41, v41, v37, s[56:57]')
    A('s_mov_b32 exec_hi, 1')
    A('buffer_store_dwordx4 v[40:43], v1, s[44:47], s15 offen sc1')
    A('s_mov_b32 exec_hi, -1')
    A.label('L_O')
    stamp(7)
    wofrags()
    A('s_mov_b64 exec, s[96:97]')
    A.label('L_opoll')
    A('buffer_load_dwordx4 v[44:47], v1, s[44:47], s14 offen sc1')
    A('s_waitcnt vmcnt(0)')
    check_tags(['v47'], None, 'L_opoll', True)
    A('v_mov_b32 v47, 0')
    A('ds_write_b128 v15, v[44:47]')
    A('s_mov_b64 exec, -1')
    A('s_waitcnt lgkmcnt(0)')
    if dry: A('s_cmp_eq_u32 s12, 0', 's_cbranch_scc1 L_onb')
    A('s_barrier')
    A.label('L_onb')
    stamp(8)
    A('ds_read_b64 v[36:37], v17')
    for kk in range(8): A(f'ds_read_b128 v[{96+4*kk}:{99+4*kk}], v16 offset:{64*kk}')
    A('v_mov_b32 v46, s9', 'v_mov_b32 v47, s9')
    A('s_waitcnt lgkmcnt(8)')
    A(f'v_max_f32_dpp v38, v36, v36 quad_perm:[1,0,3,2] {DPPF}')
    A('v_sub_f32 v36, v36, v38', 'v_mul_f32 v36, s58, v36', 'v_exp_f32 v36, v36')
    for kk in range(8):
        A(f's_waitcnt lgkmcnt({7-kk})')
        A(f'v_mfma_f32_16x16x32_bf16 v[40:43], v[{96+4*kk}:{99+4*kk}], v[{64+4*kk}:{67+4*kk}], {"0" if kk == 0 else "v[40:43]"}')
        if kk == 0: A('v_mul_f32 v36, v36, v37')
        if kk == 2: A(f'v_add_f32_dpp v37, v36, v36 quad_perm:[1,0,3,2] {DPPF}')
        if kk == 3: A('v_rcp_f32 v37, v37')
        if kk == 5: A('v_mul_f32 v36, v36, v37')
    A(f'v_mul_f32_dpp v44, v36, v40 quad_perm:[0,0,0,0] {DPPF}', f'v_mul_f32_dpp v45, v36, v42 quad_perm:[2,2,2,2] {DPPF}')
    A(f'v_fmac_f32_dpp v44, v36, v41 quad_perm:[1,1,1,1] {DPPF}', f'v_fmac_f32_dpp v45, v36, v43 quad_perm:[3,3,3,3] {DPPF}')
    A('s_mov_b32 exec_hi, 0')
    A('buffer_store_dwordx4 v[44:47], v1, s[44:47], s43 offen sc1')
    A('s_mov_b32 exec_hi, -1')
    stamp(9)
    A('s_cmp_eq_u32 s60, 3', 's_cbranch_scc1 L_B')
    A('s_cmp_eq_u32 s60, 2', 's_cbranch_scc0 L_tend')
    for m in range(2):
        for tl in range(2):
            for ks in range(4):
                r = 64 + 32 * m + 16 * tl + 4 * ks; o = 8192 * m + 2048 * ks + 32 * tl
                A(f'ds_read_b64_tr_b16 v[{r}:{r+1}], v9 offset:{o}', f'ds_read_b64_tr_b16 v[{r+2}:{r+3}], v9 offset:{o+256}')
    def gatepoll(name, soff):
        if not gate: return
        A('s_mov_b64 exec, 1')
        A.label(name)
        A(f'buffer_load_dword v36, v10, s[44:47], {soff} offen sc1', 's_waitcnt vmcnt(0)')
        check_tags(['v36'], None, name, True)
        A('s_mov_b64 exec, -1')
    if gate:
        A('s_cmp_eq_u32 s4, 0', 's_cbranch_scc0 L_xg1')
        A('s_min_u32 s3, s61, 39', 's_lshl_b32 s3, s3, 14', f's_add_u32 s3, s3, {WS_Y + 8}', 'v_lshlrev_b32 v37, 9, v0', 's_mov_b32 exec_hi, 0')
        A.label('L_xgate')
        A('buffer_load_dword v36, v37, s[44:47], s3 offen sc1', 's_waitcnt vmcnt(0)')
        check_tags(['v36'], None, 'L_xgate', True)
        A('s_mov_b32 exec_hi, -1')
        A.label('L_xg1')
        if dry: A('s_cmp_eq_u32 s12, 0', 's_cbranch_scc1 L_xg2')
        A('s_barrier')
        A.label('L_xg2')
    A(f's_add_u32 s3, s63, {WS_X1}', 's_mov_b32 s13, 0x3f803f80')
    A.label('L_xpoll')
    A('buffer_load_dwordx4 v[48:51], v2, s[44:47], s3 offen sc1', 'buffer_load_dwordx4 v[52:55], v2, s[44:47], s3 offen offset:128 sc1')
    A('s_waitcnt vmcnt(0)')
    check_tags(['v50', 'v54'], 'v39', 'L_xpoll', True, xs)
    stamp(10)
    for i, r in enumerate([48, 49, 52, 53]):
        A(f'v_dot2_f32_bf16 v36, v{r}, s13, {"0" if i == 0 else "v36"}', f'v_dot2_f32_bf16 v37, v{r}, v{r}, {"0" if i == 0 else "v37"}')
    unpack(56, [48, 49])
    allreduce_b('v36', 'v37', 'v38')
    A('s_mov_b64 exec, 15', f'ds_write_b64 v12, v[36:37] offset:{L_ST}', 's_mov_b64 exec, -1')
    unpack(60, [52, 53])
    A('s_waitcnt lgkmcnt(0)')
    if dry: A('s_cmp_eq_u32 s12, 0', 's_cbranch_scc1 L_stnb')
    A('s_barrier')
    A.label('L_stnb')
    A(f'ds_read2_b64 v[40:43], v11 offset0:{L_ST//8} offset1:{L_ST//8+4}', f'ds_read2_b64 v[44:47], v11 offset0:{L_ST//8+8} offset1:{L_ST//8+12}', f'ds_read_b64 v[36:37], v11 offset:{L_ST+128}')
    A('s_waitcnt lgkmcnt(0)')
    pk('add', 40, 40, 42); pk('add', 44, 44, 46); pk('add', 36, 36, 40); pk('add', 36, 36, 44)
    ln_stats('v36', 'v37', 'v38')
    for i in range(4): pk('add', 56+2*i, 56+2*i, 36, 'op_sel_hi:[1,0] neg_lo:[0,1] neg_hi:[0,1]')
    rnd8(56, 40)
    for i in range(4): pk('mul', 56+2*i, 56+2*i, 36, 'op_sel:[0,1] op_sel_hi:[1,1]')
    rnd8(56, 40)
    for i in range(4): pk('mul', 56+2*i, 56+2*i, 20+2*i)
    rnd8(56, 40)
    for i in range(4): pk('add', 56+2*i, 56+2*i, 28+2*i)
    for i in range(4): A(f'v_cvt_pk_bf16_f32 v{40+i}, v{56+2*i}, v{57+2*i}')
    ashift(40)
    A('s_waitcnt lgkmcnt(0)')
    for ks in range(4):
        for a_ in range(4):
            r = 64 + 16 * a_ + 4 * ks; d = 20 + 4 * a_
            A(f'v_mfma_f32_16x16x32_bf16 v[{d}:{d+3}], v[{40+4*ks}:{43+4*ks}], v[{r}:{r+3}], {"0" if ks == 0 else f"v[{d}:{d+3}]"}')
    A('s_lshl_b32 s3, s61, 1', 's_add_u32 s3, s3, s4', 's_lshl_b32 s3, s3, 8', f's_add_u32 s3, s3, {WS_G}', 'v_mov_b32 v58, s9', 'v_mov_b32 v59, s9')
    A('s_mov_b64 exec, 0xffff')
    for a_ in range(4): A(f'ds_write_b128 v13, v[{20+4*a_}:{23+4*a_}] offset:{256*a_}')
    A('s_mov_b64 exec, -1')
    A('s_waitcnt lgkmcnt(0)')
    if dry: A('s_cmp_eq_u32 s12, 0', 's_cbranch_scc1 L_f1nb')
    A('s_barrier')
    A.label('L_f1nb')
    A('s_cmp_lt_u32 s4, 2', 's_cbranch_scc0 L_tend')
    for m in range(2):
        r = 40 + 6 * m
        A(f'ds_read2st64_b32 v[{r}:{r+1}], v14 offset0:{2*m} offset1:{4+2*m}', f'ds_read2st64_b32 v[{r+2}:{r+3}], v14 offset0:{8+2*m} offset1:{12+2*m}', f'ds_read_b32 v{r+4}, v14 offset:{4096+512*m}')
    A('s_waitcnt lgkmcnt(0)')
    for m in range(2):
        r = 40 + 6 * m
        A(f'v_add_f32 v{r}, v{r}, v{r+1}', f'v_add_f32 v{r+2}, v{r+2}, v{r+3}')
    for m in range(2):
        r = 40 + 6 * m
        A(f'v_add_f32 v{r}, v{r}, v{r+4}')
    for m in range(2):
        r = 40 + 6 * m
        A(f'v_add_f32 v{r}, v{r}, v{r+2}')
    A('v_cvt_pk_bf16_f32 v41, v40, v46', 'v_lshlrev_b32 v40, 16, v41', 'v_and_b32 v46, 0xffff0000, v41')
    k0 = -2.0 * 1.4426950408889634 * 0.7978845608028654
    A('v_mul_f32 v41, v40, v40', f'v_mov_b32 v42, {hex(f2u(k0))}', f'v_fmac_f32 v42, {hex(f2u(k0*0.044715))}, v41', 'v_mul_f32 v42, v42, v40')
    A('v_exp_f32 v42, v42', 'v_add_f32 v42, 1.0, v42', 'v_rcp_f32 v42, v42', 'v_mul_f32 v40, v40, v42')
    rnd('v40', 'v40'); A('v_mul_f32 v40, v40, v46')
    pub4('v40', 56, 's3')
    A('s_mov_b64 exec, -1')
    stamp(11)
    A('s_branch L_tend')
    A.label('L_B')
    A('s_cmp_eq_u32 s4, 4', 's_cbranch_scc0 L_F2')
    A('s_lshl_b32 s13, s61, 8', f's_add_u32 s13, s13, {WS_X1}')
    A('v_mov_b32 v42, s9', 'v_mov_b32 v43, s9', 'v_lshlrev_b32 v36, 2, v0')
    if dry: A('s_cmp_eq_u32 s12, 0', 's_cbranch_scc1 L_rnb')
    A('s_barrier')
    A.label('L_rnb')
    stamp(10)
    A(f'ds_read2st64_b32 v[44:45], v36 offset0:{L_D//256} offset1:{L_D//256+1}', f'ds_read2st64_b32 v[46:47], v36 offset0:{L_D//256+2} offset1:{L_D//256+3}')
    A('s_waitcnt lgkmcnt(0)')
    pk('add', 44, 44, 46)
    A('v_add_f32 v44, v44, v45')
    rnd('v44', 'v44'); A('v_mul_f32 v44, v44, v21'); rnd('v44', 'v44'); A('v_add_f32 v44, v44, v20')
    A(f'v_mov_b32_dpp v46, v44 quad_perm:[1,1,3,3] {DPPF}', 'v_cvt_pk_bf16_f32 v40, v44, v46', f'v_mov_b32_dpp v41, v40 quad_perm:[2,2,2,2] {DPPF}')
    A('s_mov_b32 exec_lo, 0x11111111', 's_mov_b32 exec_hi, 0x11111111')
    A('buffer_store_dwordx4 v[40:43], v12, s[44:47], s13 offen sc1')
    A('s_mov_b64 exec, -1')
    rnd('v44', 'v44')
    A(f'ds_write_b32 v11, v44 offset:{L_X1}')
    stamp(11)
    A('s_waitcnt lgkmcnt(0)')
    if dry: A('s_cmp_eq_u32 s12, 0', 's_cbranch_scc1 L_tend')
    A('s_barrier')
    A('s_branch L_tend')
    A.label('L_F2')
    for ks in range(12):
        r = 64 + 4 * ks
        A(f'ds_read_b64_tr_b16 v[{r}:{r+1}], v9 offset:{1024*ks}', f'ds_read_b64_tr_b16 v[{r+2}:{r+3}], v9 offset:{1024*ks+128}')
    A('s_lshl_b32 s3, s61, 2', 's_add_u32 s3, s3, s4', 's_lshl_b32 s3, s3, 12', f's_add_u32 s3, s3, {WS_Y}')
    A.label('L_ypoll')
    for i in range(4):
        A(f'buffer_load_dwordx4 v[{36+4*i}:{39+4*i}], v1, s[44:47], s3 offen offset:{1024*i} sc1')
    A('s_waitcnt vmcnt(0)')
    check_tags([f'v{38+4*i}' for i in range(4)], 'v39', 'L_ypoll', True)
    pk('add', 36, 36, 40); pk('add', 44, 44, 48); pk('add', 36, 36, 44)
    A('v_permlane32_swap_b32 v36, v37', 'v_add_f32 v36, v36, v37')
    A('ds_write_b32 v14, v36')
    A('s_waitcnt lgkmcnt(0)')
    if dry: A('s_cmp_eq_u32 s12, 0', 's_cbranch_scc1 L_ynb')
    A('s_barrier')
    A.label('L_ynb')
    A('s_mul_i32 s3, s4, 6144', f's_add_u32 s3, s3, {WS_G}', 's_add_u32 s13, s3, 4096')
    A.label('L_gpoll')
    for i in range(6):
        A(f'buffer_load_dwordx4 v[{36+4*i}:{39+4*i}], v2, s[44:47], {"s3" if i < 4 else "s13"} offen offset:{2048*((i//2)%2)+128*(i%2)} sc1')
    A('s_waitcnt vmcnt(0)')
    check_tags([f'v{38+4*i}' for i in range(6)], 'v60', 'L_gpoll', True, gs)
    stamp(10)
    A('s_waitcnt lgkmcnt(0)')
    first = True
    for blk in range(3):
        for ks in range(4):
            d = 112 + 4 * ks
            for i in range(4):
                sr = 36 + 8 * blk + (i & 1) + 4 * (i >> 1)
                if ks == 0: A(f'v_mov_b32 v{d+i}, v{sr}')
                else: A(f'v_mov_b32_dpp v{d+i}, v{sr} row_shl:{4*ks} {DPPF} bound_ctrl:0')
            if (blk, ks) != (0, 0):
                pb, pk_ = ((blk, ks - 1) if ks else (blk - 1, 3))
                pd = 112 + 4 * pk_; r = 64 + 4 * (4 * pb + pk_)
                A(f'v_mfma_f32_16x16x32_bf16 v[60:63], v[{pd}:{pd+3}], v[{r}:{r+3}], {"0" if first else "v[60:63]"}'); first = False
    A('v_lshlrev_b32 v36, 2, v0')
    A('v_mfma_f32_16x16x32_bf16 v[60:63], v[124:127], v[108:111], v[60:63]')
    A('v_lshrrev_b32 v37, 2, v0', 'v_lshlrev_b32 v37, 1, v37', 'v_mul_u32_u24 v38, 1280, v4', 'v_add_u32 v37, v37, v38', 's_lshl_b32 s3, s61, 5')
    A('s_mov_b64 exec, 0xffff')
    A('ds_write_b128 v13, v[60:63]')
    A('s_mov_b64 exec, -1')
    A('s_waitcnt lgkmcnt(0)')
    if dry: A('s_cmp_eq_u32 s12, 0', 's_cbranch_scc1 L_f2nb')
    A('s_barrier')
    A.label('L_f2nb')
    A('s_cmp_eq_u32 s4, 0', 's_cbranch_scc0 L_tend')
    A('ds_read2st64_b32 v[40:41], v14 offset0:0 offset1:4', 'ds_read2st64_b32 v[42:43], v14 offset0:8 offset1:12')
    A(f'ds_read_b32 v44, v36 offset:{L_X1}')
    A('s_waitcnt lgkmcnt(0)')
    A('v_add_f32 v40, v40, v41', 'v_add_f32 v42, v42, v43', 'v_add_f32 v40, v40, v42')
    rnd('v40', 'v40'); A('v_mul_f32 v40, v40, v21'); rnd('v40', 'v40'); A('v_add_f32 v40, v40, v44', 'v_cvt_pk_bf16_f32 v40, v40, v40')
    A('buffer_store_short v40, v37, s[52:55], s3 offen')
    stamp(11)
    A('s_cmp_eq_u32 s61, 0', 's_cbranch_scc0 L_tend')
    A('v_mov_b32 v40, s9', 's_mov_b64 exec, 1')
    A('buffer_store_dword v40, v10, s[44:47], 0 offen')
    A('s_mov_b64 exec, -1')
    A.label('L_tend')
    if dry: A('s_cmp_eq_u32 s12, 0', 's_cbranch_scc1 L_real')
    if stamps:
        A('s_mov_b64 exec, -1', 'v_lshlrev_b32 v40, 4, v0', f'v_add_u32 v41, {L_TS}, v40', 'ds_read_b128 v[44:47], v41', 's_lshl_b32 s3, s2, 10', f's_add_u32 s3, s3, {WS_TS}', 's_waitcnt lgkmcnt(0)',
          'buffer_store_dwordx4 v[44:47], v40, s[44:47], s3 offen')
        A('s_memtime s[90:91]', 's_memrealtime s[92:93]')
    stamp_flush(15)
    A.label('L_end')
    A('s_endpgm')

    body = A.fix()
    hdr = open('adaLN_cond__gqa_block_cached__geglu_ffn__decode.s.ref').read().split('\n')
    hdr = [l for l in hdr if l.startswith(';') and '@launch' not in l and 'Override' not in l and 'grid=ceil' not in l]
    out = hdr + [f'; @launch grid=(256,1,1) block=(832,1,1) lds={LDS_SIZE}',
                 '.amdgcn_target "amdgcn-amd-amdhsa--gfx950"', '.text', f'.globl {KNAME}', '.p2align 8', f'.type {KNAME},@function', f'{KNAME}:']
    out += [('' if l.endswith(':') else '    ') + l for l in body]
    out += ['.section .rodata,"a"', '.p2align 6', f'.amdhsa_kernel {KNAME}',
            '  .amdhsa_next_free_vgpr 128', '  .amdhsa_next_free_sgpr 98', '  .amdhsa_accum_offset 128',
            '  .amdhsa_float_denorm_mode_32 3',
            '  .amdhsa_group_segment_fixed_size 0', '  .amdhsa_kernarg_size 112', '  .amdhsa_user_sgpr_count 2',
            '  .amdhsa_user_sgpr_kernarg_segment_ptr 1', '  .amdhsa_system_sgpr_workgroup_id_x 1', '.end_amdhsa_kernel']
    return '\n'.join(out) + '\n'

if __name__ == '__main__':
    kw = eval('dict(' + (sys.argv[2] if len(sys.argv) > 2 else '') + ')')
    open(sys.argv[1], 'w').write(gen(**kw))
```

```python
import struct, sys
from asmgen import Asm
KNAME = 'adaLN_cond__gqa_block_cached__geglu_ffn__decode_kernel'
def f2u(x): return struct.unpack('<I', struct.pack('<f', x))[0]
LOG2E = f2u(1.4426950408889634)
SCALE = f2u(192 ** -0.5)
DPPF = 'row_mask:0xf bank_mask:0xf'

WS_EP = 0
WS_X1 = 0x1000
WS_XID = 0x4000
WS_G = 0x5000
WS_MOD = 0xb000
WS_Q = 0x1a000
WS_REC = 0x32000
WS_Y = 0x5a000
WS_STAMP = 0x100000
WS_SIZE = 0x200000
L_CNT = 0
L_ST = 128
L_X1 = 256
L_D = 512
L_RC = 5632
L_REC = 10880
L_WO = 19072
L_Q = 49792
L_W = 50176
LDS_SIZE = L_W + 81920
assert L_W % 128 == 0

def ngroups(D):
    out = []
    for i in range(256):
        x = i & 7; k = i >> 3; p = k >> 1
        d = 0 if p >= 11 else D[3] if p >= 9 else D[2] if x + 8 * p >= 60 else D[0] if p < 5 else D[1]
        out.append(128 + d if k & 1 else 128 - d)
    return out

def roles():
    ty, crit = [], []
    for i in range(256):
        x = i & 7; k = i >> 3; p = k >> 1; sp = k & 1; m = x + 8 * p
        if p >= 11: t = 0
        elif sp == 0: t = 3 if p < 5 else 2
        elif p >= 9: t = 0
        else: t = 1 if m < 60 else 4
        ty.append(t); crit.append(t == 1 and m < 20)
    return ty, crit

def gen(H0=12, QP=2, D=(4, 4, 8, 2), fast=1, prewo=1, sleep=1, qsleep=4, xs=0, stamps=False, POL='nt', KP=None, VP=None):
    KP = POL if KP is None else KP; VP = POL if VP is None else VP
    A = Asm()
    def stamp(i):
        if stamps: A(f's_memrealtime s[{64+2*i}:{65+2*i}]')
    def stamp_flush(n):
        if not stamps: return
        A('s_waitcnt lgkmcnt(0)')
        A('s_lshl_b32 s60, s2, 4', 's_add_u32 s60, s60, s4', 's_lshl_b32 s60, s60, 6', f's_add_u32 s60, s60, {WS_STAMP}')
        A('v_mov_b32 v126, 0', 's_mov_b64 exec, 1')
        for i in range(n):
            A(f'v_mov_b32 v127, s{64+2*i}', f'buffer_store_dword v127, v126, s[44:47], s60 offen offset:{4*i}')
        A('s_waitcnt vmcnt(0)')
    def rnd(dst, src, tmp=None):
        t = tmp or dst
        A(f'v_cvt_pk_bf16_f32 {t}, {src}, {src}', f'v_lshlrev_b32 {dst}, 16, {t}')
    def srd(base, ptr, size, off=None):
        if off is None:
            A(f's_mov_b32 s{base}, s{ptr}', f's_mov_b32 s{base+1}, s{ptr+1}')
        else:
            A(f's_add_u32 s{base}, s{ptr}, {off}', f's_addc_u32 s{base+1}, s{ptr+1}, 0')
        A(f's_mov_b32 s{base+2}, {size}', f's_mov_b32 s{base+3}, 0x20000')
    def tagcalc():
        A('s_mul_i32 s9, s9, 0x9e3779b1', 's_add_u32 s9, s9, 0x7f4a7c15')
    def check_tags(regs, acc, retry, slp):
        done = retry + '_ok'
        if len(regs) == 1:
            A(f'v_cmp_ne_u32 vcc, s9, {regs[0]}')
        else:
            A(f'v_xor_b32 {acc}, s9, {regs[0]}')
            for r in regs[1:]:
                A(f'v_bitop3_b32 {acc}, {acc}, {r}, s9 bitop3:0xf6')
            A(f'v_cmp_ne_u32 vcc, 0, {acc}')
        A(f's_cbranch_vccz {done}')
        if slp: A(f's_sleep {slp}')
        A('s_sub_u32 s95, s95, 1', f's_cbranch_scc0 {retry}', 's_mov_b32 s95, 0')
        A.label(done)
    def lds_signal(cnt):
        A('s_mov_b64 exec, 1', f'ds_add_u32 v10, v11 offset:{cnt}', 's_mov_b64 exec, -1')
    def lds_wait(cnt, target, name, vtmp='v12', vaddr='v10', stmp='s3', slp=0):
        A.label(name)
        if slp: A(f's_sleep {slp}')
        A(f'ds_read_b32 {vtmp}, {vaddr} offset:{cnt}', 's_waitcnt lgkmcnt(0)', f'v_readfirstlane_b32 {stmp}, {vtmp}', f's_cmp_ge_u32 {stmp}, {target}',
          f's_cbranch_scc1 {name}_x', 's_sub_u32 s95, s95, 1', f's_cbranch_scc0 {name}', 's_mov_b32 s95, 0')
        A.label(name + '_x')
    def dma_loop(n, voff, step, name, extra=()):
        A(f's_mov_b32 s3, {n}')
        A.label(name)
        A(f'buffer_load_dwordx4 {voff}, s[48:51], s13 offen {POL} lds')
        A(*extra)
        A('s_add_u32 m0, m0, 1024')
        if step: A(f's_add_u32 s13, s13, {step}')
        A('s_sub_u32 s3, s3, 1', 's_cmp_lg_u32 s3, 0', f's_cbranch_scc1 {name}')
    def allreduce_b(s1, s2, t):
        for r in (4, 8):
            A(f'v_add_f32_dpp {s1}, {s1}, {s1} row_ror:{r} {DPPF}', f'v_add_f32_dpp {s2}, {s2}, {s2} row_ror:{r} {DPPF}')
        A(f'v_permlane16_swap_b32 {s1}, {s2}', f'v_add_f32 {s1}, {s1}, {s2}')
        A(f'v_mov_b32 {t}, {s1}', f'v_permlane32_swap_b32 {s1}, {t}', f'v_add_f32 {s1}, {s1}, {t}')
        A(f'v_mov_b32 {s2}, {s1}', f'v_permlane16_swap_b32 {s1}, {s2}')
    def rnd8(e, t):
        for i in range(4): A(f'v_cvt_pk_bf16_f32 v{t+i}, v{e+2*i}, v{e+2*i+1}')
        for i in range(4): A(f'v_lshlrev_b32 v{e+2*i}, 16, v{t+i}', f'v_and_b32 v{e+2*i+1}, 0xffff0000, v{t+i}')
    def unpack(dst, srcs):
        for i, s_ in enumerate(srcs): A(f'v_lshlrev_b32 v{dst+2*i}, 16, v{s_}', f'v_and_b32 v{dst+2*i+1}, 0xffff0000, v{s_}')
    def pk(op, d, a, b, mod=''):
        A(f'v_pk_{op}_f32 v[{d}:{d+1}], v[{a}:{a+1}], v[{b}:{b+1}] {mod}')
    def plus1(e):
        for i in range(4): A(f'v_pk_add_f32 v[{e+2*i}:{e+1+2*i}], v[{e+2*i}:{e+1+2*i}], 1.0 op_sel_hi:[1,0]')
    def ashift(a0):
        for ks in range(1, 4):
            for i in range(4): A(f'v_mov_b32_dpp v{a0+4*ks+i}, v{a0+i} row_shl:{4*ks} {DPPF} bound_ctrl:0')
    def vpub(dst, c, b, tmp):
        A(f'v_bfe_u32 {tmp}, {c}, 2, 1', f'v_lshlrev_b32 {dst}, 7, {tmp}', f'v_lshrrev_b32 {tmp}, 3, {c}', f'v_lshl_add_u32 {dst}, {tmp}, 6, {dst}',
          f'v_bfe_u32 {tmp}, {c}, 1, 1', f'v_lshl_add_u32 {dst}, {tmp}, 2, {dst}', f'v_lshl_add_u32 {dst}, {b}, 4, {dst}')
    def pub4(val, g, soff):
        A(f'v_mov_b32_dpp v{g+1}, {val} row_shl:4 {DPPF} bound_ctrl:0', f'v_cvt_pk_bf16_f32 v{g}, {val}, v{g+1}', f'v_mov_b32_dpp v{g+1}, v{g} row_shl:8 {DPPF} bound_ctrl:0')
        A('s_mov_b32 exec_lo, 0x000f000f', 's_mov_b32 exec_hi, 0x000f000f')
        A(f'buffer_store_dwordx4 v[{g}:{g+3}], v3, s[44:47], {soff} offen sc1')
    def mfma(d, a, b, first):
        A(f'v_mfma_f32_16x16x32_bf16 v[{d}:{d+3}], v[{a}:{a+3}], v[{b}:{b+3}], {"0" if first else f"v[{d}:{d+3}]"}')
    def tr(r, addr, o0, o1, addr1=None):
        A(f'ds_read_b64_tr_b16 v[{r}:{r+1}], {addr} offset:{o0}', f'ds_read_b64_tr_b16 v[{r+2}:{r+3}], {addr1 or addr} offset:{o1}')

    A('s_cmp_ge_u32 s2, 256', 's_cbranch_scc1 L_end')
    stamp(0)
    if stamps: A('s_memtime s[88:89]')
    A('s_load_dwordx16 s[16:31], s[0:1], 0', 's_load_dwordx8 s[32:39], s[0:1], 64', 's_load_dwordx2 s[40:41], s[0:1], 104')
    A('v_lshrrev_b32 v1, 6, v0', 'v_and_b32 v0, 63, v0', 'v_readfirstlane_b32 s4, v1            ; wave')
    A('s_and_b32 s5, s2, 7', 's_lshr_b32 s6, s2, 3', 's_lshr_b32 s3, s6, 3', 's_lshl_b32 s7, s5, 2', 's_add_u32 s7, s7, s3                 ; head', 's_and_b32 s8, s6, 7')
    A('s_mov_b32 s95, 0x80000')
    A('s_lshr_b32 s3, s6, 1', 's_and_b32 s13, s6, 1')
    A('s_mov_b32 s60, 0', 's_sub_u32 s61, s6, 20', 's_mov_b32 s63, 0')
    A('s_cmp_ge_u32 s3, 11', 's_cbranch_scc1 L_roled')
    A('s_lshl_b32 s14, s3, 3', 's_add_u32 s14, s14, s5')
    A('s_cmp_lt_u32 s3, 5', f's_cselect_b32 s63, {D[0]}, {D[1]}', 's_cmp_ge_u32 s14, 60', f's_cselect_b32 s63, {D[2]}, s63', 's_cmp_ge_u32 s3, 9', f's_cselect_b32 s63, {D[3]}, s63')
    A('s_cmp_eq_u32 s13, 0', 's_cbranch_scc1 L_role0')
    A('s_sub_u32 s61, s3, 9', 's_cmp_ge_u32 s3, 9', 's_cbranch_scc1 L_roled')
    A('s_mov_b32 s61, s14', 's_cmp_lt_u32 s14, 60', 's_cselect_b32 s60, 1, 4', 's_branch L_roled')
    A.label('L_role0')
    A('s_cmp_lt_u32 s3, 5', 's_cselect_b32 s60, 3, 2', 's_cselect_b32 s14, 5, 6', 's_cselect_b32 s15, 0, 5', 's_mul_i32 s61, s5, s14', 's_add_u32 s61, s61, s3', 's_sub_u32 s61, s61, s15')
    A.label('L_roled')
    A('s_cmp_lt_u32 s4, 5', 's_cbranch_scc1 L_service')

    q = ['v4', 'v5', 'v6']
    acc = [f'v{8+i}' for i in range(6)]
    vM, vL = 'v14', 'v15'
    def ld(kind, j):
        r, s = (32 + 4 * j, 48) if kind == 'K' else (64 + 4 * j, 52)
        vo, off = ('v1', j * 768) if j < 5 else ('v2', (j - 5) * 768)
        A(f'buffer_load_dwordx3 v[{r}:{r+2}], {vo}, s[{s}:{s+3}], s10 offen offset:{off} {KP if kind == "K" else VP}')
    def goff(t):
        A(f's_and_b32 s10, {t}, -8', f's_add_u32 s10, s10, {t}', 's_add_u32 s10, s10, s86')
        A(f's_mul_i32 s3, {t}, s94', 's_add_u32 s3, s3, s87', f's_cmp_lt_u32 {t}, 112', 's_cselect_b32 s10, s10, s3', 's_mul_i32 s10, s10, 6144')
    A('v_mul_u32_u24 v1, 12, v0', 'v_add_u32 v2, 3840, v1')
    A('s_lshr_b32 s3, s8, 1', 's_lshl_b32 s3, s3, 5', 's_add_u32 s3, s3, s7', 's_mul_i32 s12, s3, 1572864')
    A('s_lshl_b32 s86, s13, 3', 's_mul_i32 s87, s13, 255', 's_add_u32 s87, s87, 112', 's_cmp_eq_u32 s13, 0', 's_cselect_b32 s94, 1, -1')
    A('s_mul_i32 s63, s63, s94', 's_sub_u32 s63, 128, s63')
    A('s_sub_u32 s11, s4, 5')
    goff('s11')
    A('s_cmp_lt_u32 s61, 20', 's_cselect_b32 s15, 2, 0', 's_cmp_eq_u32 s60, 1', 's_cselect_b32 s15, s15, 0', 's_cmp_eq_u32 s60, 0', 's_cselect_b32 s15, 1, s15')
    A('v_mov_b32 v29, 0', 'v_mov_b32 v30, 1')
    A('s_waitcnt lgkmcnt(0)')
    srd(48, 18, 1572864, 's12'); srd(52, 20, 1572864, 's12')
    A('s_load_dword s9, s[40:41], 0')
    A('s_cmp_eq_u32 s15, 0', 's_cbranch_scc1 L_hold2_x')
    A('s_barrier')
    A('s_cmp_eq_u32 s15, 2', 's_cbranch_scc0 L_hold2_x')
    lds_wait(4, 4, 'L_hold2', 'v16', 'v29', 's14', 2)
    order = [('K', j) for j in range(8)] + [('V', j) for j in range(8)]
    for n, o in enumerate(order):
        if n == H0:
            A('s_cmp_eq_u32 s15, 1', 's_cbranch_scc0 L_hold1_x')
            lds_wait(4, 4, 'L_hold1', 'v16', 'v29', 's14', 2)
        if QP and QP <= n < H0:
            A('s_cmp_eq_u32 s15, 1', f's_cbranch_scc0 L_qp{n}', f's_waitcnt vmcnt({QP - 1})')
            A('ds_read_b32 v16, v29 offset:4', 's_waitcnt lgkmcnt(0)', 'v_readfirstlane_b32 s14, v16', 's_cmp_ge_u32 s14, 4', 's_cselect_b32 s15, 3, 1')
            A.label(f'L_qp{n}')
        ld(*o)
    A('s_cmp_eq_u32 s15, 0', 's_cbranch_scc0 L_nobar')
    A('s_barrier')
    A.label('L_nobar')
    if stamps: srd(44, 40, WS_SIZE)
    A('s_mul_i32 s14, s7, 3072', 's_lshr_b32 s3, s8, 1', 's_lshl_b32 s3, s3, 6', 's_add_u32 s14, s14, s3', f's_add_u32 s14, s14, {WS_Q}')
    A('s_lshl_b32 s3, s11, 9', 's_add_u32 s14, s14, s3', 's_add_u32 s84, s40, s14', 's_addc_u32 s85, s41, 0')
    A('v_and_b32 v3, 31, v0', 'v_mul_u32_u24 v3, 12, v3', 's_lshl_b32 s3, s11, 6', 'v_lshlrev_b32 v31, 2, v0', 'v_add_u32 v31, s3, v31')
    A('s_lshl_b32 s3, s11, 10', f's_add_u32 s3, s3, {L_REC}', 'v_lshlrev_b32 v7, 4, v0', 'v_add_u32 v7, s3, v7')
    A('s_mov_b32 s56, 0xcccccccc', 's_mov_b32 s57, 0xcccccccc', f's_mov_b32 s58, {hex(LOG2E)}', f's_mov_b32 s59, {hex(SCALE)}', 's_mov_b32 s43, 1572864')
    for a in acc: A(f'v_mov_b32 {a}, 0')
    A(f'v_mov_b32 {vM}, 0xff7fffff', f'v_mov_b32 {vL}, 0')
    A('s_waitcnt lgkmcnt(0)')
    tagcalc()
    stamp(1)
    A('s_cmp_lt_u32 s11, 6', 's_cbranch_scc0 L_qw')
    A('s_branch L_qpoll')
    A.label('L_qretry')
    A(f's_sleep {qsleep}', 's_sub_u32 s95, s95, 1', 's_cbranch_scc0 L_qpoll', 's_mov_b32 s95, 0', 's_branch L_qgot')
    A.label('L_qpoll')
    A('s_load_dwordx16 s[16:31], s[84:85], 0 glc', 's_load_dwordx8 s[32:39], s[84:85], 256 glc', 's_load_dwordx8 s[76:83], s[84:85], 288 glc', 's_waitcnt lgkmcnt(0)')
    sq = list(range(16, 40, 2)) + list(range(76, 84, 2))
    for r in sq: A(f's_cmp_eq_u32 s{r+1}, s9', 's_cbranch_scc0 L_qretry')
    A.label('L_qgot')
    for i, r in enumerate(sq): A(f'v_writelane_b32 v16, s{r}, {i}')
    A('s_mov_b64 exec, 0xffff', f'ds_write_b32 v31, v16 offset:{L_Q}', 's_mov_b64 exec, 1', 'ds_add_u32 v29, v30 offset:12', 's_mov_b64 exec, -1')
    lds_wait(12, 6, 'L_qw', 'v16', 'v29', 's14', 1)
    stamp(2)
    for i in range(3): A(f'ds_read_b32 {q[i]}, v3 offset:{L_Q + 4*i}')
    A('s_waitcnt lgkmcnt(0)')
    A.label('L_loop')
    A('s_add_u32 s11, s11, 8')
    goff('s11')
    A('s_cmp_ge_u32 s11, s63', 's_cselect_b32 s50, 0, s43', 's_cselect_b32 s54, 0, s43')
    T = lambda j: f'v{35+4*j}'
    for j in range(8):
        A('s_waitcnt vmcnt(15)')
        for i in range(3): A(f'v_dot2_f32_bf16 {T(j)}, v{32+4*j+i}, {q[i]}, {T(j) if i else "0"}')
        ld('K', j)
    for i in range(4): A(f'v_add_f32_dpp v{16+i}, {T(i)}, {T(i)} row_ror:8 row_mask:0xf bank_mask:0x3')
    for i in range(4): A(f'v_add_f32_dpp v{16+i}, {T(i+4)}, {T(i+4)} row_ror:8 row_mask:0xf bank_mask:0xc')
    for i in range(2): A(f'v_add_f32_dpp v{20+i}, v{16+i}, v{16+i} row_half_mirror row_mask:0xf bank_mask:0x5')
    for i in range(2): A(f'v_add_f32_dpp v{20+i}, v{18+i}, v{18+i} row_half_mirror row_mask:0xf bank_mask:0xa')
    A(f'v_add_f32_dpp v22, v20, v20 quad_perm:[2,3,0,1] {DPPF}', f'v_add_f32_dpp v23, v21, v21 quad_perm:[2,3,0,1] {DPPF}')
    A('v_cndmask_b32 v22, v22, v23, s[56:57]')
    A(f'v_add_f32_dpp v22, v22, v22 quad_perm:[1,0,3,2] {DPPF}')
    A('v_mov_b32 v23, v22', 'v_permlane16_swap_b32 v22, v23', 'v_add_f32 v22, v22, v23')
    rnd('v22', 'v22'); A('v_mul_f32 v22, s59, v22'); rnd('v22', 'v22')
    A(f'v_max_f32_dpp v23, v22, v22 quad_perm:[2,3,0,1] {DPPF}', f'v_max_f32_dpp v23, v23, v23 row_half_mirror {DPPF}', f'v_max_f32_dpp v23, v23, v23 row_ror:8 {DPPF}')
    A('v_mov_b32 v25, v23', 'v_permlane32_swap_b32 v23, v25', f'v_max3_f32 v23, v23, v25, {vM}')
    A(f'v_sub_f32 v24, {vM}, v23', 'v_sub_f32 v22, v22, v23', f'v_mov_b32 {vM}, v23')
    A('v_mul_f32 v24, s58, v24', 'v_mul_f32 v22, s58, v22', 'v_exp_f32 v24, v24', 'v_exp_f32 v22, v22')
    for i in range(3): pk('mul', 8+2*i, 8+2*i, 24, 'op_sel_hi:[1,0]')
    A('v_cvt_pk_bf16_f32 v26, v22, 0', 'v_cvt_pk_bf16_f32 v27, 0, v22')
    A(f'v_add_f32_dpp v22, v22, v22 quad_perm:[2,3,0,1] {DPPF}', f'v_mul_f32 {vL}, {vL}, v24', f'v_add_f32_dpp v22, v22, v22 row_half_mirror {DPPF}')
    A(f'v_add_f32_dpp v22, v22, v22 row_ror:8 {DPPF}', f'v_mul_f32 v31, 0.5, {vM}', f'v_add_f32 {vL}, {vL}, v22')
    for j in range(8):
        A('s_waitcnt vmcnt(15)')
        for i in range(3):
            A(f'v_dot2c_f32_bf16_dpp {acc[2*i]}, v26, v{64+4*j+i} row_newbcast:{2*j} {DPPF}')
            A(f'v_dot2c_f32_bf16_dpp {acc[2*i+1]}, v27, v{64+4*j+i} row_newbcast:{2*j} {DPPF}')
        ld('V', j)
    A('s_cmp_lt_u32 s11, s63', 's_cbranch_scc1 L_loop')
    stamp(3)
    A(f'v_permlane32_swap_b32 {vL}, v31')
    for i in range(3): A(f'v_permlane32_swap_b32 {acc[2*i]}, {acc[2*i+1]}')
    A(f'v_add_f32 v23, {vL}, v31')
    for i in range(3): A(f'v_add_f32 v{20+i}, {acc[2*i]}, {acc[2*i+1]}')
    A('ds_write_b128 v7, v[20:23]')
    A('s_waitcnt lgkmcnt(0)', 's_barrier')
    stamp(4); stamp_flush(5)
    A('s_endpgm')

    A.label('L_service')
    A('s_setprio 2')
    A('v_and_b32 v4, 3, v0', 'v_bfe_u32 v5, v0, 2, 2', 'v_lshrrev_b32 v6, 4, v0', 'v_mov_b32 v15, 0')
    A('v_mov_b32 v10, 0', 'v_mov_b32 v11, 1', 'v_lshlrev_b32 v1, 4, v0')
    A('s_cmp_eq_u32 s4, 0', 's_cbranch_scc0 L_nozero')
    for o in (0, 4, 8, 12): A(f'ds_write_b32 v10, v10 offset:{o}')
    A.label('L_nozero')
    A('s_lshl_b32 s62, s4, 14', f's_add_u32 s62, s62, {L_W}')
    A('s_waitcnt lgkmcnt(0)')
    A('s_load_dword s9, s[40:41], 0')
    A('s_cmp_gt_u32 s60, 1', 's_cbranch_scc1 L_nojob')
    A('v_mul_u32_u24 v7, 1280, v4', 'v_lshl_add_u32 v7, v5, 6, v7', 'v_lshl_add_u32 v7, v6, 4, v7', 's_lshl_b32 s3, s4, 8')
    A('s_cmp_eq_u32 s60, 0', 's_cbranch_scc0 L_modjob')
    srd(52, 16, 5120)
    for t in range(5): A(f'buffer_load_dwordx4 v[{64+4*t}:{67+4*t}], v7, s[52:55], 0 offen offset:{256*t}')
    A('buffer_load_dwordx4 v[36:39], v7, s[52:55], s3 offen')
    srd(48, 22, 640 * 12288)
    A('s_mov_b32 s42, 12288', 's_mul_i32 s13, s5, 12', 's_add_u32 s61, s61, s13', 's_lshl_b32 s13, s61, 7')
    A('s_branch L_dojob')
    A.label('L_modjob')
    srd(52, 34, 5120)
    A('buffer_load_dwordx4 v[36:39], v7, s[52:55], s3 offen')
    srd(48, 36, 640 * 7680)
    A('s_mov_b32 s42, 7680', 's_lshl_b32 s13, s61, 7')
    A.label('L_dojob')
    A('v_lshrrev_b32 v8, 3, v0', 's_lshl_b32 s3, s4, 7', 'v_add_u32 v8, s3, v8', 'v_mul_lo_u32 v8, v8, s42')
    A('v_and_b32 v9, 7, v0', 'v_lshlrev_b32 v9, 4, v9', 'v_and_b32 v12, 1, v6', 'v_lshlrev_b32 v12, 5, v12', 'v_xor_b32 v9, v9, v12', 'v_add_u32 v8, v8, v9')
    A('s_lshl_b32 s42, s42, 3', 's_mov_b32 m0, s62')
    dma_loop(16, 'v8', 's42', 'L_dma0', ['v_xor_b32 v8, 64, v8'])
    A.label('L_nojob')
    A('s_barrier')
    srd(44, 40, WS_SIZE)
    A('v_lshrrev_b32 v2, 2, v0')
    vpub('v3', 'v2', 'v4', 'v12')
    A('v_lshrrev_b32 v12, 1, v6', 'v_lshlrev_b32 v2, 8, v12', 'v_lshl_add_u32 v2, v5, 9, v2', 'v_and_b32 v12, 1, v6', 'v_lshl_add_u32 v2, v12, 6, v2', 'v_lshl_add_u32 v2, v4, 4, v2')
    A('s_lshl_b32 s63, s4, 11')
    A('s_lshl_b32 s3, s4, 10', f's_add_u32 s3, s3, {L_D}', 'v_add_u32 v13, s3, v1')
    A('s_lshl_b32 s3, s4, 8', f's_add_u32 s3, s3, {L_D}', 'v_lshlrev_b32 v14, 2, v0', 'v_add_u32 v14, s3, v14')
    A('s_cmp_gt_u32 s60, 1', 's_cbranch_scc1 L_tailw0')
    A('v_lshlrev_b32 v9, 10, v6', 'v_lshl_add_u32 v9, v5, 7, v9', 'v_lshl_add_u32 v9, v4, 3, v9')
    A('v_lshrrev_b32 v12, 1, v5', 'v_lshl_add_u32 v9, v12, 5, v9', 'v_and_b32 v12, 1, v6', 'v_lshl_add_u32 v9, v12, 6, v9', 'v_add_u32 v9, s62, v9')
    A('s_lshl_b32 s43, s61, 2', 's_add_u32 s43, s43, s4', 's_lshl_b32 s43, s43, 8')
    A('s_waitcnt vmcnt(16)')
    unpack(56, [36, 37, 38, 39])
    A('s_cmp_eq_u32 s60, 0', 's_cbranch_scc0 L_silu')
    A('s_mov_b32 s3, 0x3f803f80')
    for i in range(20):
        A(f'v_dot2_f32_bf16 v36, v{64+i}, s3, {"0" if i == 0 else "v36"}', f'v_dot2_f32_bf16 v37, v{64+i}, v{64+i}, {"0" if i == 0 else "v37"}')
    allreduce_b('v36', 'v37', 'v38')
    A(f'v_mul_f32 v36, {hex(f2u(1/640))}, v36', f'v_mul_f32 v37, {hex(f2u(1/640))}, v37', 'v_fma_f32 v37, -v36, v36, v37', 'v_max_f32 v37, 0, v37')
    A('v_cvt_pk_bf16_f32 v38, v36, v37', 'v_and_b32 v37, 0xffff0000, v38', 'v_lshlrev_b32 v36, 16, v38')
    A(f'v_add_f32 v37, {hex(f2u(1e-5))}, v37'); rnd('v37', 'v37'); A('v_sqrt_f32 v37, v37'); rnd('v37', 'v37'); A('v_rcp_f32 v37, v37')
    for i in range(4): pk('add', 56+2*i, 56+2*i, 36, 'op_sel_hi:[1,0] neg_lo:[0,1] neg_hi:[0,1]')
    rnd8(56, 40)
    for i in range(4): pk('mul', 56+2*i, 56+2*i, 36, 'op_sel:[0,1] op_sel_hi:[1,1]')
    rnd8(56, 40)
    A('v_lshlrev_b32 v15, 6, v4', 'v_lshrrev_b32 v12, 3, v0', 'v_lshl_add_u32 v15, v12, 3, v15', f's_add_u32 s43, s43, {WS_Q}')
    A('s_branch L_btr')
    A.label('L_silu')
    for i in range(8): A(f'v_mul_f32 v{44+i}, {hex(LOG2E ^ 0x80000000)}, v{56+i}')
    for i in range(8): A(f'v_exp_f32 v{44+i}, v{44+i}')
    plus1(44)
    for i in range(8): A(f'v_rcp_f32 v{44+i}, v{44+i}')
    for i in range(4): pk('mul', 56+2*i, 56+2*i, 44+2*i)
    for i in range(4): A(f'v_cvt_pk_bf16_f32 v{40+i}, v{56+2*i}, v{57+2*i}')
    ashift(40)
    A(f's_add_u32 s43, s43, {WS_MOD}')
    A.label('L_btr')
    A('v_xor_b32 v16, 32, v9', 'v_xor_b32 v17, 64, v9', 'v_xor_b32 v18, 0x60, v9')
    A('s_waitcnt lgkmcnt(0)')
    tagcalc()
    for ks in range(4):
        A(f's_waitcnt vmcnt({12-4*ks})')
        for tl in range(4): tr(64 + 16*tl + 4*ks, ['v9', 'v16', 'v17', 'v18'][tl], 4096*ks, 4096*ks + 512)
    stamp(1)
    A('s_cmp_eq_u32 s60, 0', 's_cbranch_scc0 L_amov')
    A(f's_add_u32 s3, s63, {WS_MOD}', f's_add_u32 s13, s63, {WS_MOD + 10240}')
    A.label('L_hpoll')
    A('buffer_load_dwordx4 v[28:31], v2, s[44:47], s13 offen sc1', 'buffer_load_dwordx4 v[32:35], v2, s[44:47], s13 offen offset:128 sc1')
    A('buffer_load_dwordx4 v[20:23], v2, s[44:47], s3 offen sc1', 'buffer_load_dwordx4 v[24:27], v2, s[44:47], s3 offen offset:128 sc1')
    A('s_waitcnt vmcnt(0)')
    check_tags(['v22', 'v26', 'v30', 'v34'], 'v36', 'L_hpoll', 1)
    stamp(2)
    unpack(44, [28, 29, 32, 33]); plus1(44); rnd8(44, 36)
    for i in range(4): pk('mul', 44+2*i, 44+2*i, 56+2*i)
    unpack(56, [20, 21, 24, 25])
    rnd8(44, 36)
    for i in range(4): pk('add', 44+2*i, 44+2*i, 56+2*i)
    for i in range(4): A(f'v_cvt_pk_bf16_f32 v{40+i}, v{44+2*i}, v{45+2*i}')
    ashift(40)
    A.label('L_amov')
    A('s_waitcnt lgkmcnt(8)' if not stamps else 's_waitcnt lgkmcnt(0)')
    for ks in range(4):
        if ks == 3: A('s_waitcnt lgkmcnt(0)')
        for tl in range(4): mfma(20 + 4*tl, 40 + 4*ks, 64 + 16*tl + 4*ks, ks == 0)
    A('s_mov_b64 exec, 0xffff')
    for tl in range(4): A(f'ds_write_b128 v13, v[{20+4*tl}:{23+4*tl}] offset:{256*tl}')
    lds_signal(0)
    A('s_cmp_eq_u32 s4, 4', 's_cbranch_scc0 L_fin0')
    lds_wait(4, 4, 'L_w1')
    A('s_branch L_tailw')
    A.label('L_fin0')
    A('v_mov_b32 v50, s9', 'v_mov_b32 v51, s9', 'v_mov_b32 v41, s9')
    lds_wait(0, 5, 'L_w0')
    A('ds_read2st64_b32 v[42:43], v14 offset0:0 offset1:4', 'ds_read2st64_b32 v[44:45], v14 offset0:8 offset1:12', 'ds_read_b32 v46, v14 offset:4096')
    A('s_waitcnt lgkmcnt(0)')
    A('v_add_f32 v42, v42, v43', 'v_add_f32 v44, v44, v45', 'v_add_f32 v42, v42, v46', 'v_add_f32 v42, v42, v44')
    A('s_cmp_eq_u32 s60, 0', 's_cbranch_scc1 L_finq')
    pub4('v42', 48, 's43')
    A('s_branch L_fin1')
    A.label('L_finq')
    A(f'v_mov_b32_dpp v43, v42 row_shl:4 {DPPF} bound_ctrl:0', 'v_cvt_pk_bf16_f32 v40, v42, v43')
    A('s_mov_b32 exec_lo, 0x0f0f0f0f', 's_mov_b32 exec_hi, 0x0f0f0f0f')
    A('buffer_store_dwordx2 v[40:41], v15, s[44:47], s43 offen sc1')
    A.label('L_fin1')
    stamp(3)
    lds_signal(4)
    A('s_branch L_tailw')
    A.label('L_tailw0')
    A('s_waitcnt lgkmcnt(0)')
    tagcalc()
    A('s_cmp_eq_u32 s60, 2', 's_cbranch_scc0 L_twF2')
    A('v_lshrrev_b32 v8, 2, v0', 's_lshl_b32 s3, s4, 7', 'v_add_u32 v8, s3, v8', 'v_mul_u32_u24 v8, 3072, v8', 'v_lshl_add_u32 v8, v4, 4, v8')
    srd(48, 28, 640 * 3072)
    A('s_lshl_b32 s13, s61, 6', 's_mov_b32 m0, s62')
    dma_loop(8, 'v8', 49152, 'L_dma5')
    srd(48, 30, 640 * 3072)
    A('s_lshl_b32 s13, s61, 6')
    dma_loop(8, 'v8', 49152, 'L_dma6')
    A('s_branch L_tailw')
    A.label('L_twF2')
    A('s_cmp_eq_u32 s60, 3', 's_cbranch_scc0 L_tailw', 's_cmp_eq_u32 s4, 4', 's_cbranch_scc1 L_tailw')
    A('v_lshrrev_b32 v8, 1, v0', 'v_mul_u32_u24 v8, 1280, v8', 'v_and_b32 v12, 1, v0', 'v_lshl_add_u32 v8, v12, 4, v8')
    srd(48, 32, 1536 * 1280)
    A('s_mul_i32 s13, s4, 491520', 's_lshl_b32 s3, s61, 5', 's_add_u32 s13, s13, s3', 's_mov_b32 m0, s62')
    dma_loop(12, 'v8', 40960, 'L_dma4')
    A.label('L_tailw')
    A('s_setprio 0')
    srd(48, 24, 6144 * 1280)
    A('s_mul_i32 s13, s7, 245760', 's_mul_i32 s3, s8, 160', 's_add_u32 s13, s13, s3')
    A('s_mul_i32 s3, s4, 6144', f's_add_u32 m0, s3, {L_WO}', 's_mul_i32 s3, s4, 384', 'v_add_u32 v9, s3, v0')
    wo_addr = ['v_mul_u32_u24 v8, 6554, v9', 'v_lshrrev_b32 v8, 16, v8', 'v_mul_u32_u24 v8, 1120, v8', 'v_lshl_add_u32 v8, v9, 4, v8']
    A(*wo_addr)
    dma_loop(6, 'v8', None, 'L_dma3', ['v_add_u32 v9, 64, v9'] + wo_addr)
    stamp(4)
    A(f's_mov_b32 s58, {hex(LOG2E)}', 's_mov_b32 s56, 0', 's_mov_b32 s57, -1', 's_mov_b32 s12, 0')
    srd(52, 38, 5120)
    if fast:
        A('s_cmp_eq_u32 s4, 0', 's_cbranch_scc0 L_noxid')
        A('s_getreg_b32 s42, hwreg(HW_REG_XCC_ID)', 's_lshl_b32 s13, s7, 7', f's_add_u32 s13, s13, {WS_XID}', 's_lshl_b32 s3, s8, 3', 's_add_u32 s3, s3, s13')
        A('v_mov_b32 v36, s42', 'v_mov_b32 v37, s9', 'v_lshlrev_b32 v38, 3, v0', 's_mov_b64 exec, 1')
        A('buffer_store_dwordx2 v[36:37], v10, s[44:47], s3 offen sc1', 's_mov_b64 exec, 0xff')
        A.label('L_xid')
        A('buffer_load_dwordx2 v[40:41], v38, s[44:47], s13 offen sc1', 's_waitcnt vmcnt(0)')
        check_tags(['v41'], None, 'L_xid', 8)
        A('v_cmp_ne_u32 vcc, s42, v40', 's_mov_b64 exec, -1', 's_cmp_eq_u64 vcc, 0', 's_cselect_b32 s12, 1, 0')
        A('s_cmp_eq_u32 s95, 0', 's_cselect_b32 s12, 0, s12')
        A.label('L_noxid')
    A('s_mul_i32 s14, s7, 5120', f's_add_u32 s14, s14, {WS_REC}')
    A('s_mul_i32 s15, s8, 640', 's_add_u32 s15, s15, s14')
    A('s_lshl_b32 s3, s4, 10', "s_add_u32 s14, s14, s3")
    A('s_lshl_b32 s3, s4, 6', 'v_add_u32 v12, s3, v0', 'v_mul_u32_u24 v15, 1639, v12', 'v_lshrrev_b32 v15, 16, v15')
    A('v_mul_u32_u24 v16, 40, v15', 'v_sub_u32 v16, v12, v16', 'v_cmp_gt_u32 s[96:97], 33, v16')
    A('v_add_u32 v15, v15, v12', 'v_lshlrev_b32 v15, 4, v15', f'v_add_u32 v15, {L_RC}, v15')
    A('v_and_b32 v12, 7, v0', 'v_mul_u32_u24 v16, 656, v12', 'v_lshl_add_u32 v16, v6, 4, v16', f'v_add_u32 v16, {L_RC}, v16')
    A('v_and_b32 v17, 1, v6', 'v_lshl_add_u32 v17, v17, 2, v4', 'v_mul_u32_u24 v17, 656, v17', f'v_add_u32 v17, {L_RC + 512}, v17')
    A('v_lshrrev_b32 v19, 5, v0', 'v_lshlrev_b32 v18, 2, v19', 'v_xor_b32 v12, v12, v18', 'v_lshlrev_b32 v18, 10, v12', f'v_add_u32 v18, {L_REC}, v18')
    A('v_and_b32 v12, 31, v0', 'v_lshlrev_b32 v12, 4, v12', 'v_lshl_add_u32 v19, v19, 12, v12', f'v_add_u32 v19, {L_REC}, v19')
    A('v_mul_u32_u24 v12, 960, v6', 'v_lshl_add_u32 v12, v4, 3, v12', 's_lshl_b32 s3, s4, 5', f's_add_u32 s3, s3, {L_WO}', 'v_add_u32 v12, s3, v12')
    A('v_mul_u32_u24 v7, 160, v5', 'v_add_u32 v7, v7, v12', 'v_and_b32 v8, 1, v5', 'v_mul_u32_u24 v8, 160, v8', 'v_add_u32 v8, v8, v12', 'v_add_u32 v8, 640, v8')
    A('s_mul_i32 s43, s8, 5', 's_add_u32 s43, s43, s4', 's_lshl_b32 s43, s43, 5', 's_add_u32 s43, s43, s7', 's_lshl_b32 s43, s43, 9', f's_add_u32 s43, s43, {WS_Y}')
    A('s_cmp_eq_u32 s60, 2', 's_cselect_b32 s3, 6, 5', 's_add_u32 s13, s3, 3')
    A('v_lshlrev_b32 v9, s13, v6', 'v_lshlrev_b32 v20, s3, v5', 'v_add_u32 v9, v9, v20', 'v_lshl_add_u32 v9, v4, 3, v9', 'v_add_u32 v9, s62, v9')
    def wofrags():
        for kk in range(8): tr(64 + 4*kk, 'v7', 3840*kk, 3840*kk, 'v8')
    if prewo:
        A('s_waitcnt vmcnt(0)')
        lds_signal(8)
        lds_wait(8, 5, 'L_wow', slp=4)
        wofrags()
    A('v_mov_b32 v12, 0')
    A('s_cmp_eq_u32 s60, 2', 's_cbranch_scc0 L_preB')
    A(f's_add_u32 s3, s63, {WS_MOD + 3*10240}', f's_add_u32 s13, s63, {WS_MOD + 4*10240}')
    A.label('L_scpoll')
    A('buffer_load_dwordx4 v[36:39], v2, s[44:47], s13 offen sc1', 'buffer_load_dwordx4 v[40:43], v2, s[44:47], s13 offen offset:128 sc1')
    A('buffer_load_dwordx4 v[44:47], v2, s[44:47], s3 offen sc1', 'buffer_load_dwordx4 v[48:51], v2, s[44:47], s3 offen offset:128 sc1')
    A('s_waitcnt vmcnt(0)')
    check_tags(['v38', 'v42', 'v46', 'v50'], 'v52', 'L_scpoll', 8)
    unpack(20, [36, 37, 40, 41]); unpack(28, [44, 45, 48, 49]); plus1(20); rnd8(20, 36)
    A('v_lshlrev_b32 v11, 3, v4', 's_lshl_b32 s3, s4, 5', 'v_add_u32 v12, s3, v11')
    A('s_branch L_preD')
    A.label('L_preB')
    A('s_cmp_eq_u32 s60, 3', 's_cbranch_scc0 L_preD')
    A('s_lshl_b32 s13, s61, 8')
    A('s_cmp_eq_u32 s4, 4', 's_cbranch_scc1 L_preR')
    A(f's_add_u32 s13, s13, {WS_MOD + 5*10240}', 'v_mov_b32 v12, v3', 'v_lshrrev_b32 v21, 2, v0')
    A('s_branch L_preG0')
    A.label('L_preR')
    A('v_and_b32 v21, 15, v0', 'v_and_b32 v22, 1, v6', 'v_lshrrev_b32 v23, 1, v6', 'v_lshl_add_u32 v22, v22, 1, v23')
    vpub('v12', 'v21', 'v22', 'v23')
    A('v_lshl_add_u32 v11, v21, 2, v22', 'v_lshlrev_b32 v11, 2, v11')
    srd(48, 16, 5120)
    A('v_mul_u32_u24 v23, 1280, v22', 'v_lshl_add_u32 v23, v21, 1, v23', 's_lshl_b32 s3, s61, 5')
    A('buffer_load_ushort v20, v23, s[48:51], s3 offen')
    A(f's_add_u32 s13, s13, {WS_MOD + 2*10240}')
    A.label('L_preG0')
    A('v_and_b32 v23, -16, v12')
    A.label('L_preG')
    A('buffer_load_dwordx4 v[24:27], v23, s[44:47], s13 offen sc1')
    A('s_waitcnt vmcnt(0)')
    check_tags(['v26'], None, 'L_preG', 8)
    A('v_and_b32 v23, 2, v21', 'v_cmp_eq_u32 vcc, 0, v23', 'v_cndmask_b32 v24, v25, v24, vcc')
    A('v_and_b32 v21, 1, v21', 'v_lshlrev_b32 v21, 4, v21', 'v_sub_u32 v21, 16, v21', 'v_lshlrev_b32 v21, v21, v24', 'v_and_b32 v21, 0xffff0000, v21')
    A('v_lshlrev_b32 v20, 16, v20')
    A.label('L_preD')
    A('v_mov_b32 v43, s9')
    A('s_waitcnt vmcnt(0) lgkmcnt(0)')
    stamp(5)
    A('s_setprio 2')
    A('s_barrier')
    stamp(6)
    A('s_cmp_eq_u32 s4, 0', 's_cbranch_scc0 L_O')
    A('ds_read_b32 v36, v18 offset:524', 'ds_read_b32 v37, v18 offset:12')
    for i in range(4): A(f'ds_read_b128 v[{96+8*i}:{99+8*i}], v19 offset:{1024*i}', f'ds_read_b128 v[{100+8*i}:{103+8*i}], v19 offset:{1024*i+512}')
    A('s_waitcnt lgkmcnt(8)')
    A(f'v_max_f32_dpp v38, v36, v36 quad_perm:[1,0,3,2] {DPPF}', f'v_max_f32_dpp v38, v38, v38 quad_perm:[2,3,0,1] {DPPF}', f'v_max_f32_dpp v38, v38, v38 row_half_mirror {DPPF}')
    A('v_sub_f32 v36, v36, v38', 'v_mul_f32 v36, s58, v36', 'v_exp_f32 v36, v36', 'v_mul_f32 v37, v37, v36')
    lch = [f'v_add_f32_dpp v37, v37, v37 quad_perm:[1,0,3,2] {DPPF}', f'v_add_f32_dpp v37, v37, v37 quad_perm:[2,3,0,1] {DPPF}', f'v_add_f32_dpp v37, v37, v37 row_half_mirror {DPPF}', 'v_rcp_f32 v39, v37']
    for i in range(4):
        A(f's_waitcnt lgkmcnt({6 - 2*i})')
        for k in range(3):
            op = 'v_mul_f32_dpp' if i == 0 else 'v_fmac_f32_dpp'
            A(f'{op} v{56+2*k}, v36, v{96+8*i+k} row_newbcast:{i} {DPPF}', f'{op} v{57+2*k}, v36, v{100+8*i+k} row_newbcast:{i} {DPPF}')
        A(lch[i])
    A('v_permlane32_swap_b32 v58, v59', 'v_permlane32_swap_b32 v56, v60', 'v_permlane32_swap_b32 v57, v61')
    A('v_add_f32 v58, v58, v59', 'v_add_f32 v56, v56, v60', 'v_add_f32 v57, v57, v61')
    A('v_mul_f32 v58, v58, v39', 'v_mul_f32 v56, v56, v39', 'v_mul_f32 v57, v57, v39')
    A('v_mov_b32 v59, v58', 'v_cvt_pk_bf16_f32 v40, v56, v57', 'v_cvt_pk_bf16_f32 v42, v56, v57')
    A('v_permlane32_swap_b32 v58, v59', 'v_permlane32_swap_b32 v40, v42')
    A('v_cvt_pk_bf16_f32 v41, v58, v59')
    A('v_cndmask_b32 v40, v40, v38, s[56:57]', 'v_cndmask_b32 v41, v41, v37, s[56:57]')
    A('s_mov_b32 exec_hi, 1')
    if fast:
        A('s_cmp_eq_u32 s12, 1', 's_cbranch_scc0 L_slowrec')
        A('buffer_store_dwordx4 v[40:43], v1, s[44:47], s15 offen')
        A('s_branch L_recdone')
        A.label('L_slowrec')
    A('buffer_store_dwordx4 v[40:43], v1, s[44:47], s15 offen sc1')
    A.label('L_recdone')
    A('s_mov_b32 exec_hi, -1')
    A.label('L_O')
    stamp(7)
    if not prewo: wofrags()
    A('s_mov_b64 exec, s[96:97]')
    A.label('L_opoll')
    A('buffer_load_dwordx4 v[44:47], v1, s[44:47], s14 offen sc1')
    A('s_waitcnt vmcnt(0)')
    check_tags(['v47'], None, 'L_opoll', sleep)
    A('v_mov_b32 v47, 0')
    A('ds_write_b128 v15, v[44:47]')
    A('s_mov_b64 exec, -1')
    A('s_waitcnt lgkmcnt(0)')
    A('s_barrier')
    stamp(8)
    A('ds_read_b64 v[36:37], v17')
    for kk in range(8): A(f'ds_read_b128 v[{96+4*kk}:{99+4*kk}], v16 offset:{64*kk}')
    A('v_mov_b32 v46, s9', 'v_mov_b32 v47, s9')
    A('s_waitcnt lgkmcnt(8)')
    A(f'v_max_f32_dpp v38, v36, v36 quad_perm:[1,0,3,2] {DPPF}')
    for kk in range(8):
        A(f's_waitcnt lgkmcnt({7-kk})')
        mfma(40, 96 + 4*kk, 64 + 4*kk, kk == 0)
        if kk == 0: A('v_sub_f32 v36, v36, v38', 'v_mul_f32 v36, s58, v36')
        if kk == 1: A('v_exp_f32 v36, v36')
        if kk == 2: A('v_mul_f32 v36, v36, v37')
        if kk == 3: A(f'v_add_f32_dpp v37, v36, v36 quad_perm:[1,0,3,2] {DPPF}')
        if kk == 4: A('v_rcp_f32 v37, v37')
        if kk == 5: A('v_mul_f32 v36, v36, v37')
    A(f'v_mul_f32_dpp v44, v36, v40 quad_perm:[0,0,0,0] {DPPF}', f'v_mul_f32_dpp v45, v36, v42 quad_perm:[2,2,2,2] {DPPF}')
    A(f'v_fmac_f32_dpp v44, v36, v41 quad_perm:[1,1,1,1] {DPPF}', f'v_fmac_f32_dpp v45, v36, v43 quad_perm:[3,3,3,3] {DPPF}')
    A('s_mov_b32 exec_hi, 0')
    A('buffer_store_dwordx4 v[44:47], v1, s[44:47], s43 offen sc1')
    A('s_mov_b32 exec_hi, -1')
    stamp(9)
    A('s_cmp_eq_u32 s60, 3', 's_cbranch_scc1 L_B')
    A('s_cmp_eq_u32 s60, 2', 's_cbranch_scc0 L_tend')
    for a_ in range(4):
        for ks in range(4):
            o = 8192 * (a_ >> 1) + 2048 * ks + 32 * (a_ & 1)
            tr(64 + 16*a_ + 4*ks, 'v9', o, o + 256)
    A(f's_add_u32 s3, s63, {WS_X1}', 's_mov_b32 s13, 0x3f803f80')
    A.label('L_xpoll')
    A('buffer_load_dwordx4 v[48:51], v2, s[44:47], s3 offen sc1', 'buffer_load_dwordx4 v[52:55], v2, s[44:47], s3 offen offset:128 sc1')
    A('s_waitcnt vmcnt(0)')
    check_tags(['v50', 'v54'], 'v39', 'L_xpoll', xs)
    stamp(10)
    for i, r in enumerate([48, 49, 52, 53]):
        A(f'v_dot2_f32_bf16 v36, v{r}, s13, {"0" if i == 0 else "v36"}', f'v_dot2_f32_bf16 v37, v{r}, v{r}, {"0" if i == 0 else "v37"}')
    unpack(56, [48, 49])
    allreduce_b('v36', 'v37', 'v38')
    A('s_mov_b64 exec, 15', f'ds_write_b64 v12, v[36:37] offset:{L_ST}', 's_mov_b64 exec, -1')
    unpack(60, [52, 53])
    A('s_lshl_b32 s3, s61, 1', 's_add_u32 s3, s3, s4', 's_lshl_b32 s3, s3, 8', f's_add_u32 s3, s3, {WS_G}', f'v_mov_b32 v38, {hex(f2u(1e-5))}')
    A('s_waitcnt lgkmcnt(0)')
    A('s_barrier')
    A(f'ds_read2_b64 v[40:43], v11 offset0:{L_ST//8} offset1:{L_ST//8+4}', f'ds_read2_b64 v[44:47], v11 offset0:{L_ST//8+8} offset1:{L_ST//8+12}', f'ds_read_b64 v[36:37], v11 offset:{L_ST+128}')
    A('s_waitcnt lgkmcnt(0)')
    pk('add', 40, 40, 42); pk('add', 44, 44, 46); pk('add', 36, 36, 40); pk('add', 36, 36, 44)
    A(f'v_mul_f32 v36, {hex(f2u(1/640))}, v36', f'v_fmac_f32 v38, {hex(f2u(1/640))}, v37', 'v_fma_f32 v38, -v36, v36, v38')
    for i in range(2): pk('add', 56+2*i, 56+2*i, 36, 'op_sel_hi:[1,0] neg_lo:[0,1] neg_hi:[0,1]')
    A(f'v_max_f32 v38, {hex(f2u(1e-5))}, v38', 'v_rsq_f32 v38, v38')
    for i in range(2, 4): pk('add', 56+2*i, 56+2*i, 36, 'op_sel_hi:[1,0] neg_lo:[0,1] neg_hi:[0,1]')
    for i in range(4): pk('mul', 56+2*i, 56+2*i, 20+2*i)
    for i in range(4): A(f'v_pk_fma_f32 v[{56+2*i}:{57+2*i}], v[{56+2*i}:{57+2*i}], v[38:39], v[{28+2*i}:{29+2*i}] op_sel_hi:[1,0,1]')
    for i in range(4): A(f'v_cvt_pk_bf16_f32 v{40+i}, v{56+2*i}, v{57+2*i}')
    A('v_mov_b32 v58, s9', 'v_mov_b32 v59, s9')
    for ks in range(4):
        for a_ in range(4):
            mfma(20 + 4*a_, 40 + 4*ks, 64 + 16*a_ + 4*ks, ks == 0)
            if ks < 3 and a_ < 2:
                for i in (2*a_, 2*a_+1): A(f'v_mov_b32_dpp v{44+4*ks+i}, v{40+i} row_shl:{4*ks+4} {DPPF} bound_ctrl:0')
    A('s_mov_b64 exec, 0xffff')
    for a_ in range(4): A(f'ds_write_b128 v13, v[{20+4*a_}:{23+4*a_}] offset:{256*a_}')
    A('s_mov_b64 exec, -1')
    A('s_waitcnt lgkmcnt(0)')
    A('s_barrier')
    A('s_cmp_lt_u32 s4, 2', 's_cbranch_scc0 L_tend')
    for m in range(2):
        r = 40 + 6 * m
        A(f'ds_read2st64_b32 v[{r}:{r+1}], v14 offset0:{2*m} offset1:{4+2*m}', f'ds_read2st64_b32 v[{r+2}:{r+3}], v14 offset0:{8+2*m} offset1:{12+2*m}', f'ds_read_b32 v{r+4}, v14 offset:{4096+512*m}')
    k0 = -2.0 * 1.4426950408889634 * 0.7978845608028654
    A(f'v_mov_b32 v52, {hex(f2u(k0))}')
    A('s_waitcnt lgkmcnt(3)')
    A('v_add_f32 v40, v40, v41', 'v_add_f32 v42, v42, v43', 'v_add_f32 v40, v40, v44', 'v_add_f32 v40, v40, v42', 'v_mul_f32 v41, v40, v40')
    A('s_waitcnt lgkmcnt(0)')
    A('v_add_f32 v46, v46, v47', f'v_fmac_f32 v52, {hex(f2u(k0*0.044715))}, v41', 'v_add_f32 v48, v48, v49', 'v_mul_f32 v52, v52, v40', 'v_add_f32 v46, v46, v50')
    A('v_exp_f32 v52, v52', 'v_add_f32 v46, v46, v48', 'v_add_f32 v52, 1.0, v52', 'v_mul_f32 v40, v40, v46', 'v_rcp_f32 v52, v52', 'v_mul_f32 v40, v40, v52')
    pub4('v40', 56, 's3')
    stamp(11)
    A('s_branch L_tend')
    A.label('L_B')
    A('s_cmp_eq_u32 s4, 4', 's_cbranch_scc0 L_F2')
    A('s_lshl_b32 s13, s61, 8', f's_add_u32 s13, s13, {WS_X1}')
    A('v_mov_b32 v42, s9', 'v_mov_b32 v43, s9', 'v_lshlrev_b32 v36, 2, v0')
    A('s_barrier')
    stamp(10)
    A(f'ds_read2st64_b32 v[44:45], v36 offset0:{L_D//256} offset1:{L_D//256+1}', f'ds_read2st64_b32 v[46:47], v36 offset0:{L_D//256+2} offset1:{L_D//256+3}')
    A('s_waitcnt lgkmcnt(0)')
    pk('add', 44, 44, 46)
    A('v_add_f32 v44, v44, v45', 'v_fma_f32 v44, v44, v21, v20')
    A(f'v_mov_b32_dpp v46, v44 quad_perm:[1,1,3,3] {DPPF}', 'v_cvt_pk_bf16_f32 v40, v44, v46', f'v_mov_b32_dpp v41, v40 quad_perm:[2,2,2,2] {DPPF}')
    A('s_mov_b32 exec_lo, 0x11111111', 's_mov_b32 exec_hi, 0x11111111')
    A('buffer_store_dwordx4 v[40:43], v12, s[44:47], s13 offen sc1')
    A('s_mov_b64 exec, -1')
    rnd('v44', 'v44')
    A(f'ds_write_b32 v11, v44 offset:{L_X1}')
    stamp(11)
    A('s_waitcnt lgkmcnt(0)')
    A('s_barrier')
    A('s_branch L_tend')
    A.label('L_F2')
    for ks in range(12): tr(64 + 4*ks, 'v9', 1024*ks, 1024*ks + 128)
    A('s_lshl_b32 s3, s61, 2', 's_add_u32 s3, s3, s4', 's_lshl_b32 s3, s3, 12', f's_add_u32 s3, s3, {WS_Y}')
    A.label('L_ypoll')
    for i in range(4): A(f'buffer_load_dwordx4 v[{36+4*i}:{39+4*i}], v1, s[44:47], s3 offen offset:{1024*i} sc1')
    A('s_waitcnt vmcnt(0)')
    check_tags([f'v{38+4*i}' for i in range(4)], 'v39', 'L_ypoll', sleep)
    pk('add', 36, 36, 40); pk('add', 44, 44, 48); pk('add', 36, 36, 44)
    A('v_permlane32_swap_b32 v36, v37', 'v_add_f32 v36, v36, v37')
    A('ds_write_b32 v14, v36')
    A('s_waitcnt lgkmcnt(0)')
    A('s_barrier')
    A('s_mul_i32 s3, s4, 6144', f's_add_u32 s3, s3, {WS_G}', 's_add_u32 s13, s3, 4096', 's_lshl_b32 s42, s61, 5')
    A('v_lshlrev_b32 v22, 2, v0', 'v_lshrrev_b32 v23, 2, v0', 'v_lshlrev_b32 v23, 1, v23', 'v_mul_u32_u24 v24, 1280, v4', 'v_add_u32 v23, v23, v24')
    A.label('L_gpoll')
    for i in range(6):
        A(f'buffer_load_dwordx4 v[{36+4*i}:{39+4*i}], v2, s[44:47], {"s3" if i < 4 else "s13"} offen offset:{2048*((i//2)%2)+128*(i%2)} sc1')
    A('s_waitcnt vmcnt(0)')
    check_tags([f'v{38+4*i}' for i in range(6)], 'v60', 'L_gpoll', 0)
    stamp(10)
    for n in range(12):
        blk, ks = divmod(n, 4)
        for i in range(4):
            sr = 36 + 8 * blk + (i & 1) + 4 * (i >> 1)
            if ks == 0: A(f'v_mov_b32 v{112+i}, v{sr}')
            else: A(f'v_mov_b32_dpp v{112+4*ks+i}, v{sr} row_shl:{4*ks} {DPPF} bound_ctrl:0')
        if n: mfma(60, 112 + 4*((n-1) % 4), 64 + 4*(n-1), n == 1)
    mfma(60, 124, 108, False)
    A('s_mov_b64 exec, 0xffff')
    A('ds_write_b128 v13, v[60:63]')
    A('s_mov_b64 exec, -1')
    A('s_waitcnt lgkmcnt(0)')
    A('s_barrier')
    A('s_cmp_eq_u32 s4, 0', 's_cbranch_scc0 L_tend')
    A('ds_read2st64_b32 v[40:41], v14 offset0:0 offset1:4', 'ds_read2st64_b32 v[42:43], v14 offset0:8 offset1:12')
    A(f'ds_read_b32 v44, v22 offset:{L_X1}')
    A('s_waitcnt lgkmcnt(0)')
    pk('add', 40, 40, 42)
    A('v_add_f32 v40, v40, v41', 'v_fma_f32 v40, v40, v21, v44', 'v_cvt_pk_bf16_f32 v40, v40, v40')
    A('buffer_store_short v40, v23, s[52:55], s42 offen')
    stamp(11)
    A('s_cmp_eq_u32 s61, 0', 's_cbranch_scc0 L_tend')
    A('v_mov_b32 v41, s9', 's_mov_b64 exec, 1')
    A('buffer_store_dword v41, v10, s[44:47], 0 offen')
    A.label('L_tend')
    if stamps: A('s_memtime s[90:91]', 's_memrealtime s[92:93]')
    stamp_flush(15)
    A.label('L_end')
    A('s_endpgm')

    body = A.fix()
    hdr = open('adaLN_cond__gqa_block_cached__geglu_ffn__decode.s.ref').read().split('\n')
    hdr = [l for l in hdr if l.startswith(';') and '@launch' not in l and 'Override' not in l and 'grid=ceil' not in l]
    out = hdr + [f'; @launch grid=(256,1,1) block=(832,1,1) lds={LDS_SIZE}',
                 '.amdgcn_target "amdgcn-amd-amdhsa--gfx950"', '.text', f'.globl {KNAME}', '.p2align 8', f'.type {KNAME},@function', f'{KNAME}:']
    out += [('' if l.endswith(':') else '    ') + l for l in body]
    out += ['.section .rodata,"a"', '.p2align 6', f'.amdhsa_kernel {KNAME}',
            '  .amdhsa_next_free_vgpr 128', '  .amdhsa_next_free_sgpr 98', '  .amdhsa_accum_offset 128',
            '  .amdhsa_float_denorm_mode_32 3',
            '  .amdhsa_group_segment_fixed_size 0', '  .amdhsa_kernarg_size 112', '  .amdhsa_user_sgpr_count 2',
            '  .amdhsa_user_sgpr_kernarg_segment_ptr 1', '  .amdhsa_system_sgpr_workgroup_id_x 1', '.end_amdhsa_kernel']
    return '\n'.join(out) + '\n'

if __name__ == '__main__':
    kw = eval('dict(' + (sys.argv[2] if len(sys.argv) > 2 else '') + ')')
    open(sys.argv[1], 'w').write(gen(**kw))
```

```python
import struct, sys
from asmgen import Asm
KNAME = 'adaLN_cond__gqa_block_cached__geglu_ffn__decode_kernel'
def f2u(x): return struct.unpack('<I', struct.pack('<f', x))[0]
LOG2E = f2u(1.4426950408889634)
SCALE = f2u(192 ** -0.5)
DPPF = 'row_mask:0xf bank_mask:0xf'

WS_EP = 0
WS_XID = 0x110000
WS_X1 = 0xfa000
WS_G = 0x5000
WS_MOD = 0xb000
WS_Q = 0x1a000
WS_REC = 0x32000
WS_Y = 0x5a000
WS_STAMP = 0x180000
WS_SIZE = 0x200000
L_CNT = 0
L_FAST = 16
L_ST = 128
L_D = 512
L_RC = 5632
L_REC = 10880
L_WO = 19072
L_Q = 49792
L_W = 50176
LDS_SIZE = L_W + 81920
assert L_W % 128 == 0

def ngroups(D):
    out = []
    for i in range(256):
        x = i & 7; k = i >> 3; p = k >> 1
        d = 0 if p >= 11 else D[3] if p >= 9 else D[2] if x + 8 * p >= 60 else D[0] if p < 5 else D[1]
        out.append(128 + d if k & 1 else 128 - d)
    return out

def rwaves():
    ty, _ = roles(); out = []
    for i in range(256):
        k = i >> 3; p = k >> 1
        if ty[i] in (2, 3): continue
        r = (p - 9 if p < 11 else k - 20) if ty[i] == 0 else 12 + p
        if r < 20: out.append(i)
    return out

def roles():
    ty, crit = [], []
    for i in range(256):
        x = i & 7; k = i >> 3; p = k >> 1; sp = k & 1; m = x + 8 * p
        if p >= 11: t = 0
        elif sp == 0: t = 3 if p < 5 else 2
        elif p >= 9: t = 0
        else: t = 1 if m < 60 else 4
        ty.append(t); crit.append(t == 1 and m < 20)
    return ty, crit

def gen(H0=12, QP=2, D=(4, 4, 8, 2), fast=1, prewo=1, sleep=1, qsleep=4, xs=0, stamps=False, POL='nt', KP=None, VP=None, WP='nt', st0=0, OP='', ysleep=1):
    KP = POL if KP is None else KP; VP = POL if VP is None else VP
    A = Asm()
    def stamp(i):
        if stamps: A(f's_memrealtime s[{64+2*i}:{65+2*i}]')
    def stamp_flush(n):
        if not stamps: return
        A('s_waitcnt lgkmcnt(0)')
        A('s_lshl_b32 s60, s2, 4', 's_add_u32 s60, s60, s4', 's_lshl_b32 s60, s60, 6', f's_add_u32 s60, s60, {WS_STAMP}')
        A('v_mov_b32 v126, 0', 's_mov_b64 exec, 1')
        for i in range(n):
            A(f'v_mov_b32 v127, s{64+2*i}', f'buffer_store_dword v127, v126, s[44:47], s60 offen offset:{4*i}')
        A('s_waitcnt vmcnt(0)')
    def rnd(dst, src, tmp=None):
        t = tmp or dst
        A(f'v_cvt_pk_bf16_f32 {t}, {src}, {src}', f'v_lshlrev_b32 {dst}, 16, {t}')
    def srd(base, ptr, size, off=None):
        if off is None:
            A(f's_mov_b32 s{base}, s{ptr}', f's_mov_b32 s{base+1}, s{ptr+1}')
        else:
            A(f's_add_u32 s{base}, s{ptr}, {off}', f's_addc_u32 s{base+1}, s{ptr+1}, 0')
        A(f's_mov_b32 s{base+2}, {size}', f's_mov_b32 s{base+3}, 0x20000')
    def tagcalc():
        A('s_mul_i32 s9, s9, 0x9e3779b1', 's_add_u32 s9, s9, 0x7f4a7c15')
    def xidpub(name):
        if not fast: return
        A('s_cmp_eq_u32 s4, 0', f's_cbranch_scc0 {name}')
        A('s_getreg_b32 s3, hwreg(HW_REG_XCC_ID)', 'v_mov_b32 v24, s3', 'v_mov_b32 v25, s9', 's_lshl_b32 s3, s5, 5', 's_add_u32 s3, s3, s6', 's_lshl_b32 s3, s3, 7', f's_add_u32 s3, s3, {WS_XID}')
        A('s_mov_b64 exec, 1', 'buffer_store_dwordx2 v[24:25], v10, s[44:47], s3 offen sc1', 's_mov_b64 exec, -1')
        A.label(name)
    def check_tags(regs, acc, retry, slp):
        done = retry + '_ok'
        if len(regs) == 1:
            A(f'v_cmp_ne_u32 vcc, s9, {regs[0]}')
        else:
            A(f'v_xor_b32 {acc}, s9, {regs[0]}')
            for r in regs[1:]:
                A(f'v_bitop3_b32 {acc}, {acc}, {r}, s9 bitop3:0xf6')
            A(f'v_cmp_ne_u32 vcc, 0, {acc}')
        A(f's_cbranch_vccz {done}')
        if slp: A(f's_sleep {slp}')
        A('s_sub_u32 s95, s95, 1', f's_cbranch_scc0 {retry}', 's_mov_b32 s95, 0')
        A.label(done)
    def lds_signal(cnt):
        A('s_mov_b64 exec, 1', f'ds_add_u32 v10, v11 offset:{cnt}', 's_mov_b64 exec, -1')
    def lds_wait(cnt, target, name, vtmp='v12', vaddr='v10', stmp='s3', slp=0):
        A.label(name)
        if slp: A(f's_sleep {slp}')
        A(f'ds_read_b32 {vtmp}, {vaddr} offset:{cnt}', 's_waitcnt lgkmcnt(0)', f'v_readfirstlane_b32 {stmp}, {vtmp}', f's_cmp_ge_u32 {stmp}, {target}',
          f's_cbranch_scc1 {name}_x', 's_sub_u32 s95, s95, 1', f's_cbranch_scc0 {name}', 's_mov_b32 s95, 0')
        A.label(name + '_x')
    def dma_loop(n, voff, step, name, extra=(), pol=None):
        pol = WP if pol is None else pol
        A(f's_mov_b32 s3, {n}')
        A.label(name)
        A(f'buffer_load_dwordx4 {voff}, s[48:51], s13 offen {pol} lds')
        A(*extra)
        A('s_add_u32 m0, m0, 1024')
        if step: A(f's_add_u32 s13, s13, {step}')
        A('s_sub_u32 s3, s3, 1', 's_cmp_lg_u32 s3, 0', f's_cbranch_scc1 {name}')
    def allreduce_b(s1, s2, t):
        for r in (4, 8):
            A(f'v_add_f32_dpp {s1}, {s1}, {s1} row_ror:{r} {DPPF}', f'v_add_f32_dpp {s2}, {s2}, {s2} row_ror:{r} {DPPF}')
        A(f'v_permlane16_swap_b32 {s1}, {s2}', f'v_add_f32 {s1}, {s1}, {s2}')
        A(f'v_mov_b32 {t}, {s1}', f'v_permlane32_swap_b32 {s1}, {t}', f'v_add_f32 {s1}, {s1}, {t}')
        A(f'v_mov_b32 {s2}, {s1}', f'v_permlane16_swap_b32 {s1}, {s2}')
    def rnd8(e, t):
        for i in range(4): A(f'v_cvt_pk_bf16_f32 v{t+i}, v{e+2*i}, v{e+2*i+1}')
        for i in range(4): A(f'v_lshlrev_b32 v{e+2*i}, 16, v{t+i}', f'v_and_b32 v{e+2*i+1}, 0xffff0000, v{t+i}')
    def unpack(dst, srcs):
        for i, s_ in enumerate(srcs): A(f'v_lshlrev_b32 v{dst+2*i}, 16, v{s_}', f'v_and_b32 v{dst+2*i+1}, 0xffff0000, v{s_}')
    def pk(op, d, a, b, mod=''):
        A(f'v_pk_{op}_f32 v[{d}:{d+1}], v[{a}:{a+1}], v[{b}:{b+1}] {mod}')
    def plus1(e):
        for i in range(4): A(f'v_pk_add_f32 v[{e+2*i}:{e+1+2*i}], v[{e+2*i}:{e+1+2*i}], 1.0 op_sel_hi:[1,0]')
    def ashift(a0):
        for ks in range(1, 4):
            for i in range(4): A(f'v_mov_b32_dpp v{a0+4*ks+i}, v{a0+i} row_shl:{4*ks} {DPPF} bound_ctrl:0')
    def vpub(dst, c, b, tmp):
        A(f'v_bfe_u32 {tmp}, {c}, 2, 1', f'v_lshlrev_b32 {dst}, 7, {tmp}', f'v_lshrrev_b32 {tmp}, 3, {c}', f'v_lshl_add_u32 {dst}, {tmp}, 6, {dst}',
          f'v_bfe_u32 {tmp}, {c}, 1, 1', f'v_lshl_add_u32 {dst}, {tmp}, 2, {dst}', f'v_lshl_add_u32 {dst}, {b}, 4, {dst}')
    def pub4(val, g, soff):
        A(f'v_mov_b32_dpp v{g+1}, {val} row_shl:4 {DPPF} bound_ctrl:0', f'v_cvt_pk_bf16_f32 v{g}, {val}, v{g+1}', f'v_mov_b32_dpp v{g+1}, v{g} row_shl:8 {DPPF} bound_ctrl:0')
        A('s_mov_b32 exec_lo, 0x000f000f', 's_mov_b32 exec_hi, 0x000f000f')
        A(f'buffer_store_dwordx4 v[{g}:{g+3}], v3, s[44:47], {soff} offen sc1')
    def mfma(d, a, b, first):
        A(f'v_mfma_f32_16x16x32_bf16 v[{d}:{d+3}], v[{a}:{a+3}], v[{b}:{b+3}], {"0" if first else f"v[{d}:{d+3}]"}')
    def tr(r, addr, o0, o1, addr1=None):
        A(f'ds_read_b64_tr_b16 v[{r}:{r+1}], {addr} offset:{o0}', f'ds_read_b64_tr_b16 v[{r+2}:{r+3}], {addr1 or addr} offset:{o1}')

    A('s_cmp_ge_u32 s2, 256', 's_cbranch_scc1 L_end')
    stamp(0)
    if stamps: A('s_memtime s[88:89]')
    A('s_load_dwordx16 s[16:31], s[0:1], 0', 's_load_dwordx8 s[32:39], s[0:1], 64', 's_load_dwordx2 s[40:41], s[0:1], 104')
    A('v_lshrrev_b32 v1, 6, v0', 'v_and_b32 v0, 63, v0', 'v_readfirstlane_b32 s4, v1            ; wave')
    A('s_and_b32 s5, s2, 7', 's_lshr_b32 s6, s2, 3', 's_lshr_b32 s3, s6, 3', 's_lshl_b32 s7, s5, 2', 's_add_u32 s7, s7, s3                 ; head', 's_and_b32 s8, s6, 7')
    A('s_mov_b32 s95, 0x80000')
    A('s_lshr_b32 s3, s6, 1', 's_and_b32 s13, s6, 1')
    A('s_mov_b32 s60, 0', 's_sub_u32 s61, s6, 20', 's_mov_b32 s63, 0')
    A('s_cmp_ge_u32 s3, 11', 's_cbranch_scc1 L_roled')
    A('s_lshl_b32 s14, s3, 3', 's_add_u32 s14, s14, s5')
    A('s_cmp_lt_u32 s3, 5', f's_cselect_b32 s63, {D[0]}, {D[1]}', 's_cmp_ge_u32 s14, 60', f's_cselect_b32 s63, {D[2]}, s63', 's_cmp_ge_u32 s3, 9', f's_cselect_b32 s63, {D[3]}, s63')
    A('s_cmp_eq_u32 s13, 0', 's_cbranch_scc1 L_role0')
    A('s_sub_u32 s61, s3, 9', 's_cmp_ge_u32 s3, 9', 's_cbranch_scc1 L_roled')
    A('s_mov_b32 s61, s14', 's_cmp_lt_u32 s14, 60', 's_cselect_b32 s60, 1, 4', 's_branch L_roled')
    A.label('L_role0')
    A('s_cmp_lt_u32 s3, 5', 's_cselect_b32 s60, 3, 2', 's_cselect_b32 s14, 5, 6', 's_cselect_b32 s15, 0, 5', 's_mul_i32 s61, s5, s14', 's_add_u32 s61, s61, s3', 's_sub_u32 s61, s61, s15')
    A.label('L_roled')
    A('s_cmp_lt_u32 s4, 5', 's_cbranch_scc1 L_service')

    q = ['v4', 'v5', 'v6']
    acc = [f'v{8+i}' for i in range(6)]
    vM, vL = 'v14', 'v15'
    def ld(kind, j):
        r, s = (32 + 4 * j, 48) if kind == 'K' else (64 + 4 * j, 52)
        vo, off = ('v1', j * 768) if j < 5 else ('v2', (j - 5) * 768)
        A(f'buffer_load_dwordx3 v[{r}:{r+2}], {vo}, s[{s}:{s+3}], s10 offen offset:{off} {KP if kind == "K" else VP}')
    def goff(t):
        A(f's_and_b32 s10, {t}, -8', f's_add_u32 s10, s10, {t}', 's_add_u32 s10, s10, s86')
        A(f's_mul_i32 s3, {t}, s94', 's_add_u32 s3, s3, s87', f's_cmp_lt_u32 {t}, 112', 's_cselect_b32 s10, s10, s3', 's_mul_i32 s10, s10, 6144')
    A('v_mul_u32_u24 v1, 12, v0', 'v_add_u32 v2, 3840, v1')
    A('s_lshr_b32 s3, s8, 1', 's_lshl_b32 s3, s3, 5', 's_add_u32 s3, s3, s7', 's_mul_i32 s12, s3, 1572864')
    A('s_lshl_b32 s86, s13, 3', 's_mul_i32 s87, s13, 255', 's_add_u32 s87, s87, 112', 's_cmp_eq_u32 s13, 0', 's_cselect_b32 s94, 1, -1')
    A('s_mul_i32 s63, s63, s94', 's_sub_u32 s63, 128, s63')
    A('s_sub_u32 s11, s4, 5')
    goff('s11')
    A('s_cmp_lt_u32 s61, 20', 's_cselect_b32 s15, 2, 0', 's_cmp_eq_u32 s60, 1', 's_cselect_b32 s15, s15, 0', 's_cmp_eq_u32 s60, 0', 's_cselect_b32 s15, 1, s15')
    A('v_mov_b32 v29, 0', 'v_mov_b32 v30, 1')
    A('s_waitcnt lgkmcnt(0)')
    if st0: stamp(3)
    srd(48, 18, 1572864, 's12'); srd(52, 20, 1572864, 's12')
    A('s_load_dword s9, s[40:41], 0')
    A('s_cmp_eq_u32 s15, 0', 's_cbranch_scc1 L_hold2_x')
    A('s_barrier')
    A('s_cmp_eq_u32 s15, 2', 's_cbranch_scc0 L_hold2_x')
    lds_wait(4, 4, 'L_hold2', 'v16', 'v29', 's14', 2)
    order = [('K', j) for j in range(8)] + [('V', j) for j in range(8)]
    for n, o in enumerate(order):
        if n == H0:
            A('s_cmp_eq_u32 s15, 1', 's_cbranch_scc0 L_hold1_x')
            lds_wait(4, 4, 'L_hold1', 'v16', 'v29', 's14', 2)
        if QP and QP <= n < H0:
            A('s_cmp_eq_u32 s15, 1', f's_cbranch_scc0 L_qp{n}', f's_waitcnt vmcnt({QP - 1})')
            A('ds_read_b32 v16, v29 offset:4', 's_waitcnt lgkmcnt(0)', 'v_readfirstlane_b32 s14, v16', 's_cmp_ge_u32 s14, 4', 's_cselect_b32 s15, 3, 1')
            A.label(f'L_qp{n}')
        ld(*o)
        if st0 and n == 0: A('s_waitcnt vmcnt(0)'); stamp(4)
    A('s_cmp_eq_u32 s15, 0', 's_cbranch_scc0 L_nobar')
    A('s_barrier')
    A.label('L_nobar')
    if stamps: srd(44, 40, WS_SIZE)
    A('s_mul_i32 s14, s7, 3072', 's_lshr_b32 s3, s8, 1', 's_lshl_b32 s3, s3, 6', 's_add_u32 s14, s14, s3', f's_add_u32 s14, s14, {WS_Q}')
    A('s_lshl_b32 s3, s11, 9', 's_add_u32 s14, s14, s3', 's_add_u32 s84, s40, s14', 's_addc_u32 s85, s41, 0')
    A('v_and_b32 v3, 31, v0', 'v_mul_u32_u24 v3, 12, v3', 's_lshl_b32 s3, s11, 6', 'v_lshlrev_b32 v31, 2, v0', 'v_add_u32 v31, s3, v31')
    A('s_lshl_b32 s3, s11, 10', f's_add_u32 s3, s3, {L_REC}', 'v_lshlrev_b32 v7, 4, v0', 'v_add_u32 v7, s3, v7')
    A('s_mov_b32 s56, 0xcccccccc', 's_mov_b32 s57, 0xcccccccc', f's_mov_b32 s58, {hex(LOG2E)}', f's_mov_b32 s59, {hex(SCALE)}', 's_mov_b32 s43, 1572864')
    for a in acc: A(f'v_mov_b32 {a}, 0')
    A(f'v_mov_b32 {vM}, 0xff7fffff', f'v_mov_b32 {vL}, 0')
    A('s_waitcnt lgkmcnt(0)')
    tagcalc()
    stamp(1)
    A('s_cmp_lt_u32 s11, 6', 's_cbranch_scc0 L_qw')
    A('s_branch L_qpoll')
    A.label('L_qretry')
    A(f's_sleep {qsleep}', 's_sub_u32 s95, s95, 1', 's_cbranch_scc0 L_qpoll', 's_mov_b32 s95, 0', 's_branch L_qgot')
    A.label('L_qpoll')
    A('s_load_dwordx16 s[16:31], s[84:85], 0 glc', 's_load_dwordx8 s[32:39], s[84:85], 256 glc', 's_load_dwordx8 s[76:83], s[84:85], 288 glc', 's_waitcnt lgkmcnt(0)')
    sq = list(range(16, 40, 2)) + list(range(76, 84, 2))
    for r in sq: A(f's_cmp_eq_u32 s{r+1}, s9', 's_cbranch_scc0 L_qretry')
    A.label('L_qgot')
    for i, r in enumerate(sq): A(f'v_writelane_b32 v16, s{r}, {i}')
    A('s_mov_b64 exec, 0xffff', f'ds_write_b32 v31, v16 offset:{L_Q}', 's_mov_b64 exec, 1', 'ds_add_u32 v29, v30 offset:12', 's_mov_b64 exec, -1')
    lds_wait(12, 6, 'L_qw', 'v16', 'v29', 's14', 1)
    stamp(2)
    for i in range(3): A(f'ds_read_b32 {q[i]}, v3 offset:{L_Q + 4*i}')
    A('s_waitcnt lgkmcnt(0)')
    A.label('L_loop')
    A('s_add_u32 s11, s11, 8')
    goff('s11')
    A('s_cmp_ge_u32 s11, s63', 's_cselect_b32 s50, 0, s43', 's_cselect_b32 s54, 0, s43')
    T = lambda j: f'v{35+4*j}'
    for j in range(8):
        A('s_waitcnt vmcnt(15)')
        for i in range(3): A(f'v_dot2_f32_bf16 {T(j)}, v{32+4*j+i}, {q[i]}, {T(j) if i else "0"}')
        ld('K', j)
    for i in range(4): A(f'v_add_f32_dpp v{16+i}, {T(i)}, {T(i)} row_ror:8 row_mask:0xf bank_mask:0x3')
    for i in range(4): A(f'v_add_f32_dpp v{16+i}, {T(i+4)}, {T(i+4)} row_ror:8 row_mask:0xf bank_mask:0xc')
    for i in range(2): A(f'v_add_f32_dpp v{20+i}, v{16+i}, v{16+i} row_half_mirror row_mask:0xf bank_mask:0x5')
    for i in range(2): A(f'v_add_f32_dpp v{20+i}, v{18+i}, v{18+i} row_half_mirror row_mask:0xf bank_mask:0xa')
    A(f'v_add_f32_dpp v22, v20, v20 quad_perm:[2,3,0,1] {DPPF}', f'v_add_f32_dpp v23, v21, v21 quad_perm:[2,3,0,1] {DPPF}')
    A('v_cndmask_b32 v22, v22, v23, s[56:57]')
    A(f'v_add_f32_dpp v22, v22, v22 quad_perm:[1,0,3,2] {DPPF}')
    A('v_mov_b32 v23, v22', 'v_permlane16_swap_b32 v22, v23', 'v_add_f32 v22, v22, v23')
    rnd('v22', 'v22'); A('v_mul_f32 v22, s59, v22'); rnd('v22', 'v22')
    A(f'v_max_f32_dpp v23, v22, v22 quad_perm:[2,3,0,1] {DPPF}', f'v_max_f32_dpp v23, v23, v23 row_half_mirror {DPPF}', f'v_max_f32_dpp v23, v23, v23 row_ror:8 {DPPF}')
    A('v_mov_b32 v25, v23', 'v_permlane32_swap_b32 v23, v25', f'v_max3_f32 v23, v23, v25, {vM}')
    A(f'v_sub_f32 v24, {vM}, v23', 'v_sub_f32 v22, v22, v23', f'v_mov_b32 {vM}, v23')
    A('v_mul_f32 v24, s58, v24', 'v_mul_f32 v22, s58, v22', 'v_exp_f32 v24, v24', 'v_exp_f32 v22, v22')
    for i in range(3): pk('mul', 8+2*i, 8+2*i, 24, 'op_sel_hi:[1,0]')
    A('v_cvt_pk_bf16_f32 v26, v22, 0', 'v_cvt_pk_bf16_f32 v27, 0, v22')
    A(f'v_add_f32_dpp v22, v22, v22 quad_perm:[2,3,0,1] {DPPF}', f'v_mul_f32 {vL}, {vL}, v24', f'v_add_f32_dpp v22, v22, v22 row_half_mirror {DPPF}')
    A(f'v_add_f32_dpp v22, v22, v22 row_ror:8 {DPPF}', f'v_mul_f32 v31, 0.5, {vM}', f'v_add_f32 {vL}, {vL}, v22')
    for j in range(8):
        A('s_waitcnt vmcnt(15)')
        for i in range(3):
            A(f'v_dot2c_f32_bf16_dpp {acc[2*i]}, v26, v{64+4*j+i} row_newbcast:{2*j} {DPPF}')
            A(f'v_dot2c_f32_bf16_dpp {acc[2*i+1]}, v27, v{64+4*j+i} row_newbcast:{2*j} {DPPF}')
        ld('V', j)
    A('s_cmp_lt_u32 s11, s63', 's_cbranch_scc1 L_loop')
    if not st0: stamp(3)
    A(f'v_permlane32_swap_b32 {vL}, v31')
    for i in range(3): A(f'v_permlane32_swap_b32 {acc[2*i]}, {acc[2*i+1]}')
    A(f'v_add_f32 v23, {vL}, v31')
    for i in range(3): A(f'v_add_f32 v{20+i}, {acc[2*i]}, {acc[2*i+1]}')
    A('ds_write_b128 v7, v[20:23]')
    A('s_waitcnt lgkmcnt(0)', 's_barrier')
    if not st0: stamp(4)
    stamp_flush(5)
    A('s_endpgm')

    A.label('L_service')
    A('s_setprio 2')
    A('v_and_b32 v4, 3, v0', 'v_bfe_u32 v5, v0, 2, 2', 'v_lshrrev_b32 v6, 4, v0', 'v_mov_b32 v15, 0')
    A('v_mov_b32 v10, 0', 'v_mov_b32 v11, 1', 'v_lshlrev_b32 v1, 4, v0')
    A('s_cmp_eq_u32 s4, 0', 's_cbranch_scc0 L_nozero')
    for o in (0, 4, 8, 12): A(f'ds_write_b32 v10, v10 offset:{o}')
    A.label('L_nozero')
    A('s_lshl_b32 s62, s4, 14', f's_add_u32 s62, s62, {L_W}')
    A('s_waitcnt lgkmcnt(0)')
    A('s_load_dword s9, s[40:41], 0')
    A('s_lshr_b32 s3, s6, 1', 's_add_u32 s3, s3, 12', 's_cmp_eq_u32 s60, 0', 's_cselect_b32 s3, s61, s3', 's_lshl_b32 s59, s3, 1', 's_add_u32 s59, s59, s4', 's_sub_u32 s59, s59, 1')
    A('s_cmp_lt_u32 s3, 20', 's_cselect_b32 s59, s59, -1', 's_and_b32 s3, s60, 6', 's_cmp_eq_u32 s3, 2', 's_cselect_b32 s59, -1, s59', 's_sub_u32 s3, s4, 1', 's_cmp_lt_u32 s3, 2', 's_cselect_b32 s59, s59, -1')
    A('s_cmp_gt_u32 s60, 1', 's_cbranch_scc1 L_nojob')
    A('v_mul_u32_u24 v7, 1280, v4', 'v_lshl_add_u32 v7, v5, 6, v7', 'v_lshl_add_u32 v7, v6, 4, v7', 's_lshl_b32 s3, s4, 8')
    A('s_cmp_eq_u32 s60, 0', 's_cbranch_scc0 L_modjob')
    srd(52, 16, 5120)
    for t in range(5): A(f'buffer_load_dwordx4 v[{64+4*t}:{67+4*t}], v7, s[52:55], 0 offen offset:{256*t}')
    A('buffer_load_dwordx4 v[36:39], v7, s[52:55], s3 offen')
    srd(48, 22, 640 * 12288)
    A('s_mov_b32 s42, 12288', 's_mul_i32 s13, s5, 12', 's_add_u32 s61, s61, s13', 's_lshl_b32 s13, s61, 7')
    A('s_branch L_dojob')
    A.label('L_modjob')
    srd(52, 34, 5120)
    A('buffer_load_dwordx4 v[36:39], v7, s[52:55], s3 offen')
    srd(48, 36, 640 * 7680)
    A('s_mov_b32 s42, 7680', 's_lshl_b32 s13, s61, 7')
    A.label('L_dojob')
    A('v_lshrrev_b32 v8, 3, v0', 's_lshl_b32 s3, s4, 7', 'v_add_u32 v8, s3, v8', 'v_mul_lo_u32 v8, v8, s42')
    A('v_and_b32 v9, 7, v0', 'v_lshlrev_b32 v9, 4, v9', 'v_and_b32 v12, 1, v6', 'v_lshlrev_b32 v12, 5, v12', 'v_xor_b32 v9, v9, v12', 'v_add_u32 v8, v8, v9')
    A('s_lshl_b32 s42, s42, 3', 's_mov_b32 m0, s62')
    dma_loop(16, 'v8', 's42', 'L_dma0', ['v_xor_b32 v8, 64, v8'], POL)
    A.label('L_nojob')
    A('s_barrier')
    srd(44, 40, WS_SIZE)
    A('v_lshrrev_b32 v2, 2, v0')
    vpub('v3', 'v2', 'v4', 'v12')
    A('v_lshrrev_b32 v12, 1, v6', 'v_lshlrev_b32 v2, 8, v12', 'v_lshl_add_u32 v2, v5, 9, v2', 'v_and_b32 v12, 1, v6', 'v_lshl_add_u32 v2, v12, 6, v2', 'v_lshl_add_u32 v2, v4, 4, v2')
    A('s_lshl_b32 s63, s4, 11')
    A('s_lshl_b32 s3, s4, 10', f's_add_u32 s3, s3, {L_D}', 'v_add_u32 v13, s3, v1')
    A('s_lshl_b32 s3, s4, 8', f's_add_u32 s3, s3, {L_D}', 'v_lshlrev_b32 v14, 2, v0', 'v_add_u32 v14, s3, v14')
    A('s_cmp_gt_u32 s60, 1', 's_cbranch_scc1 L_tailw0')
    A('v_lshlrev_b32 v9, 10, v6', 'v_lshl_add_u32 v9, v5, 7, v9', 'v_lshl_add_u32 v9, v4, 3, v9')
    A('v_lshrrev_b32 v12, 1, v5', 'v_lshl_add_u32 v9, v12, 5, v9', 'v_and_b32 v12, 1, v6', 'v_lshl_add_u32 v9, v12, 6, v9', 'v_add_u32 v9, s62, v9')
    A('s_lshl_b32 s43, s61, 2', 's_add_u32 s43, s43, s4', 's_lshl_b32 s43, s43, 8')
    A('s_waitcnt vmcnt(16)')
    unpack(56, [36, 37, 38, 39])
    A('s_cmp_eq_u32 s60, 0', 's_cbranch_scc0 L_silu')
    A('s_mov_b32 s3, 0x3f803f80')
    for i in range(20):
        A(f'v_dot2_f32_bf16 v36, v{64+i}, s3, {"0" if i == 0 else "v36"}', f'v_dot2_f32_bf16 v37, v{64+i}, v{64+i}, {"0" if i == 0 else "v37"}')
    allreduce_b('v36', 'v37', 'v38')
    A(f'v_mul_f32 v36, {hex(f2u(1/640))}, v36', f'v_mul_f32 v37, {hex(f2u(1/640))}, v37', 'v_fma_f32 v37, -v36, v36, v37', 'v_max_f32 v37, 0, v37')
    A('v_cvt_pk_bf16_f32 v38, v36, v37', 'v_and_b32 v37, 0xffff0000, v38', 'v_lshlrev_b32 v36, 16, v38')
    A(f'v_add_f32 v37, {hex(f2u(1e-5))}, v37'); rnd('v37', 'v37'); A('v_sqrt_f32 v37, v37'); rnd('v37', 'v37'); A('v_rcp_f32 v37, v37')
    for i in range(4): pk('add', 56+2*i, 56+2*i, 36, 'op_sel_hi:[1,0] neg_lo:[0,1] neg_hi:[0,1]')
    rnd8(56, 40)
    for i in range(4): pk('mul', 56+2*i, 56+2*i, 36, 'op_sel:[0,1] op_sel_hi:[1,1]')
    rnd8(56, 40)
    A('v_lshlrev_b32 v15, 6, v4', 'v_lshrrev_b32 v12, 3, v0', 'v_lshl_add_u32 v15, v12, 3, v15', f's_add_u32 s43, s43, {WS_Q}')
    A('s_branch L_btr')
    A.label('L_silu')
    for i in range(8): A(f'v_mul_f32 v{44+i}, {hex(LOG2E ^ 0x80000000)}, v{56+i}')
    for i in range(8): A(f'v_exp_f32 v{44+i}, v{44+i}')
    plus1(44)
    for i in range(8): A(f'v_rcp_f32 v{44+i}, v{44+i}')
    for i in range(4): pk('mul', 56+2*i, 56+2*i, 44+2*i)
    for i in range(4): A(f'v_cvt_pk_bf16_f32 v{40+i}, v{56+2*i}, v{57+2*i}')
    ashift(40)
    A(f's_add_u32 s43, s43, {WS_MOD}')
    A.label('L_btr')
    A('v_xor_b32 v16, 32, v9', 'v_xor_b32 v17, 64, v9', 'v_xor_b32 v18, 0x60, v9')
    A('s_waitcnt lgkmcnt(0)')
    tagcalc()
    for ks in range(4):
        A(f's_waitcnt vmcnt({12-4*ks})')
        for tl in range(4): tr(64 + 16*tl + 4*ks, ['v9', 'v16', 'v17', 'v18'][tl], 4096*ks, 4096*ks + 512)
    stamp(1)
    A('s_cmp_eq_u32 s60, 0', 's_cbranch_scc0 L_amov')
    A(f's_add_u32 s3, s63, {WS_MOD}', f's_add_u32 s13, s63, {WS_MOD + 10240}')
    A.label('L_hpoll')
    A('buffer_load_dwordx4 v[28:31], v2, s[44:47], s13 offen sc1', 'buffer_load_dwordx4 v[32:35], v2, s[44:47], s13 offen offset:128 sc1')
    A('buffer_load_dwordx4 v[20:23], v2, s[44:47], s3 offen sc1', 'buffer_load_dwordx4 v[24:27], v2, s[44:47], s3 offen offset:128 sc1')
    A('s_waitcnt vmcnt(0)')
    check_tags(['v22', 'v26', 'v30', 'v34'], 'v36', 'L_hpoll', 1)
    stamp(2)
    unpack(44, [28, 29, 32, 33]); plus1(44); rnd8(44, 36)
    for i in range(4): pk('mul', 44+2*i, 44+2*i, 56+2*i)
    unpack(56, [20, 21, 24, 25])
    rnd8(44, 36)
    for i in range(4): pk('add', 44+2*i, 44+2*i, 56+2*i)
    for i in range(4): A(f'v_cvt_pk_bf16_f32 v{40+i}, v{44+2*i}, v{45+2*i}')
    ashift(40)
    A.label('L_amov')
    A('s_waitcnt lgkmcnt(8)' if not stamps else 's_waitcnt lgkmcnt(0)')
    for ks in range(4):
        if ks == 3: A('s_waitcnt lgkmcnt(0)')
        for tl in range(4): mfma(20 + 4*tl, 40 + 4*ks, 64 + 16*tl + 4*ks, ks == 0)
    A('s_mov_b64 exec, 0xffff')
    for tl in range(4): A(f'ds_write_b128 v13, v[{20+4*tl}:{23+4*tl}] offset:{256*tl}')
    lds_signal(0)
    A('s_cmp_eq_u32 s4, 4', 's_cbranch_scc0 L_fin0')
    lds_wait(4, 4, 'L_w1')
    A('s_branch L_tailw')
    A.label('L_fin0')
    A('v_mov_b32 v50, s9', 'v_mov_b32 v51, s9', 'v_mov_b32 v41, s9')
    lds_wait(0, 5, 'L_w0')
    A('ds_read2st64_b32 v[42:43], v14 offset0:0 offset1:4', 'ds_read2st64_b32 v[44:45], v14 offset0:8 offset1:12', 'ds_read_b32 v46, v14 offset:4096')
    A('s_waitcnt lgkmcnt(0)')
    A('v_add_f32 v42, v42, v43', 'v_add_f32 v44, v44, v45', 'v_add_f32 v42, v42, v46', 'v_add_f32 v42, v42, v44')
    A('s_cmp_eq_u32 s60, 0', 's_cbranch_scc1 L_finq')
    pub4('v42', 48, 's43')
    A('s_branch L_fin1')
    A.label('L_finq')
    A(f'v_mov_b32_dpp v43, v42 row_shl:4 {DPPF} bound_ctrl:0', 'v_cvt_pk_bf16_f32 v40, v42, v43')
    A('s_mov_b32 exec_lo, 0x0f0f0f0f', 's_mov_b32 exec_hi, 0x0f0f0f0f')
    A('buffer_store_dwordx2 v[40:41], v15, s[44:47], s43 offen sc1')
    A.label('L_fin1')
    stamp(3)
    lds_signal(4)
    A('s_branch L_tailw')
    A.label('L_tailw0')
    A('s_waitcnt lgkmcnt(0)')
    tagcalc()
    A('s_cmp_eq_u32 s60, 2', 's_cbranch_scc0 L_twF2')
    A('v_lshrrev_b32 v8, 2, v0', 's_lshl_b32 s3, s4, 7', 'v_add_u32 v8, s3, v8', 'v_mul_u32_u24 v8, 3072, v8', 'v_lshl_add_u32 v8, v4, 4, v8')
    srd(48, 28, 640 * 3072)
    A('s_lshl_b32 s13, s61, 6', 's_mov_b32 m0, s62')
    dma_loop(8, 'v8', 49152, 'L_dma5')
    srd(48, 30, 640 * 3072)
    A('s_lshl_b32 s13, s61, 6')
    dma_loop(8, 'v8', 49152, 'L_dma6')
    A('s_branch L_tailw')
    A.label('L_twF2')
    A('s_cmp_eq_u32 s60, 3', 's_cbranch_scc0 L_tailw', 's_cmp_eq_u32 s4, 4', 's_cbranch_scc1 L_tailw')
    A('v_lshrrev_b32 v8, 1, v0', 'v_mul_u32_u24 v8, 1280, v8', 'v_and_b32 v12, 1, v0', 'v_lshl_add_u32 v8, v12, 4, v8')
    srd(48, 32, 1536 * 1280)
    A('s_mul_i32 s13, s4, 491520', 's_lshl_b32 s3, s61, 5', 's_add_u32 s13, s13, s3', 's_mov_b32 m0, s62')
    dma_loop(12, 'v8', 40960, 'L_dma4')
    A.label('L_tailw')
    A('s_setprio 0')
    xidpub('L_xp')
    srd(48, 24, 6144 * 1280)
    A('s_mul_i32 s13, s7, 245760', 's_mul_i32 s3, s8, 160', 's_add_u32 s13, s13, s3')
    A('s_mul_i32 s3, s4, 6144', f's_add_u32 m0, s3, {L_WO}', 's_mul_i32 s3, s4, 384', 'v_add_u32 v9, s3, v0')
    wo_addr = ['v_mul_u32_u24 v8, 6554, v9', 'v_lshrrev_b32 v8, 16, v8', 'v_mul_u32_u24 v8, 1120, v8', 'v_lshl_add_u32 v8, v9, 4, v8']
    A(*wo_addr)
    dma_loop(6, 'v8', None, 'L_dma3', ['v_add_u32 v9, 64, v9'] + wo_addr)
    stamp(4)
    A(f's_mov_b32 s58, {hex(LOG2E)}', 's_mov_b32 s56, 0', 's_mov_b32 s57, -1', 's_mov_b32 s12, 0')
    srd(52, 38, 5120)
    A('s_mul_i32 s14, s7, 5120', f's_add_u32 s14, s14, {WS_REC}')
    A('s_mul_i32 s15, s8, 640', 's_add_u32 s15, s15, s14')
    A('s_lshl_b32 s3, s4, 10', "s_add_u32 s14, s14, s3")
    A('s_lshl_b32 s3, s4, 6', 'v_add_u32 v12, s3, v0', 'v_mul_u32_u24 v15, 1639, v12', 'v_lshrrev_b32 v15, 16, v15')
    A('v_mul_u32_u24 v16, 40, v15', 'v_sub_u32 v16, v12, v16', 'v_cmp_gt_u32 s[96:97], 33, v16')
    A('v_add_u32 v15, v15, v12', 'v_lshlrev_b32 v15, 4, v15', f'v_add_u32 v15, {L_RC}, v15')
    A('v_and_b32 v12, 7, v0', 'v_mul_u32_u24 v16, 656, v12', 'v_lshl_add_u32 v16, v6, 4, v16', f'v_add_u32 v16, {L_RC}, v16')
    A('v_and_b32 v17, 1, v6', 'v_lshl_add_u32 v17, v17, 2, v4', 'v_mul_u32_u24 v17, 656, v17', f'v_add_u32 v17, {L_RC + 512}, v17')
    A('v_lshrrev_b32 v19, 5, v0', 'v_lshlrev_b32 v18, 2, v19', 'v_xor_b32 v12, v12, v18', 'v_lshlrev_b32 v18, 10, v12', f'v_add_u32 v18, {L_REC}, v18')
    A('v_and_b32 v12, 31, v0', 'v_lshlrev_b32 v12, 4, v12', 'v_lshl_add_u32 v19, v19, 12, v12', f'v_add_u32 v19, {L_REC}, v19')
    A('v_mul_u32_u24 v12, 960, v6', 'v_lshl_add_u32 v12, v4, 3, v12', 's_lshl_b32 s3, s4, 5', f's_add_u32 s3, s3, {L_WO}', 'v_add_u32 v12, s3, v12')
    A('v_mul_u32_u24 v7, 160, v5', 'v_add_u32 v7, v7, v12', 'v_and_b32 v8, 1, v5', 'v_mul_u32_u24 v8, 160, v8', 'v_add_u32 v8, v8, v12', 'v_add_u32 v8, 640, v8')
    A('s_mul_i32 s43, s8, 5', 's_add_u32 s43, s43, s4', 's_lshl_b32 s43, s43, 5', 's_add_u32 s43, s43, s7', 's_lshl_b32 s43, s43, 9', f's_add_u32 s43, s43, {WS_Y}')
    A('s_cmp_eq_u32 s60, 2', 's_cselect_b32 s3, 6, 5', 's_add_u32 s13, s3, 3')
    A('v_lshlrev_b32 v9, s13, v6', 'v_lshlrev_b32 v20, s3, v5', 'v_add_u32 v9, v9, v20', 'v_lshl_add_u32 v9, v4, 3, v9', 'v_add_u32 v9, s62, v9')
    def wofrags():
        for kk in range(8): tr(64 + 4*kk, 'v7', 3840*kk, 3840*kk, 'v8')
    if prewo:
        A('s_waitcnt vmcnt(0)')
        lds_signal(8)
        lds_wait(8, 5, 'L_wow', slp=4)
        wofrags()
    A('v_mov_b32 v12, 0')
    A('s_cmp_eq_u32 s60, 2', 's_cbranch_scc0 L_preB')
    A(f's_add_u32 s3, s63, {WS_MOD + 3*10240}', f's_add_u32 s13, s63, {WS_MOD + 4*10240}')
    A.label('L_scpoll')
    A('buffer_load_dwordx4 v[36:39], v2, s[44:47], s13 offen sc1', 'buffer_load_dwordx4 v[40:43], v2, s[44:47], s13 offen offset:128 sc1')
    A('buffer_load_dwordx4 v[44:47], v2, s[44:47], s3 offen sc1', 'buffer_load_dwordx4 v[48:51], v2, s[44:47], s3 offen offset:128 sc1')
    A('s_waitcnt vmcnt(0)')
    check_tags(['v38', 'v42', 'v46', 'v50'], 'v52', 'L_scpoll', 8)
    unpack(20, [36, 37, 40, 41]); unpack(28, [44, 45, 48, 49]); plus1(20); rnd8(20, 36)
    A('v_lshlrev_b32 v11, 3, v4', 's_lshl_b32 s3, s4, 5', 'v_add_u32 v12, s3, v11')
    A('s_branch L_preD')
    A.label('L_preB')
    A('s_cmp_eq_u32 s60, 3', 's_cbranch_scc0 L_preR')
    A('s_lshl_b32 s13, s61, 8', f's_add_u32 s13, s13, {WS_MOD + 5*10240}', 'v_mov_b32 v12, v3', 'v_lshrrev_b32 v21, 2, v0')
    A('s_branch L_preG0')
    A.label('L_preR')
    A('s_cmp_eq_u32 s59, -1', 's_cbranch_scc1 L_preD')
    A('v_and_b32 v21, 15, v0', 'v_and_b32 v22, 1, v6', 'v_lshrrev_b32 v23, 1, v6', 'v_lshl_add_u32 v22, v22, 1, v23')
    vpub('v12', 'v21', 'v22', 'v23')
    srd(48, 16, 5120)
    A('v_mul_u32_u24 v23, 1280, v22', 'v_lshl_add_u32 v23, v21, 1, v23', 's_lshl_b32 s3, s59, 5')
    A('buffer_load_ushort v20, v23, s[48:51], s3 offen')
    A('s_lshl_b32 s13, s59, 8', f's_add_u32 s13, s13, {WS_MOD + 2*10240}')
    A.label('L_preG0')
    A('v_and_b32 v11, -16, v12', 'v_and_b32 v23, 2, v21', 'v_cmp_eq_u32 s[98:99], 0, v23', 'v_and_b32 v22, 1, v21', 'v_lshlrev_b32 v22, 4, v22', 'v_sub_u32 v22, 16, v22')
    A.label('L_preG')
    A('buffer_load_dwordx4 v[24:27], v11, s[44:47], s13 offen sc1')
    A('s_waitcnt vmcnt(0)')
    check_tags(['v26'], None, 'L_preG', 8)
    A('v_cndmask_b32 v24, v25, v24, s[98:99]', 'v_lshlrev_b32 v21, v22, v24', 'v_and_b32 v21, 0xffff0000, v21')
    A('v_lshlrev_b32 v20, 16, v20')
    A.label('L_preD')
    if fast:
        A('s_cmp_eq_u32 s4, 0', 's_cbranch_scc0 L_noxid')
        A('s_getreg_b32 s42, hwreg(HW_REG_XCC_ID)', 's_lshl_b32 s13, s5, 12', f's_add_u32 s13, s13, {WS_XID}', 'v_lshlrev_b32 v38, 7, v0', 's_mov_b32 exec_hi, 0')
        A.label('L_xid')
        A('s_sleep 127', 'buffer_load_dwordx2 v[40:41], v38, s[44:47], s13 offen sc1', 's_waitcnt vmcnt(0)')
        check_tags(['v41'], None, 'L_xid', 0)
        A('v_cmp_ne_u32 vcc, s42, v40', 's_mov_b32 exec_hi, -1', 's_cmp_eq_u64 vcc, 0', 's_cselect_b32 s12, 1, 0')
        A('s_cmp_eq_u32 s95, 0', 's_cselect_b32 s12, 0, s12', 'v_mov_b32 v40, s12', f'ds_write_b32 v10, v40 offset:{L_FAST}')
        A.label('L_noxid')
    A('v_mov_b32 v43, s9')
    A('s_waitcnt vmcnt(0) lgkmcnt(0)')
    stamp(5)
    A('s_setprio 2')
    A('s_barrier')
    stamp(6)
    A('s_cmp_eq_u32 s4, 0', 's_cbranch_scc0 L_O')
    A('ds_read_b32 v36, v18 offset:524', 'ds_read_b32 v37, v18 offset:12')
    for i in range(4): A(f'ds_read_b128 v[{96+8*i}:{99+8*i}], v19 offset:{1024*i}', f'ds_read_b128 v[{100+8*i}:{103+8*i}], v19 offset:{1024*i+512}')
    A('s_waitcnt lgkmcnt(8)')
    A(f'v_max_f32_dpp v38, v36, v36 quad_perm:[1,0,3,2] {DPPF}', f'v_max_f32_dpp v38, v38, v38 quad_perm:[2,3,0,1] {DPPF}', f'v_max_f32_dpp v38, v38, v38 row_half_mirror {DPPF}')
    A('v_sub_f32 v36, v36, v38', 'v_mul_f32 v36, s58, v36', 'v_exp_f32 v36, v36', 'v_mul_f32 v37, v37, v36')
    lch = [f'v_add_f32_dpp v37, v37, v37 quad_perm:[1,0,3,2] {DPPF}', f'v_add_f32_dpp v37, v37, v37 quad_perm:[2,3,0,1] {DPPF}', f'v_add_f32_dpp v37, v37, v37 row_half_mirror {DPPF}', 'v_rcp_f32 v39, v37']
    for i in range(4):
        A(f's_waitcnt lgkmcnt({6 - 2*i})')
        for k in range(3):
            op = 'v_mul_f32_dpp' if i == 0 else 'v_fmac_f32_dpp'
            A(f'{op} v{56+2*k}, v36, v{96+8*i+k} row_newbcast:{i} {DPPF}', f'{op} v{57+2*k}, v36, v{100+8*i+k} row_newbcast:{i} {DPPF}')
        A(lch[i])
    A('v_permlane32_swap_b32 v58, v59', 'v_permlane32_swap_b32 v56, v60', 'v_permlane32_swap_b32 v57, v61')
    A('v_add_f32 v58, v58, v59', 'v_add_f32 v56, v56, v60', 'v_add_f32 v57, v57, v61')
    A('v_mul_f32 v58, v58, v39', 'v_mul_f32 v56, v56, v39', 'v_mul_f32 v57, v57, v39')
    A('v_mov_b32 v59, v58', 'v_cvt_pk_bf16_f32 v40, v56, v57', 'v_cvt_pk_bf16_f32 v42, v56, v57')
    A('v_permlane32_swap_b32 v58, v59', 'v_permlane32_swap_b32 v40, v42')
    A('v_cvt_pk_bf16_f32 v41, v58, v59')
    A('v_cndmask_b32 v40, v40, v38, s[56:57]', 'v_cndmask_b32 v41, v41, v37, s[56:57]')
    A('s_mov_b32 exec_hi, 1')
    if fast:
        A('s_cmp_eq_u32 s12, 1', 's_cbranch_scc0 L_slowrec')
        A('buffer_store_dwordx4 v[40:43], v1, s[44:47], s15 offen')
        A('s_branch L_recdone')
        A.label('L_slowrec')
    A('buffer_store_dwordx4 v[40:43], v1, s[44:47], s15 offen sc1')
    A.label('L_recdone')
    A('s_mov_b32 exec_hi, -1')
    A.label('L_O')
    stamp(7)
    if not prewo: wofrags()
    A('s_mov_b64 exec, s[96:97]')
    A.label('L_opoll')
    A('buffer_load_dwordx4 v[44:47], v1, s[44:47], s14 offen sc1')
    A('s_waitcnt vmcnt(0)')
    check_tags(['v47'], None, 'L_opoll', sleep)
    A('v_mov_b32 v47, 0')
    A('ds_write_b128 v15, v[44:47]')
    A('s_mov_b64 exec, -1')
    A('s_waitcnt lgkmcnt(0)')
    A('s_barrier')
    stamp(8)
    A('ds_read_b64 v[36:37], v17')
    for kk in range(8): A(f'ds_read_b128 v[{96+4*kk}:{99+4*kk}], v16 offset:{64*kk}')
    A('v_mov_b32 v46, s9', 'v_mov_b32 v47, s9')
    A('s_waitcnt lgkmcnt(8)')
    A(f'v_max_f32_dpp v38, v36, v36 quad_perm:[1,0,3,2] {DPPF}')
    for kk in range(8):
        A(f's_waitcnt lgkmcnt({7-kk})')
        mfma(40, 96 + 4*kk, 64 + 4*kk, kk == 0)
        if kk == 0: A('v_sub_f32 v36, v36, v38', 'v_mul_f32 v36, s58, v36')
        if kk == 1: A('v_exp_f32 v36, v36')
        if kk == 2: A('v_mul_f32 v36, v36, v37')
        if kk == 3: A(f'v_add_f32_dpp v37, v36, v36 quad_perm:[1,0,3,2] {DPPF}')
        if kk == 4: A('v_rcp_f32 v37, v37')
        if kk == 5: A('v_mul_f32 v36, v36, v37')
    A(f'v_mul_f32_dpp v44, v36, v40 quad_perm:[0,0,0,0] {DPPF}', f'v_mul_f32_dpp v45, v36, v42 quad_perm:[2,2,2,2] {DPPF}')
    A(f'v_fmac_f32_dpp v44, v36, v41 quad_perm:[1,1,1,1] {DPPF}', f'v_fmac_f32_dpp v45, v36, v43 quad_perm:[3,3,3,3] {DPPF}')
    A('s_mov_b32 exec_hi, 0')
    A('buffer_store_dwordx4 v[44:47], v1, s[44:47], s43 offen sc1')
    A('s_mov_b32 exec_hi, -1')
    stamp(9)
    A('s_mul_i32 s14, s5, 10240', f's_add_u32 s14, s14, {WS_X1}')
    A('s_cmp_eq_u32 s60, 3', 's_cbranch_scc1 L_F2')
    A('s_cmp_eq_u32 s60, 2', 's_cbranch_scc0 L_R')
    for a_ in range(4):
        for ks in range(4):
            o = 8192 * (a_ >> 1) + 2048 * ks + 32 * (a_ & 1)
            tr(64 + 16*a_ + 4*ks, 'v9', o, o + 256)
    A('s_add_u32 s3, s63, s14', 's_mov_b32 s13, 0x3f803f80')
    A.label('L_xpoll')
    A('buffer_load_dwordx4 v[48:51], v2, s[44:47], s3 offen sc1', 'buffer_load_dwordx4 v[52:55], v2, s[44:47], s3 offen offset:128 sc1')
    A('s_waitcnt vmcnt(0)')
    check_tags(['v50', 'v54'], 'v39', 'L_xpoll', xs)
    stamp(10)
    for i, r in enumerate([48, 49, 52, 53]):
        A(f'v_dot2_f32_bf16 v36, v{r}, s13, {"0" if i == 0 else "v36"}', f'v_dot2_f32_bf16 v37, v{r}, v{r}, {"0" if i == 0 else "v37"}')
    unpack(56, [48, 49])
    allreduce_b('v36', 'v37', 'v38')
    A('s_mov_b64 exec, 15', f'ds_write_b64 v12, v[36:37] offset:{L_ST}', 's_mov_b64 exec, -1')
    unpack(60, [52, 53])
    A('s_lshl_b32 s3, s61, 1', 's_add_u32 s3, s3, s4', 's_lshl_b32 s3, s3, 8', f's_add_u32 s3, s3, {WS_G}', f'v_mov_b32 v38, {hex(f2u(1e-5))}')
    A('s_waitcnt lgkmcnt(0)')
    A('s_barrier')
    A(f'ds_read2_b64 v[40:43], v11 offset0:{L_ST//8} offset1:{L_ST//8+4}', f'ds_read2_b64 v[44:47], v11 offset0:{L_ST//8+8} offset1:{L_ST//8+12}', f'ds_read_b64 v[36:37], v11 offset:{L_ST+128}')
    A('s_waitcnt lgkmcnt(0)')
    pk('add', 40, 40, 42); pk('add', 44, 44, 46); pk('add', 36, 36, 40); pk('add', 36, 36, 44)
    A(f'v_mul_f32 v36, {hex(f2u(1/640))}, v36', f'v_fmac_f32 v38, {hex(f2u(1/640))}, v37', 'v_fma_f32 v38, -v36, v36, v38')
    for i in range(2): pk('add', 56+2*i, 56+2*i, 36, 'op_sel_hi:[1,0] neg_lo:[0,1] neg_hi:[0,1]')
    A(f'v_max_f32 v38, {hex(f2u(1e-5))}, v38', 'v_rsq_f32 v38, v38')
    for i in range(2, 4): pk('add', 56+2*i, 56+2*i, 36, 'op_sel_hi:[1,0] neg_lo:[0,1] neg_hi:[0,1]')
    for i in range(4): pk('mul', 56+2*i, 56+2*i, 20+2*i)
    for i in range(4): A(f'v_pk_fma_f32 v[{56+2*i}:{57+2*i}], v[{56+2*i}:{57+2*i}], v[38:39], v[{28+2*i}:{29+2*i}] op_sel_hi:[1,0,1]')
    for i in range(4): A(f'v_cvt_pk_bf16_f32 v{40+i}, v{56+2*i}, v{57+2*i}')
    A('v_mov_b32 v58, s9', 'v_mov_b32 v59, s9')
    for ks in range(4):
        for a_ in range(4):
            mfma(20 + 4*a_, 40 + 4*ks, 64 + 16*a_ + 4*ks, ks == 0)
            if ks < 3 and a_ < 2:
                for i in (2*a_, 2*a_+1): A(f'v_mov_b32_dpp v{44+4*ks+i}, v{40+i} row_shl:{4*ks+4} {DPPF} bound_ctrl:0')
    A('s_mov_b64 exec, 0xffff')
    for a_ in range(4): A(f'ds_write_b128 v13, v[{20+4*a_}:{23+4*a_}] offset:{256*a_}')
    A('s_mov_b64 exec, -1')
    A('s_waitcnt lgkmcnt(0)')
    A('s_barrier')
    A('s_cmp_lt_u32 s4, 2', 's_cbranch_scc0 L_tend')
    for m in range(2):
        r = 40 + 6 * m
        A(f'ds_read2st64_b32 v[{r}:{r+1}], v14 offset0:{2*m} offset1:{4+2*m}', f'ds_read2st64_b32 v[{r+2}:{r+3}], v14 offset0:{8+2*m} offset1:{12+2*m}', f'ds_read_b32 v{r+4}, v14 offset:{4096+512*m}')
    k0 = -2.0 * 1.4426950408889634 * 0.7978845608028654
    A(f'v_mov_b32 v52, {hex(f2u(k0))}')
    A('s_waitcnt lgkmcnt(3)')
    A('v_add_f32 v40, v40, v41', 'v_add_f32 v42, v42, v43', 'v_add_f32 v40, v40, v44', 'v_add_f32 v40, v40, v42', 'v_mul_f32 v41, v40, v40')
    A('s_waitcnt lgkmcnt(0)')
    A('v_add_f32 v46, v46, v47', f'v_fmac_f32 v52, {hex(f2u(k0*0.044715))}, v41', 'v_add_f32 v48, v48, v49', 'v_mul_f32 v52, v52, v40', 'v_add_f32 v46, v46, v50')
    A('v_exp_f32 v52, v52', 'v_add_f32 v46, v46, v48', 'v_add_f32 v52, 1.0, v52', 'v_mul_f32 v40, v40, v46', 'v_rcp_f32 v52, v52', 'v_mul_f32 v40, v40, v52')
    pub4('v40', 56, 's3')
    stamp(11)
    A('s_branch L_tend')
    A.label('L_R')
    A('s_cmp_eq_u32 s59, -1', 's_cbranch_scc1 L_tend')
    A('s_lshl_b32 s3, s59, 14', f's_add_u32 s3, s3, {WS_Y}', 's_add_u32 s13, s3, 4096', 's_add_u32 s42, s3, 8192', 's_add_u32 s43, s3, 12288')
    A('s_lshl_b32 s59, s59, 8', 's_add_u32 s14, s14, s59')
    A('v_mov_b32 v42, s9', 'v_mov_b32 v43, s9', 's_mov_b32 s15, 15')
    if fast: A(f'ds_read_b32 v36, v10 offset:{L_FAST}', 's_waitcnt lgkmcnt(0)', 'v_readfirstlane_b32 s12, v36')
    A.label('L_ypoll')
    for g in range(4):
        A(f's_bitcmp1_b32 s15, {g}', f's_cbranch_scc0 L_yl{g}')
        for i in range(4): A(f'buffer_load_dwordx4 v[{64+16*g+4*i}:{67+16*g+4*i}], v1, s[44:47], {["s3","s13","s42","s43"][g]} offen offset:{1024*i} sc1')
        A.label(f'L_yl{g}')
    A('s_waitcnt vmcnt(0)')
    for g in range(4):
        r = 64 + 16 * g
        A(f's_bitcmp1_b32 s15, {g}', f's_cbranch_scc0 L_yc{g}')
        A(f'v_xor_b32 v36, s9, v{r+2}')
        for i in range(1, 4): A(f'v_bitop3_b32 v36, v36, v{r+2+4*i}, s9 bitop3:0xf6')
        A('v_cmp_ne_u32 vcc, 0, v36')
        pk('add', r, r, r + 4); pk('add', r + 8, r + 8, r + 12)
        A(f's_cbranch_vccnz L_yc{g}')
        pk('add', r, r, r + 8); A(f's_bitset0_b32 s15, {g}')
        A.label(f'L_yc{g}')
    A('s_cmp_eq_u32 s15, 0', 's_cbranch_scc1 L_yok')
    if ysleep: A(f's_sleep {ysleep}')
    A('s_sub_u32 s95, s95, 1', 's_cbranch_scc0 L_ypoll', 's_mov_b32 s95, 0')
    A.label('L_yok')
    stamp(10)
    pk('add', 64, 64, 80); pk('add', 96, 96, 112); pk('add', 44, 64, 96)
    A('v_permlane32_swap_b32 v44, v45', 'v_add_f32 v44, v44, v45', 'v_fma_f32 v44, v44, v21, v20')
    A(f'v_mov_b32_dpp v46, v44 quad_perm:[1,1,3,3] {DPPF}', 'v_cvt_pk_bf16_f32 v40, v44, v46', f'v_mov_b32_dpp v41, v40 quad_perm:[2,2,2,2] {DPPF}')
    A('s_mov_b32 exec_lo, 0x11111111', 's_mov_b32 exec_hi, 0x11111111')
    if fast:
        A('s_cmp_eq_u32 s12, 1', 's_cbranch_scc0 L_slowx1')
        A('buffer_store_dwordx4 v[40:43], v12, s[44:47], s14 offen')
        A('s_branch L_x1done')
        A.label('L_slowx1')
    A('buffer_store_dwordx4 v[40:43], v12, s[44:47], s14 offen sc1')
    A.label('L_x1done')
    stamp(11)
    A('s_branch L_tend')
    A.label('L_F2')
    A('s_cmp_eq_u32 s4, 4', 's_cbranch_scc1 L_tend')
    for ks in range(12): tr(64 + 4*ks, 'v9', 1024*ks, 1024*ks + 128)
    A('s_lshl_b32 s3, s61, 8', 's_add_u32 s14, s14, s3')
    A.label('L_x2poll')
    A('buffer_load_dwordx4 v[24:27], v11, s[44:47], s14 offen sc1', 's_waitcnt vmcnt(0)')
    check_tags(['v26'], None, 'L_x2poll', 2)
    A('v_cndmask_b32 v24, v25, v24, s[98:99]', 'v_lshlrev_b32 v20, v22, v24', 'v_and_b32 v20, 0xffff0000, v20')
    A('s_mul_i32 s3, s4, 6144', f's_add_u32 s3, s3, {WS_G}', 's_add_u32 s13, s3, 4096', 's_lshl_b32 s42, s61, 5')
    A('v_lshrrev_b32 v23, 2, v0', 'v_lshlrev_b32 v23, 1, v23', 'v_mul_u32_u24 v24, 1280, v4', 'v_add_u32 v23, v23, v24')
    A.label('L_gpoll')
    for i in range(6):
        A(f'buffer_load_dwordx4 v[{36+4*i}:{39+4*i}], v2, s[44:47], {"s3" if i < 4 else "s13"} offen offset:{2048*((i//2)%2)+128*(i%2)} sc1')
    A('s_waitcnt vmcnt(0)')
    check_tags([f'v{38+4*i}' for i in range(6)], 'v60', 'L_gpoll', 0)
    stamp(10)
    for n in range(12):
        blk, ks = divmod(n, 4)
        for i in range(4):
            sr = 36 + 8 * blk + (i & 1) + 4 * (i >> 1)
            if ks == 0: A(f'v_mov_b32 v{112+i}, v{sr}')
            else: A(f'v_mov_b32_dpp v{112+4*ks+i}, v{sr} row_shl:{4*ks} {DPPF} bound_ctrl:0')
        if n: mfma(60, 112 + 4*((n-1) % 4), 64 + 4*(n-1), n == 1)
    mfma(60, 124, 108, False)
    A('s_mov_b64 exec, 0xffff')
    A('ds_write_b128 v13, v[60:63]')
    A('s_mov_b64 exec, -1')
    A('s_waitcnt lgkmcnt(0)')
    A('s_barrier')
    A('s_cmp_eq_u32 s4, 0', 's_cbranch_scc0 L_tend')
    A('ds_read2st64_b32 v[40:41], v14 offset0:0 offset1:4', 'ds_read2st64_b32 v[42:43], v14 offset0:8 offset1:12')
    A('s_waitcnt lgkmcnt(0)')
    pk('add', 40, 40, 42)
    A('v_add_f32 v40, v40, v41', 'v_fma_f32 v40, v40, v21, v20', 'v_cvt_pk_bf16_f32 v40, v40, v40')
    A(f'buffer_store_short v40, v23, s[52:55], s42 offen {OP}')
    stamp(11)
    A('s_cmp_eq_u32 s61, 0', 's_cbranch_scc0 L_tend')
    A('v_mov_b32 v41, s9', 's_mov_b64 exec, 1')
    A(f'buffer_store_dword v41, v10, s[44:47], 0 offen {OP}')
    A.label('L_tend')
    if stamps: A('s_memtime s[90:91]', 's_memrealtime s[92:93]')
    stamp_flush(15)
    A.label('L_end')
    A('s_endpgm')

    body = A.fix()
    hdr = open('adaLN_cond__gqa_block_cached__geglu_ffn__decode.s.ref').read().split('\n')
    hdr = [l for l in hdr if l.startswith(';') and '@launch' not in l and 'Override' not in l and 'grid=ceil' not in l]
    out = hdr + [f'; @launch grid=(256,1,1) block=(832,1,1) lds={LDS_SIZE}',
                 '.amdgcn_target "amdgcn-amd-amdhsa--gfx950"', '.text', f'.globl {KNAME}', '.p2align 8', f'.type {KNAME},@function', f'{KNAME}:']
    out += [('' if l.endswith(':') else '    ') + l for l in body]
    out += ['.section .rodata,"a"', '.p2align 6', f'.amdhsa_kernel {KNAME}',
            '  .amdhsa_next_free_vgpr 128', '  .amdhsa_next_free_sgpr 100', '  .amdhsa_accum_offset 128',
            '  .amdhsa_float_denorm_mode_32 3',
            '  .amdhsa_group_segment_fixed_size 0', '  .amdhsa_kernarg_size 112', '  .amdhsa_user_sgpr_count 2',
            '  .amdhsa_user_sgpr_kernarg_segment_ptr 1', '  .amdhsa_system_sgpr_workgroup_id_x 1', '.end_amdhsa_kernel']
    return '\n'.join(out) + '\n'

if __name__ == '__main__':
    kw = eval('dict(' + (sys.argv[2] if len(sys.argv) > 2 else '') + ')')
    open(sys.argv[1], 'w').write(gen(**kw))
```

```python
import struct, sys
from asmgen import Asm
KNAME = 'adaLN_cond__gqa_block_cached__geglu_ffn__decode_kernel'
def f2u(x): return struct.unpack('<I', struct.pack('<f', x))[0]
LOG2E = f2u(1.4426950408889634)
SCALE = f2u(192 ** -0.5)
DPPF = 'row_mask:0xf bank_mask:0xf'

WS_EP = 0
WS_XID = 0x110000
WS_X1 = 0xfa000
WS_G = 0x5000
WS_MOD = 0xb000
WS_Q = 0x1a000
WS_REC = 0x32000
WS_Y = 0x5a000
WS_STAMP = 0x180000
WS_SIZE = 0x200000
L_CNT = 0
L_FAST = 16
L_ST = 128
L_D = 512
L_RC = 5632
L_REC = 10880
L_WO = 19072
L_Q = 49792
L_W = 50176
LDS_SIZE = L_W + 81920
assert L_W % 128 == 0

def ngroups(D):
    out = []
    for i in range(256):
        x = i & 7; k = i >> 3; p = k >> 1
        d = 0 if p >= 11 else D[3] if p >= 9 else D[2] if x + 8 * p >= 60 else D[0] if p < 5 else D[1]
        out.append(128 + d if k & 1 else 128 - d)
    return out

def rwaves():
    ty, _ = roles(); out = []
    for i in range(256):
        k = i >> 3; p = k >> 1
        if ty[i] in (2, 3): continue
        r = (p - 9 if p < 11 else k - 20) if ty[i] == 0 else 12 + p
        if r < 20: out.append(i)
    return out

def roles():
    ty, crit = [], []
    for i in range(256):
        x = i & 7; k = i >> 3; p = k >> 1; sp = k & 1; m = x + 8 * p
        if p >= 11: t = 0
        elif sp == 0: t = 3 if p < 5 else 2
        elif p >= 9: t = 0
        else: t = 1 if m < 60 else 4
        ty.append(t); crit.append(t == 1 and m < 20)
    return ty, crit

def gen(H0=12, QP=2, D=(4, 4, 8, 2), fast=1, sleep=1, qsleep=4, xs=0, stamps=False, POL='nt', KP=None, VP=None, WP='nt', st0=0, OP='', ysleep=1, lin=1):
    KP = POL if KP is None else KP; VP = POL if VP is None else VP
    A = Asm()
    def stamp(i):
        if stamps: A(f's_memrealtime s[{64+2*i}:{65+2*i}]')
    def stamp_flush(n):
        if not stamps: return
        A('s_waitcnt lgkmcnt(0)')
        A('s_lshl_b32 s60, s2, 4', 's_add_u32 s60, s60, s4', 's_lshl_b32 s60, s60, 6', f's_add_u32 s60, s60, {WS_STAMP}')
        A('v_mov_b32 v126, 0', 's_mov_b64 exec, 1')
        for i in range(n):
            A(f'v_mov_b32 v127, s{64+2*i}', f'buffer_store_dword v127, v126, s[44:47], s60 offen offset:{4*i}')
        A('s_waitcnt vmcnt(0)')
    def rnd(dst, src, tmp=None):
        t = tmp or dst
        A(f'v_cvt_pk_bf16_f32 {t}, {src}, {src}', f'v_lshlrev_b32 {dst}, 16, {t}')
    def srd(base, ptr, size, off=None):
        if off is None:
            A(f's_mov_b32 s{base}, s{ptr}', f's_mov_b32 s{base+1}, s{ptr+1}')
        else:
            A(f's_add_u32 s{base}, s{ptr}, {off}', f's_addc_u32 s{base+1}, s{ptr+1}, 0')
        A(f's_mov_b32 s{base+2}, {size}', f's_mov_b32 s{base+3}, 0x20000')
    def tagcalc():
        A('s_mul_i32 s9, s9, 0x9e3779b1', 's_add_u32 s9, s9, 0x7f4a7c15')
    def xidpub(name):
        if not fast: return
        A('s_cmp_eq_u32 s4, 0', f's_cbranch_scc0 {name}')
        A('s_getreg_b32 s3, hwreg(HW_REG_XCC_ID)', 'v_mov_b32 v24, s3', 'v_mov_b32 v25, s9', 's_lshl_b32 s3, s5, 5', 's_add_u32 s3, s3, s6', 's_lshl_b32 s3, s3, 7', f's_add_u32 s3, s3, {WS_XID}')
        A('s_mov_b64 exec, 1', 'buffer_store_dwordx2 v[24:25], v10, s[44:47], s3 offen sc1', 's_mov_b64 exec, -1')
        A.label(name)
    def check_tags(regs, acc, retry, slp):
        done = retry + '_ok'
        if len(regs) == 1:
            A(f'v_cmp_ne_u32 vcc, s9, {regs[0]}')
        else:
            A(f'v_xor_b32 {acc}, s9, {regs[0]}')
            for r in regs[1:]:
                A(f'v_bitop3_b32 {acc}, {acc}, {r}, s9 bitop3:0xf6')
            A(f'v_cmp_ne_u32 vcc, 0, {acc}')
        A(f's_cbranch_vccz {done}')
        if slp: A(f's_sleep {slp}')
        A('s_sub_u32 s95, s95, 1', f's_cbranch_scc0 {retry}', 's_mov_b32 s95, 0')
        A.label(done)
    def lds_signal(cnt):
        A('s_mov_b64 exec, 1', f'ds_add_u32 v10, v11 offset:{cnt}', 's_mov_b64 exec, -1')
    def lds_wait(cnt, target, name, vtmp='v12', vaddr='v10', stmp='s3', slp=0):
        A.label(name)
        if slp: A(f's_sleep {slp}')
        A(f'ds_read_b32 {vtmp}, {vaddr} offset:{cnt}', 's_waitcnt lgkmcnt(0)', f'v_readfirstlane_b32 {stmp}, {vtmp}', f's_cmp_ge_u32 {stmp}, {target}',
          f's_cbranch_scc1 {name}_x', 's_sub_u32 s95, s95, 1', f's_cbranch_scc0 {name}', 's_mov_b32 s95, 0')
        A.label(name + '_x')
    def dma_loop(n, voff, step, name, extra=(), pol=None):
        pol = WP if pol is None else pol
        A(f's_mov_b32 s3, {n}')
        A.label(name)
        A(f'buffer_load_dwordx4 {voff}, s[48:51], s13 offen {pol} lds')
        A(*extra)
        A('s_add_u32 m0, m0, 1024')
        if step: A(f's_add_u32 s13, s13, {step}')
        A('s_sub_u32 s3, s3, 1', 's_cmp_lg_u32 s3, 0', f's_cbranch_scc1 {name}')
    def allreduce_b(s1, s2, t):
        for r in (4, 8):
            A(f'v_add_f32_dpp {s1}, {s1}, {s1} row_ror:{r} {DPPF}', f'v_add_f32_dpp {s2}, {s2}, {s2} row_ror:{r} {DPPF}')
        A(f'v_permlane16_swap_b32 {s1}, {s2}', f'v_add_f32 {s1}, {s1}, {s2}')
        A(f'v_mov_b32 {t}, {s1}', f'v_permlane32_swap_b32 {s1}, {t}', f'v_add_f32 {s1}, {s1}, {t}')
        A(f'v_mov_b32 {s2}, {s1}', f'v_permlane16_swap_b32 {s1}, {s2}')
    def rnd8(e, t):
        for i in range(4): A(f'v_cvt_pk_bf16_f32 v{t+i}, v{e+2*i}, v{e+2*i+1}')
        for i in range(4): A(f'v_lshlrev_b32 v{e+2*i}, 16, v{t+i}', f'v_and_b32 v{e+2*i+1}, 0xffff0000, v{t+i}')
    def unpack(dst, srcs):
        for i, s_ in enumerate(srcs): A(f'v_lshlrev_b32 v{dst+2*i}, 16, v{s_}', f'v_and_b32 v{dst+2*i+1}, 0xffff0000, v{s_}')
    def pk(op, d, a, b, mod=''):
        A(f'v_pk_{op}_f32 v[{d}:{d+1}], v[{a}:{a+1}], v[{b}:{b+1}] {mod}')
    def plus1(e):
        for i in range(4): A(f'v_pk_add_f32 v[{e+2*i}:{e+1+2*i}], v[{e+2*i}:{e+1+2*i}], 1.0 op_sel_hi:[1,0]')
    def ashift(a0):
        for ks in range(1, 4):
            for i in range(4): A(f'v_mov_b32_dpp v{a0+4*ks+i}, v{a0+i} row_shl:{4*ks} {DPPF} bound_ctrl:0')
    def vpub(dst, c, b, tmp):
        A(f'v_bfe_u32 {tmp}, {c}, 2, 1', f'v_lshlrev_b32 {dst}, 7, {tmp}', f'v_lshrrev_b32 {tmp}, 3, {c}', f'v_lshl_add_u32 {dst}, {tmp}, 6, {dst}',
          f'v_bfe_u32 {tmp}, {c}, 1, 1', f'v_lshl_add_u32 {dst}, {tmp}, 2, {dst}', f'v_lshl_add_u32 {dst}, {b}, 4, {dst}')
    def pub4(val, g, soff):
        A(f'v_mov_b32_dpp v{g+1}, {val} row_shl:4 {DPPF} bound_ctrl:0', f'v_cvt_pk_bf16_f32 v{g}, {val}, v{g+1}', f'v_mov_b32_dpp v{g+1}, v{g} row_shl:8 {DPPF} bound_ctrl:0')
        A('s_mov_b32 exec_lo, 0x000f000f', 's_mov_b32 exec_hi, 0x000f000f')
        A(f'buffer_store_dwordx4 v[{g}:{g+3}], v3, s[44:47], {soff} offen sc1')
    def mfma(d, a, b, first):
        A(f'v_mfma_f32_16x16x32_bf16 v[{d}:{d+3}], v[{a}:{a+3}], v[{b}:{b+3}], {"0" if first else f"v[{d}:{d+3}]"}')
    def tr(r, addr, o0, o1, addr1=None):
        A(f'ds_read_b64_tr_b16 v[{r}:{r+1}], {addr} offset:{o0}', f'ds_read_b64_tr_b16 v[{r+2}:{r+3}], {addr1 or addr} offset:{o1}')

    A('s_cmp_ge_u32 s2, 256', 's_cbranch_scc1 L_end')
    stamp(0)
    if stamps: A('s_memtime s[88:89]')
    A('s_load_dwordx16 s[16:31], s[0:1], 0', 's_load_dwordx8 s[32:39], s[0:1], 64', 's_load_dwordx2 s[40:41], s[0:1], 104')
    A('v_lshrrev_b32 v1, 6, v0', 'v_and_b32 v0, 63, v0', 'v_readfirstlane_b32 s4, v1            ; wave')
    A('s_and_b32 s5, s2, 7', 's_lshr_b32 s6, s2, 3', 's_lshr_b32 s3, s6, 3', 's_lshl_b32 s7, s5, 2', 's_add_u32 s7, s7, s3                 ; head', 's_and_b32 s8, s6, 7')
    A('s_mov_b32 s95, 0x80000')
    A('s_lshr_b32 s3, s6, 1', 's_and_b32 s13, s6, 1')
    A('s_mov_b32 s60, 0', 's_sub_u32 s61, s6, 20', 's_mov_b32 s63, 0')
    A('s_cmp_ge_u32 s3, 11', 's_cbranch_scc1 L_roled')
    A('s_lshl_b32 s14, s3, 3', 's_add_u32 s14, s14, s5')
    A('s_cmp_lt_u32 s3, 5', f's_cselect_b32 s63, {D[0]}, {D[1]}', 's_cmp_ge_u32 s14, 60', f's_cselect_b32 s63, {D[2]}, s63', 's_cmp_ge_u32 s3, 9', f's_cselect_b32 s63, {D[3]}, s63')
    A('s_cmp_eq_u32 s13, 0', 's_cbranch_scc1 L_role0')
    A('s_sub_u32 s61, s3, 9', 's_cmp_ge_u32 s3, 9', 's_cbranch_scc1 L_roled')
    A('s_mov_b32 s61, s14', 's_cmp_lt_u32 s14, 60', 's_cselect_b32 s60, 1, 4', 's_branch L_roled')
    A.label('L_role0')
    A('s_cmp_lt_u32 s3, 5', 's_cselect_b32 s60, 3, 2', 's_cselect_b32 s14, 5, 6', 's_cselect_b32 s15, 0, 5', 's_mul_i32 s61, s5, s14', 's_add_u32 s61, s61, s3', 's_sub_u32 s61, s61, s15')
    A.label('L_roled')
    A('s_cmp_lt_u32 s4, 5', 's_cbranch_scc1 L_service')

    q = ['v4', 'v5', 'v6']
    acc = [f'v{8+i}' for i in range(6)]
    vM, vL = 'v14', 'v15'
    def ld(kind, j):
        r, s = (32 + 4 * j, 48) if kind == 'K' else (64 + 4 * j, 52)
        vo, off = ('v1', j * 768) if j < 5 else ('v2', (j - 5) * 768)
        A(f'buffer_load_dwordx3 v[{r}:{r+2}], {vo}, s[{s}:{s+3}], s10 offen offset:{off} {KP if kind == "K" else VP}')
    def goff(t):
        A(f's_and_b32 s10, {t}, -8', f's_add_u32 s10, s10, {t}', 's_add_u32 s10, s10, s86')
        A(f's_mul_i32 s3, {t}, s94', 's_add_u32 s3, s3, s87', f's_cmp_lt_u32 {t}, 112', 's_cselect_b32 s10, s10, s3', 's_mul_i32 s10, s10, 6144')
    A('v_mul_u32_u24 v1, 12, v0', 'v_add_u32 v2, 3840, v1')
    A('s_lshr_b32 s3, s8, 1', 's_lshl_b32 s3, s3, 5', 's_add_u32 s3, s3, s7', 's_mul_i32 s12, s3, 1572864')
    A('s_lshl_b32 s86, s13, 3', 's_mul_i32 s87, s13, 255', 's_add_u32 s87, s87, 112', 's_cmp_eq_u32 s13, 0', 's_cselect_b32 s94, 1, -1')
    A('s_mul_i32 s63, s63, s94', 's_sub_u32 s63, 128, s63')
    A('s_sub_u32 s11, s4, 5')
    goff('s11')
    A('s_cmp_lt_u32 s61, 20', 's_cselect_b32 s15, 2, 0', 's_cmp_eq_u32 s60, 1', 's_cselect_b32 s15, s15, 0', 's_cmp_eq_u32 s60, 0', 's_cselect_b32 s15, 1, s15')
    A('v_mov_b32 v29, 0', 'v_mov_b32 v30, 1')
    A('s_waitcnt lgkmcnt(0)')
    if st0: stamp(3)
    srd(48, 18, 1572864, 's12'); srd(52, 20, 1572864, 's12')
    A('s_load_dword s9, s[40:41], 0')
    A('s_cmp_eq_u32 s15, 0', 's_cbranch_scc1 L_hold2_x')
    A('s_barrier')
    A('s_cmp_eq_u32 s15, 2', 's_cbranch_scc0 L_hold2_x')
    lds_wait(4, 4, 'L_hold2', 'v16', 'v29', 's14', 2)
    order = [('K', j) for j in range(8)] + [('V', j) for j in range(8)]
    for n, o in enumerate(order):
        if n == H0:
            A('s_cmp_eq_u32 s15, 1', 's_cbranch_scc0 L_hold1_x')
            lds_wait(4, 4, 'L_hold1', 'v16', 'v29', 's14', 2)
        if QP and QP <= n < H0:
            A('s_cmp_eq_u32 s15, 1', f's_cbranch_scc0 L_qp{n}', f's_waitcnt vmcnt({QP - 1})')
            A('ds_read_b32 v16, v29 offset:4', 's_waitcnt lgkmcnt(0)', 'v_readfirstlane_b32 s14, v16', 's_cmp_ge_u32 s14, 4', 's_cselect_b32 s15, 3, 1')
            A.label(f'L_qp{n}')
        ld(*o)
        if st0 and n == 0: A('s_waitcnt vmcnt(0)'); stamp(4)
    A('s_cmp_eq_u32 s15, 0', 's_cbranch_scc0 L_nobar')
    A('s_barrier')
    A.label('L_nobar')
    if stamps: srd(44, 40, WS_SIZE)
    A('s_mul_i32 s14, s7, 3072', 's_lshr_b32 s3, s8, 1', 's_lshl_b32 s3, s3, 6', 's_add_u32 s14, s14, s3', f's_add_u32 s14, s14, {WS_Q}')
    A('s_lshl_b32 s3, s11, 9', 's_add_u32 s14, s14, s3', 's_add_u32 s84, s40, s14', 's_addc_u32 s85, s41, 0')
    A('v_and_b32 v3, 31, v0', 'v_mul_u32_u24 v3, 12, v3', 's_lshl_b32 s3, s11, 6', 'v_lshlrev_b32 v31, 2, v0', 'v_add_u32 v31, s3, v31')
    A('s_lshl_b32 s3, s11, 10', f's_add_u32 s3, s3, {L_REC}', 'v_lshlrev_b32 v7, 4, v0', 'v_add_u32 v7, s3, v7')
    A('s_mov_b32 s56, 0xcccccccc', 's_mov_b32 s57, 0xcccccccc', f's_mov_b32 s58, {hex(LOG2E)}', f's_mov_b32 s59, {hex(SCALE)}', 's_mov_b32 s43, 1572864')
    for a in acc: A(f'v_mov_b32 {a}, 0')
    A(f'v_mov_b32 {vM}, 0xff7fffff', f'v_mov_b32 {vL}, 0')
    A('s_waitcnt lgkmcnt(0)')
    tagcalc()
    stamp(1)
    A('s_cmp_lt_u32 s11, 6', 's_cbranch_scc0 L_qw')
    A('s_branch L_qpoll')
    A.label('L_qretry')
    A(f's_sleep {qsleep}', 's_sub_u32 s95, s95, 1', 's_cbranch_scc0 L_qpoll', 's_mov_b32 s95, 0', 's_branch L_qgot')
    A.label('L_qpoll')
    A('s_load_dwordx16 s[16:31], s[84:85], 0 glc', 's_load_dwordx8 s[32:39], s[84:85], 256 glc', 's_load_dwordx8 s[76:83], s[84:85], 288 glc', 's_waitcnt lgkmcnt(0)')
    sq = list(range(16, 40, 2)) + list(range(76, 84, 2))
    for r in sq: A(f's_cmp_eq_u32 s{r+1}, s9', 's_cbranch_scc0 L_qretry')
    A.label('L_qgot')
    for i, r in enumerate(sq): A(f'v_writelane_b32 v16, s{r}, {i}')
    A('s_mov_b64 exec, 0xffff', f'ds_write_b32 v31, v16 offset:{L_Q}', 's_mov_b64 exec, 1', 'ds_add_u32 v29, v30 offset:12', 's_mov_b64 exec, -1')
    lds_wait(12, 6, 'L_qw', 'v16', 'v29', 's14', 1)
    stamp(2)
    for i in range(3): A(f'ds_read_b32 {q[i]}, v3 offset:{L_Q + 4*i}')
    A('s_waitcnt lgkmcnt(0)')
    A.label('L_loop')
    A('s_add_u32 s11, s11, 8')
    goff('s11')
    A('s_cmp_ge_u32 s11, s63', 's_cselect_b32 s50, 0, s43', 's_cselect_b32 s54, 0, s43')
    T = lambda j: f'v{35+4*j}'
    for j in range(8):
        A('s_waitcnt vmcnt(15)')
        for i in range(3): A(f'v_dot2_f32_bf16 {T(j)}, v{32+4*j+i}, {q[i]}, {T(j) if i else "0"}')
        ld('K', j)
    for i in range(4): A(f'v_add_f32_dpp v{16+i}, {T(i)}, {T(i)} row_ror:8 row_mask:0xf bank_mask:0x3')
    for i in range(4): A(f'v_add_f32_dpp v{16+i}, {T(i+4)}, {T(i+4)} row_ror:8 row_mask:0xf bank_mask:0xc')
    for i in range(2): A(f'v_add_f32_dpp v{20+i}, v{16+i}, v{16+i} row_half_mirror row_mask:0xf bank_mask:0x5')
    for i in range(2): A(f'v_add_f32_dpp v{20+i}, v{18+i}, v{18+i} row_half_mirror row_mask:0xf bank_mask:0xa')
    A(f'v_add_f32_dpp v22, v20, v20 quad_perm:[2,3,0,1] {DPPF}', f'v_add_f32_dpp v23, v21, v21 quad_perm:[2,3,0,1] {DPPF}')
    A('v_cndmask_b32 v22, v22, v23, s[56:57]')
    A(f'v_add_f32_dpp v22, v22, v22 quad_perm:[1,0,3,2] {DPPF}')
    A('v_mov_b32 v23, v22', 'v_permlane16_swap_b32 v22, v23', 'v_add_f32 v22, v22, v23')
    rnd('v22', 'v22'); A('v_mul_f32 v22, s59, v22'); rnd('v22', 'v22')
    A(f'v_max_f32_dpp v23, v22, v22 quad_perm:[2,3,0,1] {DPPF}', f'v_max_f32_dpp v23, v23, v23 row_half_mirror {DPPF}', f'v_max_f32_dpp v23, v23, v23 row_ror:8 {DPPF}')
    A('v_mov_b32 v25, v23', 'v_permlane32_swap_b32 v23, v25', f'v_max3_f32 v23, v23, v25, {vM}')
    A(f'v_sub_f32 v24, {vM}, v23', 'v_sub_f32 v22, v22, v23', f'v_mov_b32 {vM}, v23')
    A('v_mul_f32 v24, s58, v24', 'v_mul_f32 v22, s58, v22', 'v_exp_f32 v24, v24', 'v_exp_f32 v22, v22')
    for i in range(3): pk('mul', 8+2*i, 8+2*i, 24, 'op_sel_hi:[1,0]')
    A('v_cvt_pk_bf16_f32 v26, v22, 0', 'v_cvt_pk_bf16_f32 v27, 0, v22')
    A(f'v_add_f32_dpp v22, v22, v22 quad_perm:[2,3,0,1] {DPPF}', f'v_mul_f32 {vL}, {vL}, v24', f'v_add_f32_dpp v22, v22, v22 row_half_mirror {DPPF}')
    A(f'v_add_f32_dpp v22, v22, v22 row_ror:8 {DPPF}', f'v_mul_f32 v31, 0.5, {vM}', f'v_add_f32 {vL}, {vL}, v22')
    for j in range(8):
        A('s_waitcnt vmcnt(15)')
        for i in range(3):
            A(f'v_dot2c_f32_bf16_dpp {acc[2*i]}, v26, v{64+4*j+i} row_newbcast:{2*j} {DPPF}')
            A(f'v_dot2c_f32_bf16_dpp {acc[2*i+1]}, v27, v{64+4*j+i} row_newbcast:{2*j} {DPPF}')
        ld('V', j)
    A('s_cmp_lt_u32 s11, s63', 's_cbranch_scc1 L_loop')
    if not st0: stamp(3)
    A(f'v_permlane32_swap_b32 {vL}, v31')
    for i in range(3): A(f'v_permlane32_swap_b32 {acc[2*i]}, {acc[2*i+1]}')
    A(f'v_add_f32 v23, {vL}, v31')
    for i in range(3): A(f'v_add_f32 v{20+i}, {acc[2*i]}, {acc[2*i+1]}')
    A('ds_write_b128 v7, v[20:23]')
    A('s_waitcnt lgkmcnt(0)', 's_barrier')
    if not st0: stamp(4)
    stamp_flush(5)
    A('s_endpgm')

    A.label('L_service')
    A('s_setprio 2')
    A('v_and_b32 v4, 3, v0', 'v_bfe_u32 v5, v0, 2, 2', 'v_lshrrev_b32 v6, 4, v0', 'v_mov_b32 v15, 0')
    A('v_mov_b32 v10, 0', 'v_mov_b32 v11, 1', 'v_lshlrev_b32 v1, 4, v0')
    A('s_cmp_eq_u32 s4, 0', 's_cbranch_scc0 L_nozero')
    for o in (0, 4, 8, 12, 20, 24): A(f'ds_write_b32 v10, v10 offset:{o}')
    A.label('L_nozero')
    A('s_lshl_b32 s62, s4, 14', f's_add_u32 s62, s62, {L_W}')
    A('s_waitcnt lgkmcnt(0)')
    A('s_load_dword s9, s[40:41], 0')
    A('s_cmp_gt_u32 s60, 1', 's_cbranch_scc1 L_nojob')
    A('v_mul_u32_u24 v7, 1280, v4', 'v_lshl_add_u32 v7, v5, 6, v7', 'v_lshl_add_u32 v7, v6, 4, v7', 's_lshl_b32 s3, s4, 8')
    A('s_cmp_eq_u32 s60, 0', 's_cbranch_scc0 L_modjob')
    srd(52, 16, 5120)
    srd(48, 22, 640 * 12288)
    A('s_mov_b32 s42, 12288', 's_mov_b32 s59, s61', 's_mul_i32 s13, s5, 12', 's_add_u32 s61, s61, s13', 's_lshl_b32 s13, s61, 7')
    A('s_branch L_dojob')
    A.label('L_modjob')
    srd(52, 34, 5120)
    A('buffer_load_dwordx4 v[36:39], v7, s[52:55], s3 offen', 's_mov_b32 s54, 0')
    srd(48, 36, 640 * 7680)
    A('s_mov_b32 s42, 7680', 's_lshl_b32 s13, s61, 7')
    A.label('L_dojob')
    A('v_lshrrev_b32 v8, 3, v0', 's_lshl_b32 s3, s4, 7', 'v_add_u32 v8, s3, v8', 'v_mul_lo_u32 v8, v8, s42')
    A('v_and_b32 v9, 7, v0', 'v_lshlrev_b32 v9, 4, v9', 'v_and_b32 v12, 1, v6', 'v_lshlrev_b32 v12, 5, v12', 'v_xor_b32 v9, v9, v12', 'v_add_u32 v8, v8, v9')
    A('s_lshl_b32 s42, s42, 3', 's_mov_b32 m0, s62')
    dma_loop(16, 'v8', 's42', 'L_dma0', ['v_xor_b32 v8, 64, v8'], POL)
    for t in range(5): A(f'buffer_load_dwordx4 v[{20+4*t}:{23+4*t}], v7, s[52:55], 0 offen offset:{256*t}' if t < 4 else 'buffer_load_dwordx4 v[60:63], v7, s[52:55], 0 offen offset:1024')
    A('s_lshl_b32 s3, s4, 8', 'buffer_load_dwordx4 v[56:59], v7, s[52:55], s3 offen')
    A.label('L_nojob')
    A('s_barrier')
    srd(44, 40, WS_SIZE)
    A('s_lshr_b32 s3, s6, 1', 's_add_u32 s3, s3, 12', 's_cmp_eq_u32 s60, 0', 's_cselect_b32 s3, s59, s3', 's_lshl_b32 s59, s3, 1', 's_add_u32 s59, s59, s4', 's_sub_u32 s59, s59, 1')
    A('s_cmp_lt_u32 s3, 20', 's_cselect_b32 s59, s59, -1', 's_and_b32 s3, s60, 6', 's_cmp_eq_u32 s3, 2', 's_cselect_b32 s59, -1, s59', 's_sub_u32 s3, s4, 1', 's_cmp_lt_u32 s3, 2', 's_cselect_b32 s59, s59, -1')
    A('v_lshrrev_b32 v2, 2, v0')
    vpub('v3', 'v2', 'v4', 'v12')
    A('v_lshrrev_b32 v12, 1, v6', 'v_lshlrev_b32 v2, 8, v12', 'v_lshl_add_u32 v2, v5, 9, v2', 'v_and_b32 v12, 1, v6', 'v_lshl_add_u32 v2, v12, 6, v2', 'v_lshl_add_u32 v2, v4, 4, v2')
    A('s_lshl_b32 s63, s4, 11')
    A('s_lshl_b32 s3, s4, 10', f's_add_u32 s3, s3, {L_D}', 'v_add_u32 v13, s3, v1')
    A('s_lshl_b32 s3, s4, 8', f's_add_u32 s3, s3, {L_D}', 'v_lshlrev_b32 v14, 2, v0', 'v_add_u32 v14, s3, v14')
    A('s_cmp_gt_u32 s60, 1', 's_cbranch_scc1 L_tailw0')
    A('v_lshlrev_b32 v9, 10, v6', 'v_lshl_add_u32 v9, v5, 7, v9', 'v_lshl_add_u32 v9, v4, 3, v9')
    A('v_lshrrev_b32 v12, 1, v5', 'v_lshl_add_u32 v9, v12, 5, v9', 'v_and_b32 v12, 1, v6', 'v_lshl_add_u32 v9, v12, 6, v9', 'v_add_u32 v9, s62, v9')
    A('s_lshl_b32 s43, s61, 2', 's_add_u32 s43, s43, s4', 's_lshl_b32 s43, s43, 8')
    A('v_xor_b32 v16, 32, v9', 'v_xor_b32 v17, 64, v9', 'v_xor_b32 v18, 0x60, v9')
    A('s_cmp_eq_u32 s60, 0', 's_cbranch_scc1 L_btr')
    A('s_waitcnt vmcnt(22)')
    unpack(48, [36, 37, 38, 39])
    for i in range(8): A(f'v_mul_f32 v{36+i}, {hex(LOG2E ^ 0x80000000)}, v{48+i}')
    for i in range(8): A(f'v_exp_f32 v{36+i}, v{36+i}')
    plus1(36)
    for i in range(8): A(f'v_rcp_f32 v{36+i}, v{36+i}')
    for i in range(4): pk('mul', 48+2*i, 48+2*i, 36+2*i)
    for i in range(4): A(f'v_cvt_pk_bf16_f32 v{40+i}, v{48+2*i}, v{49+2*i}')
    ashift(40)
    A(f's_add_u32 s43, s43, {WS_MOD}')
    A.label('L_btr')
    A('s_waitcnt lgkmcnt(0)')
    tagcalc()
    for ks in range(4):
        A(f's_waitcnt vmcnt({18-4*ks})')
        for tl in range(4): tr(64 + 16*tl + 4*ks, ['v9', 'v16', 'v17', 'v18'][tl], 4096*ks, 4096*ks + 512)
    stamp(1)
    A('s_waitcnt vmcnt(0)')
    A('s_cmp_eq_u32 s60, 0', 's_cbranch_scc0 L_amov')
    A('s_mov_b32 s3, 0x3f803f80')
    for i, r in enumerate(list(range(20, 36)) + [60, 61, 62, 63]):
        A(f'v_dot2_f32_bf16 v36, v{r}, s3, {"0" if i == 0 else "v36"}', f'v_dot2_f32_bf16 v37, v{r}, v{r}, {"0" if i == 0 else "v37"}')
    for i in range(4): A(f'v_mov_b32 v{40+i}, v{56+i}')
    unpack(56, [40, 41, 42, 43])
    allreduce_b('v36', 'v37', 'v38')
    A(f'v_mul_f32 v36, {hex(f2u(1/640))}, v36', f'v_mul_f32 v37, {hex(f2u(1/640))}, v37', 'v_fma_f32 v37, -v36, v36, v37', 'v_max_f32 v37, 0, v37')
    A('v_cvt_pk_bf16_f32 v38, v36, v37', 'v_and_b32 v37, 0xffff0000, v38', 'v_lshlrev_b32 v36, 16, v38')
    A(f'v_add_f32 v37, {hex(f2u(1e-5))}, v37'); rnd('v37', 'v37'); A('v_sqrt_f32 v37, v37'); rnd('v37', 'v37'); A('v_rcp_f32 v37, v37')
    for i in range(4): pk('add', 56+2*i, 56+2*i, 36, 'op_sel_hi:[1,0] neg_lo:[0,1] neg_hi:[0,1]')
    rnd8(56, 40)
    for i in range(4): pk('mul', 56+2*i, 56+2*i, 36, 'op_sel:[0,1] op_sel_hi:[1,1]')
    rnd8(56, 40)
    A('v_lshlrev_b32 v15, 6, v4', 'v_lshrrev_b32 v12, 3, v0', 'v_lshl_add_u32 v15, v12, 3, v15', f's_add_u32 s43, s43, {WS_Q}')
    A(f's_add_u32 s3, s63, {WS_MOD}', f's_add_u32 s13, s63, {WS_MOD + 10240}')
    A.label('L_hpoll')
    A('buffer_load_dwordx4 v[28:31], v2, s[44:47], s13 offen sc1', 'buffer_load_dwordx4 v[32:35], v2, s[44:47], s13 offen offset:128 sc1')
    A('buffer_load_dwordx4 v[20:23], v2, s[44:47], s3 offen sc1', 'buffer_load_dwordx4 v[24:27], v2, s[44:47], s3 offen offset:128 sc1')
    A('s_waitcnt vmcnt(0)')
    check_tags(['v22', 'v26', 'v30', 'v34'], 'v36', 'L_hpoll', 1)
    stamp(2)
    unpack(44, [28, 29, 32, 33]); plus1(44); rnd8(44, 36)
    for i in range(4): pk('mul', 44+2*i, 44+2*i, 56+2*i)
    unpack(56, [20, 21, 24, 25])
    rnd8(44, 36)
    for i in range(4): pk('add', 44+2*i, 44+2*i, 56+2*i)
    for i in range(4): A(f'v_cvt_pk_bf16_f32 v{40+i}, v{44+2*i}, v{45+2*i}')
    ashift(40)
    A.label('L_amov')
    A('s_waitcnt lgkmcnt(8)' if not stamps else 's_waitcnt lgkmcnt(0)')
    for ks in range(4):
        if ks == 3: A('s_waitcnt lgkmcnt(0)')
        for tl in range(4): mfma(20 + 4*tl, 40 + 4*ks, 64 + 16*tl + 4*ks, ks == 0)
    A('s_mov_b64 exec, 0xffff')
    for tl in range(4): A(f'ds_write_b128 v13, v[{20+4*tl}:{23+4*tl}] offset:{256*tl}')
    lds_signal(0)
    A('s_cmp_eq_u32 s4, 4', 's_cbranch_scc0 L_fin0')
    lds_wait(4, 4, 'L_w1')
    A('s_branch L_tailw')
    A.label('L_fin0')
    A('v_mov_b32 v50, s9', 'v_mov_b32 v51, s9', 'v_mov_b32 v41, s9')
    lds_wait(0, 5, 'L_w0')
    A('ds_read2st64_b32 v[42:43], v14 offset0:0 offset1:4', 'ds_read2st64_b32 v[44:45], v14 offset0:8 offset1:12', 'ds_read_b32 v46, v14 offset:4096')
    A('s_waitcnt lgkmcnt(0)')
    A('v_add_f32 v42, v42, v43', 'v_add_f32 v44, v44, v45', 'v_add_f32 v42, v42, v46', 'v_add_f32 v42, v42, v44')
    A('s_cmp_eq_u32 s60, 0', 's_cbranch_scc1 L_finq')
    pub4('v42', 48, 's43')
    A('s_branch L_fin1')
    A.label('L_finq')
    A(f'v_mov_b32_dpp v43, v42 row_shl:4 {DPPF} bound_ctrl:0', 'v_cvt_pk_bf16_f32 v40, v42, v43')
    A('s_mov_b32 exec_lo, 0x0f0f0f0f', 's_mov_b32 exec_hi, 0x0f0f0f0f')
    A('buffer_store_dwordx2 v[40:41], v15, s[44:47], s43 offen sc1')
    A.label('L_fin1')
    stamp(3)
    lds_signal(4)
    A('s_branch L_tailw')
    A.label('L_tailw0')
    A('s_waitcnt lgkmcnt(0)')
    tagcalc()
    A('s_cmp_eq_u32 s60, 2', 's_cbranch_scc0 L_twF2')
    A('v_lshrrev_b32 v8, 2, v0', 's_lshl_b32 s3, s4, 7', 'v_add_u32 v8, s3, v8', 'v_mul_u32_u24 v8, 3072, v8', 'v_lshl_add_u32 v8, v4, 4, v8')
    srd(48, 28, 640 * 3072)
    A('s_lshl_b32 s13, s61, 6', 's_mov_b32 m0, s62')
    dma_loop(8, 'v8', 49152, 'L_dma5')
    srd(48, 30, 640 * 3072)
    A('s_lshl_b32 s13, s61, 6')
    dma_loop(8, 'v8', 49152, 'L_dma6')
    A('s_branch L_tailw')
    A.label('L_twF2')
    A('s_cmp_eq_u32 s60, 3', 's_cbranch_scc0 L_tailw', 's_cmp_eq_u32 s4, 4', 's_cbranch_scc1 L_tailw')
    A('v_lshrrev_b32 v8, 1, v0', 'v_mul_u32_u24 v8, 1280, v8', 'v_and_b32 v12, 1, v0', 'v_lshl_add_u32 v8, v12, 4, v8')
    srd(48, 32, 1536 * 1280)
    A('s_mul_i32 s13, s4, 491520', 's_lshl_b32 s3, s61, 5', 's_add_u32 s13, s13, s3', 's_mov_b32 m0, s62')
    dma_loop(12, 'v8', 40960, 'L_dma4')
    A.label('L_tailw')
    A('s_setprio 0')
    xidpub('L_xp')
    srd(48, 24, 6144 * 1280)
    A('s_mul_i32 s13, s7, 245760', 's_mul_i32 s3, s8, 160', 's_add_u32 s13, s13, s3')
    A('s_mul_i32 s3, s4, 6144', f's_add_u32 m0, s3, {L_WO}', 's_mul_i32 s3, s4, 384', 'v_add_u32 v9, s3, v0')
    wo_addr = ['v_mul_u32_u24 v8, 6554, v9', 'v_lshrrev_b32 v8, 16, v8', 'v_mul_u32_u24 v8, 1120, v8', 'v_lshl_add_u32 v8, v9, 4, v8']
    A(*wo_addr)
    dma_loop(6, 'v8', None, 'L_dma3', ['v_add_u32 v9, 64, v9'] + wo_addr)
    stamp(4)
    A(f's_mov_b32 s58, {hex(LOG2E)}', 's_mov_b32 s56, 0', 's_mov_b32 s57, -1', 's_mov_b32 s12, 0')
    srd(52, 38, 5120)
    A('s_mul_i32 s14, s7, 5120', f's_add_u32 s14, s14, {WS_REC}')
    A('s_mul_i32 s15, s8, 640', 's_add_u32 s15, s15, s14')
    A('s_lshl_b32 s3, s4, 10', "s_add_u32 s14, s14, s3")
    A('s_lshl_b32 s3, s4, 6', 'v_add_u32 v12, s3, v0', 'v_mul_u32_u24 v15, 1639, v12', 'v_lshrrev_b32 v15, 16, v15')
    A('v_mul_u32_u24 v16, 40, v15', 'v_sub_u32 v16, v12, v16', 'v_cmp_gt_u32 s[96:97], 33, v16')
    A('v_add_u32 v15, v15, v12', 'v_lshlrev_b32 v15, 4, v15', f'v_add_u32 v15, {L_RC}, v15')
    A('v_and_b32 v12, 7, v0', 'v_mul_u32_u24 v16, 656, v12', 'v_lshl_add_u32 v16, v6, 4, v16', f'v_add_u32 v16, {L_RC}, v16')
    A('v_and_b32 v17, 1, v6', 'v_lshl_add_u32 v17, v17, 2, v4', 'v_mul_u32_u24 v17, 656, v17', f'v_add_u32 v17, {L_RC + 512}, v17')
    A('v_lshrrev_b32 v19, 5, v0', 'v_lshlrev_b32 v18, 2, v19', 'v_xor_b32 v12, v12, v18', 'v_lshlrev_b32 v18, 10, v12', f'v_add_u32 v18, {L_REC}, v18')
    A('v_and_b32 v12, 31, v0', 'v_lshlrev_b32 v12, 4, v12', 'v_lshl_add_u32 v19, v19, 12, v12', f'v_add_u32 v19, {L_REC}, v19')
    A('v_mul_u32_u24 v12, 960, v6', 'v_lshl_add_u32 v12, v4, 3, v12', 's_lshl_b32 s3, s4, 5', f's_add_u32 s3, s3, {L_WO}', 'v_add_u32 v12, s3, v12')
    A('v_mul_u32_u24 v7, 160, v5', 'v_add_u32 v7, v7, v12', 'v_and_b32 v8, 1, v5', 'v_mul_u32_u24 v8, 160, v8', 'v_add_u32 v8, v8, v12', 'v_add_u32 v8, 640, v8')
    A('s_mul_i32 s43, s8, 5', 's_add_u32 s43, s43, s4', 's_lshl_b32 s43, s43, 5', 's_add_u32 s43, s43, s7', 's_lshl_b32 s43, s43, 9', f's_add_u32 s43, s43, {WS_Y}')
    A('s_cmp_eq_u32 s60, 2', 's_cselect_b32 s3, 6, 5', 's_add_u32 s13, s3, 3')
    A('v_lshlrev_b32 v9, s13, v6', 'v_lshlrev_b32 v20, s3, v5', 'v_add_u32 v9, v9, v20', 'v_lshl_add_u32 v9, v4, 3, v9', 'v_add_u32 v9, s62, v9')
    def wofrags():
        for kk in range(8): tr(64 + 4*kk, 'v7', 3840*kk, 3840*kk, 'v8')
    def f1frags():
        for a_ in range(4):
            for ks in range(4):
                o = 8192 * (a_ >> 1) + 2048 * ks + 32 * (a_ & 1)
                tr(64 + 16*a_ + 4*ks, 'v9', o, o + 256)
    def dsum(r, m):
        A(f'ds_read2st64_b32 v[{r}:{r+1}], v14 offset0:{2*m} offset1:{4+2*m}', f'ds_read2st64_b32 v[{r+2}:{r+3}], v14 offset0:{8+2*m} offset1:{12+2*m}', f'ds_read_b32 v{r+4}, v14 offset:{4096+512*m}')
    A('s_waitcnt vmcnt(0)')
    lds_signal(8)
    A('s_cmp_eq_u32 s60, 2', 's_cbranch_scc0 L_preW')
    A(f's_add_u32 s3, s63, {WS_MOD + 3*10240}', f's_add_u32 s13, s63, {WS_MOD + 4*10240}')
    A.label('L_scpoll')
    A('buffer_load_dwordx4 v[36:39], v2, s[44:47], s13 offen sc1', 'buffer_load_dwordx4 v[40:43], v2, s[44:47], s13 offen offset:128 sc1')
    A('buffer_load_dwordx4 v[44:47], v2, s[44:47], s3 offen sc1', 'buffer_load_dwordx4 v[48:51], v2, s[44:47], s3 offen offset:128 sc1')
    A('s_waitcnt vmcnt(0)')
    check_tags(['v38', 'v42', 'v46', 'v50'], 'v52', 'L_scpoll', 8)
    if not lin:
        unpack(20, [36, 37, 40, 41]); unpack(28, [44, 45, 48, 49]); plus1(20); rnd8(20, 36)
    else:
        f1frags()
        unpack(20, [36, 37, 40, 41]); plus1(20)
        A('v_mov_b32 v60, v44', 'v_mov_b32 v61, v45', 'v_mov_b32 v62, v48', 'v_mov_b32 v63, v49')
        rnd8(20, 40)
        for rnd_, cnt in ((0, 20), (1, 24)):
            if rnd_:
                for i in range(4): A(f'v_mov_b32 v{40+i}, v{60+i}')
            ashift(40)
            A('s_waitcnt lgkmcnt(0)')
            dd = [32, 36, 56, 60] if rnd_ else [32, 36, 56, 28]
            for ks in range(4):
                for a_ in range(4): mfma(dd[a_], 40 + 4*ks, 64 + 16*a_ + 4*ks, ks == 0)
            if rnd_: lds_wait(20, 7, 'L_c1')
            A('s_mov_b64 exec, 0xffff')
            for a_ in range(4): A(f'ds_write_b128 v13, v[{dd[a_]}:{dd[a_]+3}] offset:{256*a_}')
            lds_signal(cnt)
            A('s_cmp_lt_u32 s4, 2', f's_cbranch_scc0 L_c2{rnd_}')
            lds_wait(cnt, 5, f'L_c3{rnd_}')
            dsum(44, 0); dsum(50, 1)
            A('s_waitcnt lgkmcnt(0)')
            for r, d in ((44, 28 + rnd_), (50, 30 + rnd_)):
                A(f'v_add_f32 v{r}, v{r}, v{r+1}', f'v_add_f32 v{r+2}, v{r+2}, v{r+3}', f'v_add_f32 v{r}, v{r}, v{r+4}', f'v_add_f32 v{d}, v{r}, v{r+2}')
            lds_signal(cnt)
            A.label(f'L_c2{rnd_}')
    A.label('L_preW')
    lds_wait(8, 5, 'L_wow', slp=4)
    wofrags()
    A('v_mov_b32 v12, 0')
    A('s_cmp_eq_u32 s60, 2', 's_cbranch_scc0 L_preB')
    A('v_lshlrev_b32 v11, 3, v4', 's_lshl_b32 s3, s4, 5', 'v_add_u32 v12, s3, v11')
    A('s_branch L_preD')
    A.label('L_preB')
    A('s_cmp_eq_u32 s60, 3', 's_cbranch_scc0 L_preR')
    A('s_lshl_b32 s13, s61, 8', f's_add_u32 s13, s13, {WS_MOD + 5*10240}', 'v_mov_b32 v12, v3', 'v_lshrrev_b32 v21, 2, v0')
    A('s_branch L_preG0')
    A.label('L_preR')
    A('s_cmp_eq_u32 s59, -1', 's_cbranch_scc1 L_preD')
    A('v_and_b32 v21, 15, v0', 'v_and_b32 v22, 1, v6', 'v_lshrrev_b32 v23, 1, v6', 'v_lshl_add_u32 v22, v22, 1, v23')
    vpub('v12', 'v21', 'v22', 'v23')
    srd(48, 16, 5120)
    A('v_mul_u32_u24 v23, 1280, v22', 'v_lshl_add_u32 v23, v21, 1, v23', 's_lshl_b32 s3, s59, 5')
    A('buffer_load_ushort v20, v23, s[48:51], s3 offen')
    A('s_lshl_b32 s13, s59, 8', f's_add_u32 s13, s13, {WS_MOD + 2*10240}')
    A.label('L_preG0')
    A('v_and_b32 v11, -16, v12', 'v_and_b32 v23, 2, v21', 'v_cmp_eq_u32 s[98:99], 0, v23', 'v_and_b32 v22, 1, v21', 'v_lshlrev_b32 v22, 4, v22', 'v_sub_u32 v22, 16, v22')
    A.label('L_preG')
    A('buffer_load_dwordx4 v[24:27], v11, s[44:47], s13 offen sc1')
    A('s_waitcnt vmcnt(0)')
    check_tags(['v26'], None, 'L_preG', 8)
    A('v_cndmask_b32 v24, v25, v24, s[98:99]', 'v_lshlrev_b32 v21, v22, v24', 'v_and_b32 v21, 0xffff0000, v21')
    A('v_lshlrev_b32 v20, 16, v20')
    A.label('L_preD')
    if fast:
        A('s_cmp_eq_u32 s4, 0', 's_cbranch_scc0 L_noxid')
        A('s_getreg_b32 s42, hwreg(HW_REG_XCC_ID)', 's_lshl_b32 s13, s5, 12', f's_add_u32 s13, s13, {WS_XID}', 'v_lshlrev_b32 v38, 7, v0', 's_mov_b32 exec_hi, 0')
        A.label('L_xid')
        A('s_sleep 127', 'buffer_load_dwordx2 v[40:41], v38, s[44:47], s13 offen sc1', 's_waitcnt vmcnt(0)')
        check_tags(['v41'], None, 'L_xid', 0)
        A('v_cmp_ne_u32 vcc, s42, v40', 's_mov_b32 exec_hi, -1', 's_cmp_eq_u64 vcc, 0', 's_cselect_b32 s12, 1, 0')
        A('s_cmp_eq_u32 s95, 0', 's_cselect_b32 s12, 0, s12', 'v_mov_b32 v40, s12', f'ds_write_b32 v10, v40 offset:{L_FAST}')
        A.label('L_noxid')
    A('v_mov_b32 v43, s9')
    A('s_waitcnt vmcnt(0) lgkmcnt(0)')
    stamp(5)
    A('s_setprio 2')
    A('s_barrier')
    stamp(6)
    A('s_cmp_eq_u32 s4, 0', 's_cbranch_scc0 L_O')
    A('ds_read_b32 v36, v18 offset:524', 'ds_read_b32 v37, v18 offset:12')
    for i in range(4): A(f'ds_read_b128 v[{96+8*i}:{99+8*i}], v19 offset:{1024*i}', f'ds_read_b128 v[{100+8*i}:{103+8*i}], v19 offset:{1024*i+512}')
    A('s_waitcnt lgkmcnt(8)')
    A(f'v_max_f32_dpp v38, v36, v36 quad_perm:[1,0,3,2] {DPPF}', f'v_max_f32_dpp v38, v38, v38 quad_perm:[2,3,0,1] {DPPF}', f'v_max_f32_dpp v38, v38, v38 row_half_mirror {DPPF}')
    A('v_sub_f32 v36, v36, v38', 'v_mul_f32 v36, s58, v36', 'v_exp_f32 v36, v36', 'v_mul_f32 v37, v37, v36')
    lch = [f'v_add_f32_dpp v37, v37, v37 quad_perm:[1,0,3,2] {DPPF}', f'v_add_f32_dpp v37, v37, v37 quad_perm:[2,3,0,1] {DPPF}', f'v_add_f32_dpp v37, v37, v37 row_half_mirror {DPPF}', 'v_rcp_f32 v39, v37']
    for i in range(4):
        A(f's_waitcnt lgkmcnt({6 - 2*i})')
        for k in range(3):
            op = 'v_mul_f32_dpp' if i == 0 else 'v_fmac_f32_dpp'
            A(f'{op} v{56+2*k}, v36, v{96+8*i+k} row_newbcast:{i} {DPPF}', f'{op} v{57+2*k}, v36, v{100+8*i+k} row_newbcast:{i} {DPPF}')
        A(lch[i])
    A('v_permlane32_swap_b32 v58, v59', 'v_permlane32_swap_b32 v56, v60', 'v_permlane32_swap_b32 v57, v61')
    A('v_add_f32 v58, v58, v59', 'v_add_f32 v56, v56, v60', 'v_add_f32 v57, v57, v61')
    A('v_mul_f32 v58, v58, v39', 'v_mul_f32 v56, v56, v39', 'v_mul_f32 v57, v57, v39')
    A('v_mov_b32 v59, v58', 'v_cvt_pk_bf16_f32 v40, v56, v57', 'v_cvt_pk_bf16_f32 v42, v56, v57')
    A('v_permlane32_swap_b32 v58, v59', 'v_permlane32_swap_b32 v40, v42')
    A('v_cvt_pk_bf16_f32 v41, v58, v59')
    A('v_cndmask_b32 v40, v40, v38, s[56:57]', 'v_cndmask_b32 v41, v41, v37, s[56:57]')
    A('s_mov_b32 exec_hi, 1')
    if fast:
        A('s_cmp_eq_u32 s12, 1', 's_cbranch_scc0 L_slowrec')
        A('buffer_store_dwordx4 v[40:43], v1, s[44:47], s15 offen')
        A('s_branch L_recdone')
        A.label('L_slowrec')
    A('buffer_store_dwordx4 v[40:43], v1, s[44:47], s15 offen sc1')
    A.label('L_recdone')
    A('s_mov_b32 exec_hi, -1')
    A.label('L_O')
    stamp(7)
    A('s_mov_b64 exec, s[96:97]')
    A.label('L_opoll')
    A('buffer_load_dwordx4 v[44:47], v1, s[44:47], s14 offen sc1')
    A('s_waitcnt vmcnt(0)')
    check_tags(['v47'], None, 'L_opoll', sleep)
    A('v_mov_b32 v47, 0')
    A('ds_write_b128 v15, v[44:47]')
    A('s_mov_b64 exec, -1')
    A('s_waitcnt lgkmcnt(0)')
    A('s_barrier')
    stamp(8)
    A('ds_read_b64 v[36:37], v17')
    for kk in range(8): A(f'ds_read_b128 v[{96+4*kk}:{99+4*kk}], v16 offset:{64*kk}')
    A('v_mov_b32 v46, s9', 'v_mov_b32 v47, s9')
    A('s_waitcnt lgkmcnt(8)')
    A(f'v_max_f32_dpp v38, v36, v36 quad_perm:[1,0,3,2] {DPPF}')
    for kk in range(8):
        A(f's_waitcnt lgkmcnt({7-kk})')
        mfma(40, 96 + 4*kk, 64 + 4*kk, kk == 0)
        if kk == 0: A('v_sub_f32 v36, v36, v38', 'v_mul_f32 v36, s58, v36')
        if kk == 1: A('v_exp_f32 v36, v36')
        if kk == 2: A('v_mul_f32 v36, v36, v37')
        if kk == 3: A(f'v_add_f32_dpp v37, v36, v36 quad_perm:[1,0,3,2] {DPPF}')
        if kk == 4: A('v_rcp_f32 v37, v37')
        if kk == 5: A('v_mul_f32 v36, v36, v37')
    A(f'v_mul_f32_dpp v44, v36, v40 quad_perm:[0,0,0,0] {DPPF}', f'v_mul_f32_dpp v45, v36, v42 quad_perm:[2,2,2,2] {DPPF}')
    A(f'v_fmac_f32_dpp v44, v36, v41 quad_perm:[1,1,1,1] {DPPF}', f'v_fmac_f32_dpp v45, v36, v43 quad_perm:[3,3,3,3] {DPPF}')
    A('s_mov_b32 exec_hi, 0')
    A('buffer_store_dwordx4 v[44:47], v1, s[44:47], s43 offen sc1')
    A('s_mov_b32 exec_hi, -1')
    stamp(9)
    A('s_mul_i32 s14, s5, 10240', f's_add_u32 s14, s14, {WS_X1}')
    A('s_cmp_eq_u32 s60, 3', 's_cbranch_scc1 L_F2')
    A('s_cmp_eq_u32 s60, 2', 's_cbranch_scc0 L_R')
    f1frags()
    A('s_add_u32 s3, s63, s14', 's_mov_b32 s13, 0x3f803f80')
    A.label('L_xpoll')
    A('buffer_load_dwordx4 v[48:51], v2, s[44:47], s3 offen sc1', 'buffer_load_dwordx4 v[52:55], v2, s[44:47], s3 offen offset:128 sc1')
    A('s_waitcnt vmcnt(0)')
    check_tags(['v50', 'v54'], 'v39', 'L_xpoll', xs)
    stamp(10)
    k0 = -2.0 * 1.4426950408889634 * 0.7978845608028654
    if lin:
        unpack(56, [48, 49, 52, 53])
        for i in range(4): pk('mul', 56+2*i, 56+2*i, 20+2*i)
        for i in range(4): A(f'v_cvt_pk_bf16_f32 v{40+i}, v{56+2*i}, v{57+2*i}')
        side = []
        for i, r in enumerate([48, 49, 52, 53]):
            side += [f'v_dot2_f32_bf16 v56, v{r}, s13, {"0" if i == 0 else "v56"}', f'v_dot2_f32_bf16 v57, v{r}, v{r}, {"0" if i == 0 else "v57"}']
        sh = lambda ks: [f'v_mov_b32_dpp v{40+4*ks+i}, v{40+i} row_shl:{4*ks} {DPPF} bound_ctrl:0' for i in range(4)]
        red = [f'v_add_f32_dpp v56, v56, v56 row_ror:4 {DPPF}', f'v_add_f32_dpp v57, v57, v57 row_ror:4 {DPPF}', f'v_add_f32_dpp v56, v56, v56 row_ror:8 {DPPF}', f'v_add_f32_dpp v57, v57, v57 row_ror:8 {DPPF}',
               'v_permlane16_swap_b32 v56, v57', 'v_add_f32 v56, v56, v57', 'v_mov_b32 v58, v56', 'v_permlane32_swap_b32 v56, v58', 'v_add_f32 v56, v56, v58', 'v_mov_b32 v57, v56', 'v_permlane16_swap_b32 v56, v57']
        fill = {0: sh(1)[:2], 1: sh(1)[2:], 2: side[:4], 3: side[4:], 4: sh(2)[:2], 5: sh(2)[2:], 6: red[:2], 7: red[2:4], 8: sh(3)[:2], 9: sh(3)[2:], 10: red[4:6], 11: red[6:7], 12: red[7:9], 13: red[9:10], 14: red[10:]}
        dd = [20, 24, 32, 36]
        A('s_waitcnt lgkmcnt(0)')
        for ks in range(4):
            for a_ in range(4):
                mfma(dd[a_], 40 + 4*ks, 64 + 16*a_ + 4*ks, ks == 0)
                A(*fill.get(4*ks + a_, []))
        A('s_mov_b64 exec, 15', f'ds_write_b64 v12, v[56:57] offset:{L_ST}')
        A('s_lshl_b32 s3, s61, 1', 's_add_u32 s3, s3, s4', 's_lshl_b32 s3, s3, 8', f's_add_u32 s3, s3, {WS_G}')
        A('s_mov_b64 exec, 0xffff')
        for a_ in range(4): A(f'ds_write_b128 v13, v[{dd[a_]}:{dd[a_]+3}] offset:{256*a_}')
        A('s_mov_b64 exec, -1', 'v_mov_b32 v58, s9', 'v_mov_b32 v59, s9')
        A('s_waitcnt lgkmcnt(0)')
        A('s_barrier')
        A('s_cmp_lt_u32 s4, 2', 's_cbranch_scc0 L_tend')
        A(f'ds_read2_b64 v[64:67], v11 offset0:{L_ST//8} offset1:{L_ST//8+4}', f'ds_read2_b64 v[68:71], v11 offset0:{L_ST//8+8} offset1:{L_ST//8+12}', f'ds_read_b64 v[72:73], v11 offset:{L_ST+128}')
        dsum(40, 0); dsum(46, 1)
        A(f'v_mov_b32 v52, {hex(f2u(k0))}', f'v_mov_b32 v38, {hex(f2u(1e-5))}')
        A('s_waitcnt lgkmcnt(6)')
        pk('add', 64, 64, 66); pk('add', 68, 68, 70); pk('add', 72, 72, 64); pk('add', 72, 72, 68)
        A(f'v_mul_f32 v72, {hex(f2u(1/640))}, v72', f'v_fmac_f32 v38, {hex(f2u(1/640))}, v73', 'v_fma_f32 v38, -v72, v72, v38')
        A('s_waitcnt lgkmcnt(3)')
        A('v_add_f32 v40, v40, v41', f'v_max_f32 v38, {hex(f2u(1e-5))}, v38', 'v_add_f32 v42, v42, v43', 'v_rsq_f32 v38, v38', 'v_add_f32 v40, v40, v44', 'v_fma_f32 v42, -v72, v28, v42', 'v_add_f32 v40, v40, v42')
        A('s_waitcnt lgkmcnt(0)')
        A('v_fma_f32 v40, v40, v38, v29', 'v_add_f32 v46, v46, v47', 'v_mul_f32 v41, v40, v40', 'v_add_f32 v48, v48, v49', f'v_fmac_f32 v52, {hex(f2u(k0*0.044715))}, v41', 'v_add_f32 v46, v46, v50', 'v_mul_f32 v52, v52, v40')
        A('v_fma_f32 v48, -v72, v30, v48', 'v_exp_f32 v52, v52', 'v_add_f32 v46, v46, v48', 'v_add_f32 v52, 1.0, v52', 'v_fma_f32 v46, v46, v38, v31', 'v_rcp_f32 v52, v52', 'v_mul_f32 v40, v40, v46', 'v_mul_f32 v40, v40, v52')
    else:
        for i, r in enumerate([48, 49, 52, 53]):
            A(f'v_dot2_f32_bf16 v36, v{r}, s13, {"0" if i == 0 else "v36"}', f'v_dot2_f32_bf16 v37, v{r}, v{r}, {"0" if i == 0 else "v37"}')
        unpack(56, [48, 49])
        allreduce_b('v36', 'v37', 'v38')
        A('s_mov_b64 exec, 15', f'ds_write_b64 v12, v[36:37] offset:{L_ST}', 's_mov_b64 exec, -1')
        unpack(60, [52, 53])
        A('s_lshl_b32 s3, s61, 1', 's_add_u32 s3, s3, s4', 's_lshl_b32 s3, s3, 8', f's_add_u32 s3, s3, {WS_G}', f'v_mov_b32 v38, {hex(f2u(1e-5))}')
        A('s_waitcnt lgkmcnt(0)')
        A('s_barrier')
        A(f'ds_read2_b64 v[40:43], v11 offset0:{L_ST//8} offset1:{L_ST//8+4}', f'ds_read2_b64 v[44:47], v11 offset0:{L_ST//8+8} offset1:{L_ST//8+12}', f'ds_read_b64 v[36:37], v11 offset:{L_ST+128}')
        A('s_waitcnt lgkmcnt(0)')
        pk('add', 40, 40, 42); pk('add', 44, 44, 46); pk('add', 36, 36, 40); pk('add', 36, 36, 44)
        A(f'v_mul_f32 v36, {hex(f2u(1/640))}, v36', f'v_fmac_f32 v38, {hex(f2u(1/640))}, v37', 'v_fma_f32 v38, -v36, v36, v38')
        for i in range(2): pk('add', 56+2*i, 56+2*i, 36, 'op_sel_hi:[1,0] neg_lo:[0,1] neg_hi:[0,1]')
        A(f'v_max_f32 v38, {hex(f2u(1e-5))}, v38', 'v_rsq_f32 v38, v38')
        for i in range(2, 4): pk('add', 56+2*i, 56+2*i, 36, 'op_sel_hi:[1,0] neg_lo:[0,1] neg_hi:[0,1]')
        for i in range(4): pk('mul', 56+2*i, 56+2*i, 20+2*i)
        for i in range(4): A(f'v_pk_fma_f32 v[{56+2*i}:{57+2*i}], v[{56+2*i}:{57+2*i}], v[38:39], v[{28+2*i}:{29+2*i}] op_sel_hi:[1,0,1]')
        for i in range(4): A(f'v_cvt_pk_bf16_f32 v{40+i}, v{56+2*i}, v{57+2*i}')
        A('v_mov_b32 v58, s9', 'v_mov_b32 v59, s9')
        for ks in range(4):
            for a_ in range(4):
                mfma(20 + 4*a_, 40 + 4*ks, 64 + 16*a_ + 4*ks, ks == 0)
                if ks < 3 and a_ < 2:
                    for i in (2*a_, 2*a_+1): A(f'v_mov_b32_dpp v{44+4*ks+i}, v{40+i} row_shl:{4*ks+4} {DPPF} bound_ctrl:0')
        A('s_mov_b64 exec, 0xffff')
        for a_ in range(4): A(f'ds_write_b128 v13, v[{20+4*a_}:{23+4*a_}] offset:{256*a_}')
        A('s_mov_b64 exec, -1')
        A('s_waitcnt lgkmcnt(0)')
        A('s_barrier')
        A('s_cmp_lt_u32 s4, 2', 's_cbranch_scc0 L_tend')
        for m in range(2):
            r = 40 + 6 * m
            A(f'ds_read2st64_b32 v[{r}:{r+1}], v14 offset0:{2*m} offset1:{4+2*m}', f'ds_read2st64_b32 v[{r+2}:{r+3}], v14 offset0:{8+2*m} offset1:{12+2*m}', f'ds_read_b32 v{r+4}, v14 offset:{4096+512*m}')
        k0 = -2.0 * 1.4426950408889634 * 0.7978845608028654
        A(f'v_mov_b32 v52, {hex(f2u(k0))}')
        A('s_waitcnt lgkmcnt(3)')
        A('v_add_f32 v40, v40, v41', 'v_add_f32 v42, v42, v43', 'v_add_f32 v40, v40, v44', 'v_add_f32 v40, v40, v42', 'v_mul_f32 v41, v40, v40')
        A('s_waitcnt lgkmcnt(0)')
        A('v_add_f32 v46, v46, v47', f'v_fmac_f32 v52, {hex(f2u(k0*0.044715))}, v41', 'v_add_f32 v48, v48, v49', 'v_mul_f32 v52, v52, v40', 'v_add_f32 v46, v46, v50')
        A('v_exp_f32 v52, v52', 'v_add_f32 v46, v46, v48', 'v_add_f32 v52, 1.0, v52', 'v_mul_f32 v40, v40, v46', 'v_rcp_f32 v52, v52', 'v_mul_f32 v40, v40, v52')
    pub4('v40', 56, 's3')
    stamp(11)
    A('s_branch L_tend')
    A.label('L_R')
    A('s_cmp_eq_u32 s59, -1', 's_cbranch_scc1 L_tend')
    A('s_lshl_b32 s3, s59, 14', f's_add_u32 s3, s3, {WS_Y}', 's_add_u32 s13, s3, 4096', 's_add_u32 s42, s3, 8192', 's_add_u32 s43, s3, 12288')
    A('s_lshl_b32 s59, s59, 8', 's_add_u32 s14, s14, s59')
    A('v_mov_b32 v42, s9', 'v_mov_b32 v43, s9', 's_mov_b32 s15, 15')
    if fast: A(f'ds_read_b32 v36, v10 offset:{L_FAST}', 's_waitcnt lgkmcnt(0)', 'v_readfirstlane_b32 s12, v36')
    A.label('L_ypoll')
    for g in range(4):
        A(f's_bitcmp1_b32 s15, {g}', f's_cbranch_scc0 L_yl{g}')
        for i in range(4): A(f'buffer_load_dwordx4 v[{64+16*g+4*i}:{67+16*g+4*i}], v1, s[44:47], {["s3","s13","s42","s43"][g]} offen offset:{1024*i} sc1')
        A.label(f'L_yl{g}')
    A('s_waitcnt vmcnt(0)')
    for g in range(4):
        r = 64 + 16 * g
        A(f's_bitcmp1_b32 s15, {g}', f's_cbranch_scc0 L_yc{g}')
        A(f'v_xor_b32 v36, s9, v{r+2}')
        for i in range(1, 4): A(f'v_bitop3_b32 v36, v36, v{r+2+4*i}, s9 bitop3:0xf6')
        A('v_cmp_ne_u32 vcc, 0, v36')
        pk('add', r, r, r + 4); pk('add', r + 8, r + 8, r + 12)
        A(f's_cbranch_vccnz L_yc{g}')
        pk('add', r, r, r + 8); A(f's_bitset0_b32 s15, {g}')
        A.label(f'L_yc{g}')
    A('s_cmp_eq_u32 s15, 0', 's_cbranch_scc1 L_yok')
    if ysleep: A(f's_sleep {ysleep}')
    A('s_sub_u32 s95, s95, 1', 's_cbranch_scc0 L_ypoll', 's_mov_b32 s95, 0')
    A.label('L_yok')
    stamp(10)
    pk('add', 64, 64, 80); pk('add', 96, 96, 112); pk('add', 44, 64, 96)
    A('v_permlane32_swap_b32 v44, v45', 'v_add_f32 v44, v44, v45', 'v_fma_f32 v44, v44, v21, v20')
    A(f'v_mov_b32_dpp v46, v44 quad_perm:[1,1,3,3] {DPPF}', 'v_cvt_pk_bf16_f32 v40, v44, v46', f'v_mov_b32_dpp v41, v40 quad_perm:[2,2,2,2] {DPPF}')
    A('s_mov_b32 exec_lo, 0x11111111', 's_mov_b32 exec_hi, 0x11111111')
    if fast:
        A('s_cmp_eq_u32 s12, 1', 's_cbranch_scc0 L_slowx1')
        A('buffer_store_dwordx4 v[40:43], v12, s[44:47], s14 offen')
        A('s_branch L_x1done')
        A.label('L_slowx1')
    A('buffer_store_dwordx4 v[40:43], v12, s[44:47], s14 offen sc1')
    A.label('L_x1done')
    stamp(11)
    A('s_branch L_tend')
    A.label('L_F2')
    A('s_cmp_eq_u32 s4, 4', 's_cbranch_scc1 L_tend')
    for ks in range(12): tr(64 + 4*ks, 'v9', 1024*ks, 1024*ks + 128)
    A('s_lshl_b32 s3, s61, 8', 's_add_u32 s14, s14, s3')
    A.label('L_x2poll')
    A('buffer_load_dwordx4 v[24:27], v11, s[44:47], s14 offen sc1', 's_waitcnt vmcnt(0)')
    check_tags(['v26'], None, 'L_x2poll', 2)
    A('v_cndmask_b32 v24, v25, v24, s[98:99]', 'v_lshlrev_b32 v20, v22, v24', 'v_and_b32 v20, 0xffff0000, v20')
    A('s_mul_i32 s3, s4, 6144', f's_add_u32 s3, s3, {WS_G}', 's_add_u32 s13, s3, 4096', 's_lshl_b32 s42, s61, 5')
    A('v_lshrrev_b32 v23, 2, v0', 'v_lshlrev_b32 v23, 1, v23', 'v_mul_u32_u24 v24, 1280, v4', 'v_add_u32 v23, v23, v24')
    A.label('L_gpoll')
    for i in range(6):
        A(f'buffer_load_dwordx4 v[{36+4*i}:{39+4*i}], v2, s[44:47], {"s3" if i < 4 else "s13"} offen offset:{2048*((i//2)%2)+128*(i%2)} sc1')
    A('s_waitcnt vmcnt(0)')
    check_tags([f'v{38+4*i}' for i in range(6)], 'v60', 'L_gpoll', 0)
    stamp(10)
    for n in range(12):
        blk, ks = divmod(n, 4)
        for i in range(4):
            sr = 36 + 8 * blk + (i & 1) + 4 * (i >> 1)
            if ks == 0: A(f'v_mov_b32 v{112+i}, v{sr}')
            else: A(f'v_mov_b32_dpp v{112+4*ks+i}, v{sr} row_shl:{4*ks} {DPPF} bound_ctrl:0')
        if n: mfma(60, 112 + 4*((n-1) % 4), 64 + 4*(n-1), n == 1)
    mfma(60, 124, 108, False)
    A('s_mov_b64 exec, 0xffff')
    A('ds_write_b128 v13, v[60:63]')
    A('s_mov_b64 exec, -1')
    A('s_waitcnt lgkmcnt(0)')
    A('s_barrier')
    A('s_cmp_eq_u32 s4, 0', 's_cbranch_scc0 L_tend')
    A('ds_read2st64_b32 v[40:41], v14 offset0:0 offset1:4', 'ds_read2st64_b32 v[42:43], v14 offset0:8 offset1:12')
    A('s_waitcnt lgkmcnt(0)')
    pk('add', 40, 40, 42)
    A('v_add_f32 v40, v40, v41', 'v_fma_f32 v40, v40, v21, v20', 'v_cvt_pk_bf16_f32 v40, v40, v40')
    A(f'buffer_store_short v40, v23, s[52:55], s42 offen {OP}')
    stamp(11)
    A('s_cmp_eq_u32 s61, 0', 's_cbranch_scc0 L_tend')
    A('v_mov_b32 v41, s9', 's_mov_b64 exec, 1')
    A(f'buffer_store_dword v41, v10, s[44:47], 0 offen {OP}')
    A.label('L_tend')
    if stamps: A('s_memtime s[90:91]', 's_memrealtime s[92:93]')
    stamp_flush(15)
    A.label('L_end')
    A('s_endpgm')

    body = A.fix()
    hdr = open('adaLN_cond__gqa_block_cached__geglu_ffn__decode.s.ref').read().split('\n')
    hdr = [l for l in hdr if l.startswith(';') and '@launch' not in l and 'Override' not in l and 'grid=ceil' not in l]
    out = hdr + [f'; @launch grid=(256,1,1) block=(832,1,1) lds={LDS_SIZE}',
                 '.amdgcn_target "amdgcn-amd-amdhsa--gfx950"', '.text', f'.globl {KNAME}', '.p2align 8', f'.type {KNAME},@function', f'{KNAME}:']
    out += [('' if l.endswith(':') else '    ') + l for l in body]
    out += ['.section .rodata,"a"', '.p2align 6', f'.amdhsa_kernel {KNAME}',
            '  .amdhsa_next_free_vgpr 128', '  .amdhsa_next_free_sgpr 100', '  .amdhsa_accum_offset 128',
            '  .amdhsa_float_denorm_mode_32 3',
            '  .amdhsa_group_segment_fixed_size 0', '  .amdhsa_kernarg_size 112', '  .amdhsa_user_sgpr_count 2',
            '  .amdhsa_user_sgpr_kernarg_segment_ptr 1', '  .amdhsa_system_sgpr_workgroup_id_x 1', '.end_amdhsa_kernel']
    return '\n'.join(out) + '\n'

if __name__ == '__main__':
    kw = eval('dict(' + (sys.argv[2] if len(sys.argv) > 2 else '') + ')')
    open(sys.argv[1], 'w').write(gen(**kw))
```

```python
import struct, sys
from asmgen import Asm
KNAME = 'adaLN_cond__gqa_block_cached__geglu_ffn__decode_kernel'
def f2u(x): return struct.unpack('<I', struct.pack('<f', x))[0]
LOG2E = f2u(1.4426950408889634)
SCALE = f2u(192 ** -0.5)
DPPF = 'row_mask:0xf bank_mask:0xf'

WS_EP = 0
WS_XID = 0x110000
WS_X1 = 0xfa000
WS_G = 0x5000
WS_MOD = 0xb000
WS_Q = 0x1a000
WS_REC = 0x32000
WS_Y = 0x5a000
WS_STAMP = 0x180000
WS_SIZE = 0x200000
L_CNT = 0
L_FAST = 16
L_ST = 128
L_D = 512
L_RC = 5632
L_REC = 10880
L_WO = 19072
L_Q = 49792
L_W = 50176
LDS_SIZE = L_W + 81920
assert L_W % 128 == 0

def ngroups(D):
    out = []
    for i in range(256):
        x = i & 7; k = i >> 3; p = k >> 1
        d = 0 if p >= 11 else D[3] if p >= 9 else D[2] if x + 8 * p >= 60 else D[0] if p < 5 else D[1]
        out.append(128 + d if k & 1 else 128 - d)
    return out

def rwaves():
    ty, _ = roles(); out = []
    for i in range(256):
        k = i >> 3; p = k >> 1
        if ty[i] in (2, 3): continue
        r = (p - 9 if p < 11 else k - 20) if ty[i] == 0 else 12 + p
        if r < 20: out.append(i)
    return out

def roles():
    ty, crit = [], []
    for i in range(256):
        x = i & 7; k = i >> 3; p = k >> 1; sp = k & 1; m = x + 8 * p
        if p >= 11: t = 0
        elif sp == 0: t = 3 if p < 5 else 2
        elif p >= 9: t = 0
        else: t = 1 if m < 60 else 4
        ty.append(t); crit.append(t == 1 and m < 20)
    return ty, crit

def gen(H0=12, QP=2, D=(4, 4, 8, 2), fast=1, sleep=1, qsleep=4, xs=0, stamps=False, POL='nt', KP=None, VP=None, WP='', st0=0, OP='', ysleep=1, lin=1):
    KP = POL if KP is None else KP; VP = POL if VP is None else VP
    A = Asm()
    def stamp(i):
        if stamps: A(f's_memrealtime s[{64+2*i}:{65+2*i}]')
    def stamp_flush(n):
        if not stamps: return
        A('s_waitcnt lgkmcnt(0)')
        A('s_lshl_b32 s60, s2, 4', 's_add_u32 s60, s60, s4', 's_lshl_b32 s60, s60, 6', f's_add_u32 s60, s60, {WS_STAMP}')
        A('v_mov_b32 v126, 0', 's_mov_b64 exec, 1')
        for i in range(n):
            A(f'v_mov_b32 v127, s{64+2*i}', f'buffer_store_dword v127, v126, s[44:47], s60 offen offset:{4*i}')
        A('s_waitcnt vmcnt(0)')
    def rnd(dst, src, tmp=None):
        t = tmp or dst
        A(f'v_cvt_pk_bf16_f32 {t}, {src}, {src}', f'v_lshlrev_b32 {dst}, 16, {t}')
    def srd(base, ptr, size, off=None):
        if off is None:
            A(f's_mov_b32 s{base}, s{ptr}', f's_mov_b32 s{base+1}, s{ptr+1}')
        else:
            A(f's_add_u32 s{base}, s{ptr}, {off}', f's_addc_u32 s{base+1}, s{ptr+1}, 0')
        A(f's_mov_b32 s{base+2}, {size}', f's_mov_b32 s{base+3}, 0x20000')
    def tagcalc():
        A('s_mul_i32 s9, s9, 0x9e3779b1', 's_add_u32 s9, s9, 0x7f4a7c15')
    def xidpub(name):
        if not fast: return
        A('s_cmp_eq_u32 s4, 0', f's_cbranch_scc0 {name}')
        A('s_getreg_b32 s3, hwreg(HW_REG_XCC_ID)', 'v_mov_b32 v24, s3', 'v_mov_b32 v25, s9', 's_lshl_b32 s3, s5, 5', 's_add_u32 s3, s3, s6', 's_lshl_b32 s3, s3, 7', f's_add_u32 s3, s3, {WS_XID}')
        A('s_mov_b64 exec, 1', 'buffer_store_dwordx2 v[24:25], v10, s[44:47], s3 offen sc1', 's_mov_b64 exec, -1')
        A.label(name)
    def check_tags(regs, acc, retry, slp):
        done = retry + '_ok'
        if len(regs) == 1:
            A(f'v_cmp_ne_u32 vcc, s9, {regs[0]}')
        else:
            A(f'v_xor_b32 {acc}, s9, {regs[0]}')
            for r in regs[1:]:
                A(f'v_bitop3_b32 {acc}, {acc}, {r}, s9 bitop3:0xf6')
            A(f'v_cmp_ne_u32 vcc, 0, {acc}')
        A(f's_cbranch_vccz {done}')
        if slp: A(f's_sleep {slp}')
        A('s_sub_u32 s95, s95, 1', f's_cbranch_scc0 {retry}', 's_mov_b32 s95, 0')
        A.label(done)
    def lds_signal(cnt):
        A('s_mov_b64 exec, 1', f'ds_add_u32 v10, v11 offset:{cnt}', 's_mov_b64 exec, -1')
    def lds_wait(cnt, target, name, vtmp='v12', vaddr='v10', stmp='s3', slp=0):
        A.label(name)
        if slp: A(f's_sleep {slp}')
        A(f'ds_read_b32 {vtmp}, {vaddr} offset:{cnt}', 's_waitcnt lgkmcnt(0)', f'v_readfirstlane_b32 {stmp}, {vtmp}', f's_cmp_ge_u32 {stmp}, {target}',
          f's_cbranch_scc1 {name}_x', 's_sub_u32 s95, s95, 1', f's_cbranch_scc0 {name}', 's_mov_b32 s95, 0')
        A.label(name + '_x')
    def dma_loop(n, voff, step, name, extra=(), pol=None):
        pol = WP if pol is None else pol
        A(f's_mov_b32 s3, {n}')
        A.label(name)
        A(f'buffer_load_dwordx4 {voff}, s[48:51], s13 offen {pol} lds')
        A(*extra)
        A('s_add_u32 m0, m0, 1024')
        if step: A(f's_add_u32 s13, s13, {step}')
        A('s_sub_u32 s3, s3, 1', 's_cmp_lg_u32 s3, 0', f's_cbranch_scc1 {name}')
    def allreduce_b(s1, s2, t):
        for r in (4, 8):
            A(f'v_add_f32_dpp {s1}, {s1}, {s1} row_ror:{r} {DPPF}', f'v_add_f32_dpp {s2}, {s2}, {s2} row_ror:{r} {DPPF}')
        A(f'v_permlane16_swap_b32 {s1}, {s2}', f'v_add_f32 {s1}, {s1}, {s2}')
        A(f'v_mov_b32 {t}, {s1}', f'v_permlane32_swap_b32 {s1}, {t}', f'v_add_f32 {s1}, {s1}, {t}')
        A(f'v_mov_b32 {s2}, {s1}', f'v_permlane16_swap_b32 {s1}, {s2}')
    def rnd8(e, t):
        for i in range(4): A(f'v_cvt_pk_bf16_f32 v{t+i}, v{e+2*i}, v{e+2*i+1}')
        for i in range(4): A(f'v_lshlrev_b32 v{e+2*i}, 16, v{t+i}', f'v_and_b32 v{e+2*i+1}, 0xffff0000, v{t+i}')
    def unpack(dst, srcs):
        for i, s_ in enumerate(srcs): A(f'v_lshlrev_b32 v{dst+2*i}, 16, v{s_}', f'v_and_b32 v{dst+2*i+1}, 0xffff0000, v{s_}')
    def pk(op, d, a, b, mod=''):
        A(f'v_pk_{op}_f32 v[{d}:{d+1}], v[{a}:{a+1}], v[{b}:{b+1}] {mod}')
    def plus1(e):
        for i in range(4): A(f'v_pk_add_f32 v[{e+2*i}:{e+1+2*i}], v[{e+2*i}:{e+1+2*i}], 1.0 op_sel_hi:[1,0]')
    def ashift(a0):
        for ks in range(1, 4):
            for i in range(4): A(f'v_mov_b32_dpp v{a0+4*ks+i}, v{a0+i} row_shl:{4*ks} {DPPF} bound_ctrl:0')
    def vpub(dst, c, b, tmp):
        A(f'v_bfe_u32 {tmp}, {c}, 2, 1', f'v_lshlrev_b32 {dst}, 7, {tmp}', f'v_lshrrev_b32 {tmp}, 3, {c}', f'v_lshl_add_u32 {dst}, {tmp}, 6, {dst}',
          f'v_bfe_u32 {tmp}, {c}, 1, 1', f'v_lshl_add_u32 {dst}, {tmp}, 2, {dst}', f'v_lshl_add_u32 {dst}, {b}, 4, {dst}')
    def pub4(val, g, soff):
        A(f'v_mov_b32_dpp v{g+1}, {val} row_shl:4 {DPPF} bound_ctrl:0', f'v_cvt_pk_bf16_f32 v{g}, {val}, v{g+1}', f'v_mov_b32_dpp v{g+1}, v{g} row_shl:8 {DPPF} bound_ctrl:0')
        A('s_mov_b32 exec_lo, 0x000f000f', 's_mov_b32 exec_hi, 0x000f000f')
        A(f'buffer_store_dwordx4 v[{g}:{g+3}], v3, s[44:47], {soff} offen sc1')
    def mfma(d, a, b, first):
        A(f'v_mfma_f32_16x16x32_bf16 v[{d}:{d+3}], v[{a}:{a+3}], v[{b}:{b+3}], {"0" if first else f"v[{d}:{d+3}]"}')
    def tr(r, addr, o0, o1, addr1=None):
        A(f'ds_read_b64_tr_b16 v[{r}:{r+1}], {addr} offset:{o0}', f'ds_read_b64_tr_b16 v[{r+2}:{r+3}], {addr1 or addr} offset:{o1}')

    A('s_cmp_ge_u32 s2, 256', 's_cbranch_scc1 L_end')
    stamp(0)
    if stamps: A('s_memtime s[88:89]')
    A('s_load_dwordx16 s[16:31], s[0:1], 0', 's_load_dwordx8 s[32:39], s[0:1], 64', 's_load_dwordx2 s[40:41], s[0:1], 104')
    A('v_lshrrev_b32 v1, 6, v0', 'v_and_b32 v0, 63, v0', 'v_readfirstlane_b32 s4, v1            ; wave')
    A('s_and_b32 s5, s2, 7', 's_lshr_b32 s6, s2, 3', 's_lshr_b32 s3, s6, 3', 's_lshl_b32 s7, s5, 2', 's_add_u32 s7, s7, s3                 ; head', 's_and_b32 s8, s6, 7')
    A('s_mov_b32 s95, 0x80000')
    A('s_lshr_b32 s3, s6, 1', 's_and_b32 s13, s6, 1')
    A('s_mov_b32 s60, 0', 's_sub_u32 s61, s6, 20', 's_mov_b32 s63, 0')
    A('s_cmp_ge_u32 s3, 11', 's_cbranch_scc1 L_roled')
    A('s_lshl_b32 s14, s3, 3', 's_add_u32 s14, s14, s5')
    A('s_cmp_lt_u32 s3, 5', f's_cselect_b32 s63, {D[0]}, {D[1]}', 's_cmp_ge_u32 s14, 60', f's_cselect_b32 s63, {D[2]}, s63', 's_cmp_ge_u32 s3, 9', f's_cselect_b32 s63, {D[3]}, s63')
    A('s_cmp_eq_u32 s13, 0', 's_cbranch_scc1 L_role0')
    A('s_sub_u32 s61, s3, 9', 's_cmp_ge_u32 s3, 9', 's_cbranch_scc1 L_roled')
    A('s_mov_b32 s61, s14', 's_cmp_lt_u32 s14, 60', 's_cselect_b32 s60, 1, 4', 's_branch L_roled')
    A.label('L_role0')
    A('s_cmp_lt_u32 s3, 5', 's_cselect_b32 s60, 3, 2', 's_cselect_b32 s14, 5, 6', 's_cselect_b32 s15, 0, 5', 's_mul_i32 s61, s5, s14', 's_add_u32 s61, s61, s3', 's_sub_u32 s61, s61, s15')
    A.label('L_roled')
    A('s_cmp_lt_u32 s4, 5', 's_cbranch_scc1 L_service')

    q = ['v4', 'v5', 'v6']
    acc = [f'v{8+i}' for i in range(6)]
    vM, vL = 'v14', 'v15'
    def ld(kind, j):
        r, s = (32 + 4 * j, 48) if kind == 'K' else (64 + 4 * j, 52)
        vo, off = ('v1', j * 768) if j < 5 else ('v2', (j - 5) * 768)
        A(f'buffer_load_dwordx3 v[{r}:{r+2}], {vo}, s[{s}:{s+3}], s10 offen offset:{off} {KP if kind == "K" else VP}')
    def goff(t):
        A(f's_and_b32 s10, {t}, -8', f's_add_u32 s10, s10, {t}', 's_add_u32 s10, s10, s86')
        A(f's_mul_i32 s3, {t}, s94', 's_add_u32 s3, s3, s87', f's_cmp_lt_u32 {t}, 112', 's_cselect_b32 s10, s10, s3', 's_mul_i32 s10, s10, 6144')
    A('v_mul_u32_u24 v1, 12, v0', 'v_add_u32 v2, 3840, v1')
    A('s_lshr_b32 s3, s8, 1', 's_lshl_b32 s3, s3, 5', 's_add_u32 s3, s3, s7', 's_mul_i32 s12, s3, 1572864')
    A('s_lshl_b32 s86, s13, 3', 's_mul_i32 s87, s13, 255', 's_add_u32 s87, s87, 112', 's_cmp_eq_u32 s13, 0', 's_cselect_b32 s94, 1, -1')
    A('s_mul_i32 s63, s63, s94', 's_sub_u32 s63, 128, s63')
    A('s_sub_u32 s11, s4, 5')
    goff('s11')
    A('s_cmp_lt_u32 s61, 20', 's_cselect_b32 s15, 2, 0', 's_cmp_eq_u32 s60, 1', 's_cselect_b32 s15, s15, 0', 's_cmp_eq_u32 s60, 0', 's_cselect_b32 s15, 1, s15')
    A('v_mov_b32 v29, 0', 'v_mov_b32 v30, 1')
    A('s_waitcnt lgkmcnt(0)')
    if st0: stamp(3)
    srd(48, 18, 1572864, 's12'); srd(52, 20, 1572864, 's12')
    A('s_load_dword s9, s[40:41], 0')
    A('s_cmp_eq_u32 s15, 0', 's_cbranch_scc1 L_hold2_x')
    A('s_barrier')
    A('s_cmp_eq_u32 s15, 2', 's_cbranch_scc0 L_hold2_x')
    lds_wait(4, 4, 'L_hold2', 'v16', 'v29', 's14', 2)
    order = [('K', j) for j in range(8)] + [('V', j) for j in range(8)]
    for n, o in enumerate(order):
        if n == H0:
            A('s_cmp_eq_u32 s15, 1', 's_cbranch_scc0 L_hold1_x')
            lds_wait(4, 4, 'L_hold1', 'v16', 'v29', 's14', 2)
        if QP and QP <= n < H0:
            A('s_cmp_eq_u32 s15, 1', f's_cbranch_scc0 L_qp{n}', f's_waitcnt vmcnt({QP - 1})')
            A('ds_read_b32 v16, v29 offset:4', 's_waitcnt lgkmcnt(0)', 'v_readfirstlane_b32 s14, v16', 's_cmp_ge_u32 s14, 4', 's_cselect_b32 s15, 3, 1')
            A.label(f'L_qp{n}')
        ld(*o)
        if st0 and n == 0: A('s_waitcnt vmcnt(0)'); stamp(4)
    A('s_cmp_eq_u32 s15, 0', 's_cbranch_scc0 L_nobar')
    A('s_barrier')
    A.label('L_nobar')
    if stamps: srd(44, 40, WS_SIZE)
    A('s_mul_i32 s14, s7, 3072', 's_lshr_b32 s3, s8, 1', 's_lshl_b32 s3, s3, 6', 's_add_u32 s14, s14, s3', f's_add_u32 s14, s14, {WS_Q}')
    A('s_lshl_b32 s3, s11, 9', 's_add_u32 s14, s14, s3', 's_add_u32 s84, s40, s14', 's_addc_u32 s85, s41, 0')
    A('v_and_b32 v3, 31, v0', 'v_mul_u32_u24 v3, 12, v3', 's_lshl_b32 s3, s11, 6', 'v_lshlrev_b32 v31, 2, v0', 'v_add_u32 v31, s3, v31')
    A('s_lshl_b32 s3, s11, 10', f's_add_u32 s3, s3, {L_REC}', 'v_lshlrev_b32 v7, 4, v0', 'v_add_u32 v7, s3, v7')
    A('s_mov_b32 s56, 0xcccccccc', 's_mov_b32 s57, 0xcccccccc', f's_mov_b32 s58, {hex(LOG2E)}', f's_mov_b32 s59, {hex(SCALE)}', 's_mov_b32 s43, 1572864')
    for a in acc: A(f'v_mov_b32 {a}, 0')
    A(f'v_mov_b32 {vM}, 0xff7fffff', f'v_mov_b32 {vL}, 0')
    A('s_waitcnt lgkmcnt(0)')
    tagcalc()
    stamp(1)
    A('s_cmp_lt_u32 s11, 6', 's_cbranch_scc0 L_qw')
    A('s_branch L_qpoll')
    A.label('L_qretry')
    A(f's_sleep {qsleep}', 's_sub_u32 s95, s95, 1', 's_cbranch_scc0 L_qpoll', 's_mov_b32 s95, 0', 's_branch L_qgot')
    A.label('L_qpoll')
    A('s_load_dwordx16 s[16:31], s[84:85], 0 glc', 's_load_dwordx8 s[32:39], s[84:85], 256 glc', 's_load_dwordx8 s[76:83], s[84:85], 288 glc', 's_waitcnt lgkmcnt(0)')
    sq = list(range(16, 40, 2)) + list(range(76, 84, 2))
    for r in sq: A(f's_cmp_eq_u32 s{r+1}, s9', 's_cbranch_scc0 L_qretry')
    A.label('L_qgot')
    for i, r in enumerate(sq): A(f'v_writelane_b32 v16, s{r}, {i}')
    A('s_mov_b64 exec, 0xffff', f'ds_write_b32 v31, v16 offset:{L_Q}', 's_mov_b64 exec, 1', 'ds_add_u32 v29, v30 offset:12', 's_mov_b64 exec, -1')
    lds_wait(12, 6, 'L_qw', 'v16', 'v29', 's14', 1)
    stamp(2)
    for i in range(3): A(f'ds_read_b32 {q[i]}, v3 offset:{L_Q + 4*i}')
    A('s_waitcnt lgkmcnt(0)')
    A.label('L_loop')
    A('s_add_u32 s11, s11, 8')
    goff('s11')
    A('s_cmp_ge_u32 s11, s63', 's_cselect_b32 s50, 0, s43', 's_cselect_b32 s54, 0, s43')
    T = lambda j: f'v{35+4*j}'
    for j in range(8):
        A('s_waitcnt vmcnt(15)')
        for i in range(3): A(f'v_dot2_f32_bf16 {T(j)}, v{32+4*j+i}, {q[i]}, {T(j) if i else "0"}')
        ld('K', j)
    for i in range(4): A(f'v_add_f32_dpp v{16+i}, {T(i)}, {T(i)} row_ror:8 row_mask:0xf bank_mask:0x3')
    for i in range(4): A(f'v_add_f32_dpp v{16+i}, {T(i+4)}, {T(i+4)} row_ror:8 row_mask:0xf bank_mask:0xc')
    for i in range(2): A(f'v_add_f32_dpp v{20+i}, v{16+i}, v{16+i} row_half_mirror row_mask:0xf bank_mask:0x5')
    for i in range(2): A(f'v_add_f32_dpp v{20+i}, v{18+i}, v{18+i} row_half_mirror row_mask:0xf bank_mask:0xa')
    A(f'v_add_f32_dpp v22, v20, v20 quad_perm:[2,3,0,1] {DPPF}', f'v_add_f32_dpp v23, v21, v21 quad_perm:[2,3,0,1] {DPPF}')
    A('v_cndmask_b32 v22, v22, v23, s[56:57]')
    A(f'v_add_f32_dpp v22, v22, v22 quad_perm:[1,0,3,2] {DPPF}')
    A('v_mov_b32 v23, v22', 'v_permlane16_swap_b32 v22, v23', 'v_add_f32 v22, v22, v23')
    rnd('v22', 'v22'); A('v_mul_f32 v22, s59, v22'); rnd('v22', 'v22')
    A(f'v_max_f32_dpp v23, v22, v22 quad_perm:[2,3,0,1] {DPPF}', f'v_max_f32_dpp v23, v23, v23 row_half_mirror {DPPF}', f'v_max_f32_dpp v23, v23, v23 row_ror:8 {DPPF}')
    A('v_mov_b32 v25, v23', 'v_permlane32_swap_b32 v23, v25', f'v_max3_f32 v23, v23, v25, {vM}')
    A(f'v_sub_f32 v24, {vM}, v23', 'v_sub_f32 v22, v22, v23', f'v_mov_b32 {vM}, v23')
    A('v_mul_f32 v24, s58, v24', 'v_mul_f32 v22, s58, v22', 'v_exp_f32 v24, v24', 'v_exp_f32 v22, v22')
    for i in range(3): pk('mul', 8+2*i, 8+2*i, 24, 'op_sel_hi:[1,0]')
    A('v_cvt_pk_bf16_f32 v26, v22, 0', 'v_cvt_pk_bf16_f32 v27, 0, v22')
    A(f'v_add_f32_dpp v22, v22, v22 quad_perm:[2,3,0,1] {DPPF}', f'v_mul_f32 {vL}, {vL}, v24', f'v_add_f32_dpp v22, v22, v22 row_half_mirror {DPPF}')
    A(f'v_add_f32_dpp v22, v22, v22 row_ror:8 {DPPF}', f'v_mul_f32 v31, 0.5, {vM}', f'v_add_f32 {vL}, {vL}, v22')
    for j in range(8):
        A('s_waitcnt vmcnt(15)')
        for i in range(3):
            A(f'v_dot2c_f32_bf16_dpp {acc[2*i]}, v26, v{64+4*j+i} row_newbcast:{2*j} {DPPF}')
            A(f'v_dot2c_f32_bf16_dpp {acc[2*i+1]}, v27, v{64+4*j+i} row_newbcast:{2*j} {DPPF}')
        ld('V', j)
    A('s_cmp_lt_u32 s11, s63', 's_cbranch_scc1 L_loop')
    if not st0: stamp(3)
    A(f'v_permlane32_swap_b32 {vL}, v31')
    for i in range(3): A(f'v_permlane32_swap_b32 {acc[2*i]}, {acc[2*i+1]}')
    A(f'v_add_f32 v23, {vL}, v31')
    for i in range(3): A(f'v_add_f32 v{20+i}, {acc[2*i]}, {acc[2*i+1]}')
    A('ds_write_b128 v7, v[20:23]')
    A('s_waitcnt lgkmcnt(0)', 's_barrier')
    if not st0: stamp(4)
    stamp_flush(5)
    A('s_endpgm')

    A.label('L_service')
    A('s_setprio 2')
    A('v_and_b32 v4, 3, v0', 'v_bfe_u32 v5, v0, 2, 2', 'v_lshrrev_b32 v6, 4, v0', 'v_mov_b32 v15, 0')
    A('v_mov_b32 v10, 0', 'v_mov_b32 v11, 1', 'v_lshlrev_b32 v1, 4, v0')
    A('s_cmp_eq_u32 s4, 0', 's_cbranch_scc0 L_nozero')
    for o in (0, 4, 8, 12, 20, 24): A(f'ds_write_b32 v10, v10 offset:{o}')
    A.label('L_nozero')
    A('s_lshl_b32 s62, s4, 14', f's_add_u32 s62, s62, {L_W}')
    A('s_waitcnt lgkmcnt(0)')
    A('s_load_dword s9, s[40:41], 0')
    A('s_cmp_gt_u32 s60, 1', 's_cbranch_scc1 L_nojob')
    A('v_mul_u32_u24 v7, 1280, v4', 'v_lshl_add_u32 v7, v5, 6, v7', 'v_lshl_add_u32 v7, v6, 4, v7', 's_lshl_b32 s3, s4, 8')
    A('s_cmp_eq_u32 s60, 0', 's_cbranch_scc0 L_modjob')
    srd(52, 16, 5120)
    srd(48, 22, 640 * 12288)
    A('s_mov_b32 s42, 12288', 's_mov_b32 s59, s61', 's_mul_i32 s13, s5, 12', 's_add_u32 s61, s61, s13', 's_lshl_b32 s13, s61, 7')
    A('s_branch L_dojob')
    A.label('L_modjob')
    srd(52, 34, 5120)
    A('buffer_load_dwordx4 v[36:39], v7, s[52:55], s3 offen', 's_mov_b32 s54, 0')
    srd(48, 36, 640 * 7680)
    A('s_mov_b32 s42, 7680', 's_lshl_b32 s13, s61, 7')
    A.label('L_dojob')
    A('v_lshrrev_b32 v8, 3, v0', 's_lshl_b32 s3, s4, 7', 'v_add_u32 v8, s3, v8', 'v_mul_lo_u32 v8, v8, s42')
    A('v_and_b32 v9, 7, v0', 'v_lshlrev_b32 v9, 4, v9', 'v_and_b32 v12, 1, v6', 'v_lshlrev_b32 v12, 5, v12', 'v_xor_b32 v9, v9, v12', 'v_add_u32 v8, v8, v9')
    A('s_lshl_b32 s42, s42, 3', 's_mov_b32 m0, s62')
    dma_loop(16, 'v8', 's42', 'L_dma0', ['v_xor_b32 v8, 64, v8'], POL)
    for t in range(5): A(f'buffer_load_dwordx4 v[{20+4*t}:{23+4*t}], v7, s[52:55], 0 offen offset:{256*t}' if t < 4 else 'buffer_load_dwordx4 v[60:63], v7, s[52:55], 0 offen offset:1024')
    A('s_lshl_b32 s3, s4, 8', 'buffer_load_dwordx4 v[56:59], v7, s[52:55], s3 offen')
    A.label('L_nojob')
    A('s_barrier')
    srd(44, 40, WS_SIZE)
    A('s_lshr_b32 s3, s6, 1', 's_add_u32 s3, s3, 12', 's_cmp_eq_u32 s60, 0', 's_cselect_b32 s3, s59, s3', 's_lshl_b32 s59, s3, 1', 's_add_u32 s59, s59, s4', 's_sub_u32 s59, s59, 1')
    A('s_cmp_lt_u32 s3, 20', 's_cselect_b32 s59, s59, -1', 's_and_b32 s3, s60, 6', 's_cmp_eq_u32 s3, 2', 's_cselect_b32 s59, -1, s59', 's_sub_u32 s3, s4, 1', 's_cmp_lt_u32 s3, 2', 's_cselect_b32 s59, s59, -1')
    A('v_lshrrev_b32 v2, 2, v0')
    vpub('v3', 'v2', 'v4', 'v12')
    A('v_lshrrev_b32 v12, 1, v6', 'v_lshlrev_b32 v2, 8, v12', 'v_lshl_add_u32 v2, v5, 9, v2', 'v_and_b32 v12, 1, v6', 'v_lshl_add_u32 v2, v12, 6, v2', 'v_lshl_add_u32 v2, v4, 4, v2')
    A('s_lshl_b32 s63, s4, 11')
    A('s_lshl_b32 s3, s4, 10', f's_add_u32 s3, s3, {L_D}', 'v_add_u32 v13, s3, v1')
    A('s_lshl_b32 s3, s4, 8', f's_add_u32 s3, s3, {L_D}', 'v_lshlrev_b32 v14, 2, v0', 'v_add_u32 v14, s3, v14')
    A('s_cmp_gt_u32 s60, 1', 's_cbranch_scc1 L_tailw0')
    A('v_lshlrev_b32 v9, 10, v6', 'v_lshl_add_u32 v9, v5, 7, v9', 'v_lshl_add_u32 v9, v4, 3, v9')
    A('v_lshrrev_b32 v12, 1, v5', 'v_lshl_add_u32 v9, v12, 5, v9', 'v_and_b32 v12, 1, v6', 'v_lshl_add_u32 v9, v12, 6, v9', 'v_add_u32 v9, s62, v9')
    A('s_lshl_b32 s43, s61, 2', 's_add_u32 s43, s43, s4', 's_lshl_b32 s43, s43, 8')
    A('v_xor_b32 v16, 32, v9', 'v_xor_b32 v17, 64, v9', 'v_xor_b32 v18, 0x60, v9')
    A('s_cmp_eq_u32 s60, 0', 's_cbranch_scc1 L_btr')
    A('s_waitcnt vmcnt(22)')
    unpack(48, [36, 37, 38, 39])
    for i in range(8): A(f'v_mul_f32 v{36+i}, {hex(LOG2E ^ 0x80000000)}, v{48+i}')
    for i in range(8): A(f'v_exp_f32 v{36+i}, v{36+i}')
    plus1(36)
    for i in range(8): A(f'v_rcp_f32 v{36+i}, v{36+i}')
    for i in range(4): pk('mul', 48+2*i, 48+2*i, 36+2*i)
    for i in range(4): A(f'v_cvt_pk_bf16_f32 v{40+i}, v{48+2*i}, v{49+2*i}')
    ashift(40)
    A(f's_add_u32 s43, s43, {WS_MOD}')
    A.label('L_btr')
    A('s_waitcnt lgkmcnt(0)')
    tagcalc()
    for ks in range(4):
        A(f's_waitcnt vmcnt({18-4*ks})')
        for tl in range(4): tr(64 + 16*tl + 4*ks, ['v9', 'v16', 'v17', 'v18'][tl], 4096*ks, 4096*ks + 512)
    stamp(1)
    A('s_waitcnt vmcnt(0)')
    A('s_cmp_eq_u32 s60, 0', 's_cbranch_scc0 L_amov')
    A('s_mov_b32 s3, 0x3f803f80')
    for i, r in enumerate(list(range(20, 36)) + [60, 61, 62, 63]):
        A(f'v_dot2_f32_bf16 v36, v{r}, s3, {"0" if i == 0 else "v36"}', f'v_dot2_f32_bf16 v37, v{r}, v{r}, {"0" if i == 0 else "v37"}')
    for i in range(4): A(f'v_mov_b32 v{40+i}, v{56+i}')
    unpack(56, [40, 41, 42, 43])
    allreduce_b('v36', 'v37', 'v38')
    A(f'v_mul_f32 v36, {hex(f2u(1/640))}, v36', f'v_mul_f32 v37, {hex(f2u(1/640))}, v37', 'v_fma_f32 v37, -v36, v36, v37', 'v_max_f32 v37, 0, v37')
    A('v_cvt_pk_bf16_f32 v38, v36, v37', 'v_and_b32 v37, 0xffff0000, v38', 'v_lshlrev_b32 v36, 16, v38')
    A(f'v_add_f32 v37, {hex(f2u(1e-5))}, v37'); rnd('v37', 'v37'); A('v_sqrt_f32 v37, v37'); rnd('v37', 'v37'); A('v_rcp_f32 v37, v37')
    for i in range(4): pk('add', 56+2*i, 56+2*i, 36, 'op_sel_hi:[1,0] neg_lo:[0,1] neg_hi:[0,1]')
    rnd8(56, 40)
    for i in range(4): pk('mul', 56+2*i, 56+2*i, 36, 'op_sel:[0,1] op_sel_hi:[1,1]')
    rnd8(56, 40)
    A('v_lshlrev_b32 v15, 6, v4', 'v_lshrrev_b32 v12, 3, v0', 'v_lshl_add_u32 v15, v12, 3, v15', f's_add_u32 s43, s43, {WS_Q}')
    A(f's_add_u32 s3, s63, {WS_MOD}', f's_add_u32 s13, s63, {WS_MOD + 10240}')
    A.label('L_hpoll')
    A('buffer_load_dwordx4 v[28:31], v2, s[44:47], s13 offen sc1', 'buffer_load_dwordx4 v[32:35], v2, s[44:47], s13 offen offset:128 sc1')
    A('buffer_load_dwordx4 v[20:23], v2, s[44:47], s3 offen sc1', 'buffer_load_dwordx4 v[24:27], v2, s[44:47], s3 offen offset:128 sc1')
    A('s_waitcnt vmcnt(0)')
    check_tags(['v22', 'v26', 'v30', 'v34'], 'v36', 'L_hpoll', 1)
    stamp(2)
    unpack(44, [28, 29, 32, 33]); plus1(44); rnd8(44, 36)
    for i in range(4): pk('mul', 44+2*i, 44+2*i, 56+2*i)
    unpack(56, [20, 21, 24, 25])
    rnd8(44, 36)
    for i in range(4): pk('add', 44+2*i, 44+2*i, 56+2*i)
    for i in range(4): A(f'v_cvt_pk_bf16_f32 v{40+i}, v{44+2*i}, v{45+2*i}')
    ashift(40)
    A.label('L_amov')
    A('s_waitcnt lgkmcnt(8)' if not stamps else 's_waitcnt lgkmcnt(0)')
    for ks in range(4):
        if ks == 3: A('s_waitcnt lgkmcnt(0)')
        for tl in range(4): mfma(20 + 4*tl, 40 + 4*ks, 64 + 16*tl + 4*ks, ks == 0)
    A('s_mov_b64 exec, 0xffff')
    for tl in range(4): A(f'ds_write_b128 v13, v[{20+4*tl}:{23+4*tl}] offset:{256*tl}')
    lds_signal(0)
    A('s_cmp_eq_u32 s4, 4', 's_cbranch_scc0 L_fin0')
    lds_wait(4, 4, 'L_w1')
    A('s_branch L_tailw')
    A.label('L_fin0')
    A('v_mov_b32 v50, s9', 'v_mov_b32 v51, s9', 'v_mov_b32 v41, s9')
    lds_wait(0, 5, 'L_w0')
    A('ds_read2st64_b32 v[42:43], v14 offset0:0 offset1:4', 'ds_read2st64_b32 v[44:45], v14 offset0:8 offset1:12', 'ds_read_b32 v46, v14 offset:4096')
    A('s_waitcnt lgkmcnt(0)')
    A('v_add_f32 v42, v42, v43', 'v_add_f32 v44, v44, v45', 'v_add_f32 v42, v42, v46', 'v_add_f32 v42, v42, v44')
    A('s_cmp_eq_u32 s60, 0', 's_cbranch_scc1 L_finq')
    pub4('v42', 48, 's43')
    A('s_branch L_fin1')
    A.label('L_finq')
    A(f'v_mov_b32_dpp v43, v42 row_shl:4 {DPPF} bound_ctrl:0', 'v_cvt_pk_bf16_f32 v40, v42, v43')
    A('s_mov_b32 exec_lo, 0x0f0f0f0f', 's_mov_b32 exec_hi, 0x0f0f0f0f')
    A('buffer_store_dwordx2 v[40:41], v15, s[44:47], s43 offen sc1')
    A.label('L_fin1')
    stamp(3)
    lds_signal(4)
    A('s_branch L_tailw')
    A.label('L_tailw0')
    A('s_waitcnt lgkmcnt(0)')
    tagcalc()
    A('s_cmp_eq_u32 s60, 2', 's_cbranch_scc0 L_twF2')
    A('v_lshrrev_b32 v8, 2, v0', 's_lshl_b32 s3, s4, 7', 'v_add_u32 v8, s3, v8', 'v_mul_u32_u24 v8, 3072, v8', 'v_lshl_add_u32 v8, v4, 4, v8')
    srd(48, 28, 640 * 3072)
    A('s_lshl_b32 s13, s61, 6', 's_mov_b32 m0, s62')
    dma_loop(8, 'v8', 49152, 'L_dma5')
    srd(48, 30, 640 * 3072)
    A('s_lshl_b32 s13, s61, 6')
    dma_loop(8, 'v8', 49152, 'L_dma6')
    A('s_branch L_tailw')
    A.label('L_twF2')
    A('s_cmp_eq_u32 s60, 3', 's_cbranch_scc0 L_tailw', 's_cmp_eq_u32 s4, 4', 's_cbranch_scc1 L_tailw')
    A('v_lshrrev_b32 v8, 1, v0', 'v_mul_u32_u24 v8, 1280, v8', 'v_and_b32 v12, 1, v0', 'v_lshl_add_u32 v8, v12, 4, v8')
    srd(48, 32, 1536 * 1280)
    A('s_mul_i32 s13, s4, 491520', 's_lshl_b32 s3, s61, 5', 's_add_u32 s13, s13, s3', 's_mov_b32 m0, s62')
    dma_loop(12, 'v8', 40960, 'L_dma4')
    A.label('L_tailw')
    A('s_setprio 0')
    xidpub('L_xp')
    srd(48, 24, 6144 * 1280)
    A('s_mul_i32 s13, s7, 245760', 's_mul_i32 s3, s8, 160', 's_add_u32 s13, s13, s3')
    A('s_mul_i32 s3, s4, 6144', f's_add_u32 m0, s3, {L_WO}', 's_mul_i32 s3, s4, 384', 'v_add_u32 v9, s3, v0')
    wo_addr = ['v_mul_u32_u24 v8, 6554, v9', 'v_lshrrev_b32 v8, 16, v8', 'v_mul_u32_u24 v8, 1120, v8', 'v_lshl_add_u32 v8, v9, 4, v8']
    A(*wo_addr)
    dma_loop(6, 'v8', None, 'L_dma3', ['v_add_u32 v9, 64, v9'] + wo_addr)
    stamp(4)
    A(f's_mov_b32 s58, {hex(LOG2E)}', 's_mov_b32 s56, 0', 's_mov_b32 s57, -1', 's_mov_b32 s12, 0')
    srd(52, 38, 5120)
    A('s_mul_i32 s14, s7, 5120', f's_add_u32 s14, s14, {WS_REC}')
    A('s_mul_i32 s15, s8, 640', 's_add_u32 s15, s15, s14')
    A('s_lshl_b32 s3, s4, 10', "s_add_u32 s14, s14, s3")
    A('s_lshl_b32 s3, s4, 6', 'v_add_u32 v12, s3, v0', 'v_mul_u32_u24 v15, 1639, v12', 'v_lshrrev_b32 v15, 16, v15')
    A('v_mul_u32_u24 v16, 40, v15', 'v_sub_u32 v16, v12, v16', 'v_cmp_gt_u32 s[96:97], 33, v16')
    A('v_add_u32 v15, v15, v12', 'v_lshlrev_b32 v15, 4, v15', f'v_add_u32 v15, {L_RC}, v15')
    A('v_and_b32 v12, 7, v0', 'v_mul_u32_u24 v16, 656, v12', 'v_lshl_add_u32 v16, v6, 4, v16', f'v_add_u32 v16, {L_RC}, v16')
    A('v_and_b32 v17, 1, v6', 'v_lshl_add_u32 v17, v17, 2, v4', 'v_mul_u32_u24 v17, 656, v17', f'v_add_u32 v17, {L_RC + 512}, v17')
    A('v_lshrrev_b32 v19, 5, v0', 'v_lshlrev_b32 v18, 2, v19', 'v_xor_b32 v12, v12, v18', 'v_lshlrev_b32 v18, 10, v12', f'v_add_u32 v18, {L_REC}, v18')
    A('v_and_b32 v12, 31, v0', 'v_lshlrev_b32 v12, 4, v12', 'v_lshl_add_u32 v19, v19, 12, v12', f'v_add_u32 v19, {L_REC}, v19')
    A('v_mul_u32_u24 v12, 960, v6', 'v_lshl_add_u32 v12, v4, 3, v12', 's_lshl_b32 s3, s4, 5', f's_add_u32 s3, s3, {L_WO}', 'v_add_u32 v12, s3, v12')
    A('v_mul_u32_u24 v7, 160, v5', 'v_add_u32 v7, v7, v12', 'v_and_b32 v8, 1, v5', 'v_mul_u32_u24 v8, 160, v8', 'v_add_u32 v8, v8, v12', 'v_add_u32 v8, 640, v8')
    A('s_mul_i32 s43, s8, 5', 's_add_u32 s43, s43, s4', 's_lshl_b32 s43, s43, 5', 's_add_u32 s43, s43, s7', 's_lshl_b32 s43, s43, 8', f's_add_u32 s43, s43, {WS_Y}')
    A('s_cmp_eq_u32 s60, 2', 's_cselect_b32 s3, 6, 5', 's_add_u32 s13, s3, 3')
    A('v_lshlrev_b32 v9, s13, v6', 'v_lshlrev_b32 v20, s3, v5', 'v_add_u32 v9, v9, v20', 'v_lshl_add_u32 v9, v4, 3, v9', 'v_add_u32 v9, s62, v9')
    def wofrags():
        for kk in range(8): tr(64 + 4*kk, 'v7', 3840*kk, 3840*kk, 'v8')
    def f1frags():
        for a_ in range(4):
            for ks in range(4):
                o = 8192 * (a_ >> 1) + 2048 * ks + 32 * (a_ & 1)
                tr(64 + 16*a_ + 4*ks, 'v9', o, o + 256)
    def dsum(r, m):
        A(f'ds_read2st64_b32 v[{r}:{r+1}], v14 offset0:{2*m} offset1:{4+2*m}', f'ds_read2st64_b32 v[{r+2}:{r+3}], v14 offset0:{8+2*m} offset1:{12+2*m}', f'ds_read_b32 v{r+4}, v14 offset:{4096+512*m}')
    A('s_waitcnt vmcnt(0)')
    lds_signal(8)
    A('s_cmp_eq_u32 s60, 2', 's_cbranch_scc0 L_preW')
    A(f's_add_u32 s3, s63, {WS_MOD + 3*10240}', f's_add_u32 s13, s63, {WS_MOD + 4*10240}')
    A.label('L_scpoll')
    A('buffer_load_dwordx4 v[36:39], v2, s[44:47], s13 offen sc1', 'buffer_load_dwordx4 v[40:43], v2, s[44:47], s13 offen offset:128 sc1')
    A('buffer_load_dwordx4 v[44:47], v2, s[44:47], s3 offen sc1', 'buffer_load_dwordx4 v[48:51], v2, s[44:47], s3 offen offset:128 sc1')
    A('s_waitcnt vmcnt(0)')
    check_tags(['v38', 'v42', 'v46', 'v50'], 'v52', 'L_scpoll', 8)
    if not lin:
        unpack(20, [36, 37, 40, 41]); unpack(28, [44, 45, 48, 49]); plus1(20); rnd8(20, 36)
    else:
        f1frags()
        unpack(20, [36, 37, 40, 41]); plus1(20)
        A('v_mov_b32 v60, v44', 'v_mov_b32 v61, v45', 'v_mov_b32 v62, v48', 'v_mov_b32 v63, v49')
        rnd8(20, 40)
        for rnd_, cnt in ((0, 20), (1, 24)):
            if rnd_:
                for i in range(4): A(f'v_mov_b32 v{40+i}, v{60+i}')
            ashift(40)
            A('s_waitcnt lgkmcnt(0)')
            dd = [32, 36, 56, 60] if rnd_ else [32, 36, 56, 28]
            for ks in range(4):
                for a_ in range(4): mfma(dd[a_], 40 + 4*ks, 64 + 16*a_ + 4*ks, ks == 0)
            if rnd_: lds_wait(20, 7, 'L_c1')
            A('s_mov_b64 exec, 0xffff')
            for a_ in range(4): A(f'ds_write_b128 v13, v[{dd[a_]}:{dd[a_]+3}] offset:{256*a_}')
            lds_signal(cnt)
            A('s_cmp_lt_u32 s4, 2', f's_cbranch_scc0 L_c2{rnd_}')
            lds_wait(cnt, 5, f'L_c3{rnd_}')
            dsum(44, 0); dsum(50, 1)
            A('s_waitcnt lgkmcnt(0)')
            for r, d in ((44, 28 + rnd_), (50, 30 + rnd_)):
                A(f'v_add_f32 v{r}, v{r}, v{r+1}', f'v_add_f32 v{r+2}, v{r+2}, v{r+3}', f'v_add_f32 v{r}, v{r}, v{r+4}', f'v_add_f32 v{d}, v{r}, v{r+2}')
            lds_signal(cnt)
            A.label(f'L_c2{rnd_}')
    A.label('L_preW')
    lds_wait(8, 5, 'L_wow', slp=4)
    wofrags()
    A('v_mov_b32 v12, 0')
    A('s_cmp_eq_u32 s60, 2', 's_cbranch_scc0 L_preB')
    A('v_lshlrev_b32 v11, 3, v4', 's_lshl_b32 s3, s4, 5', 'v_add_u32 v12, s3, v11')
    A('s_branch L_preD')
    A.label('L_preB')
    A('s_cmp_eq_u32 s60, 3', 's_cbranch_scc0 L_preR')
    A('s_lshl_b32 s13, s61, 8', f's_add_u32 s13, s13, {WS_MOD + 5*10240}', 'v_mov_b32 v12, v3', 'v_lshrrev_b32 v21, 2, v0')
    A('s_branch L_preG0')
    A.label('L_preR')
    A('s_cmp_eq_u32 s59, -1', 's_cbranch_scc1 L_preD')
    A('v_and_b32 v21, 15, v0', 'v_mov_b32 v22, v6')
    vpub('v12', 'v21', 'v22', 'v23')
    srd(48, 16, 5120)
    A('v_mul_u32_u24 v23, 1280, v22', 'v_lshl_add_u32 v23, v21, 1, v23', 's_lshl_b32 s3, s59, 5')
    A('buffer_load_ushort v20, v23, s[48:51], s3 offen')
    A('s_lshl_b32 s13, s59, 8', f's_add_u32 s13, s13, {WS_MOD + 2*10240}')
    A.label('L_preG0')
    A('v_and_b32 v11, -16, v12', 'v_and_b32 v23, 2, v21', 'v_cmp_eq_u32 s[98:99], 0, v23', 'v_and_b32 v22, 1, v21', 'v_lshlrev_b32 v22, 4, v22', 'v_sub_u32 v22, 16, v22')
    A.label('L_preG')
    A('buffer_load_dwordx4 v[24:27], v11, s[44:47], s13 offen sc1')
    A('s_waitcnt vmcnt(0)')
    check_tags(['v26'], None, 'L_preG', 8)
    A('v_cndmask_b32 v24, v25, v24, s[98:99]', 'v_lshlrev_b32 v21, v22, v24', 'v_and_b32 v21, 0xffff0000, v21')
    A('v_lshlrev_b32 v20, 16, v20')
    A.label('L_preD')
    if fast:
        A('s_cmp_eq_u32 s4, 0', 's_cbranch_scc0 L_noxid')
        A('s_getreg_b32 s42, hwreg(HW_REG_XCC_ID)', 's_lshl_b32 s13, s5, 12', f's_add_u32 s13, s13, {WS_XID}', 'v_lshlrev_b32 v38, 7, v0', 's_mov_b32 exec_hi, 0')
        A.label('L_xid')
        A('s_sleep 127', 'buffer_load_dwordx2 v[40:41], v38, s[44:47], s13 offen sc1', 's_waitcnt vmcnt(0)')
        check_tags(['v41'], None, 'L_xid', 0)
        A('v_cmp_ne_u32 vcc, s42, v40', 's_mov_b32 exec_hi, -1', 's_cmp_eq_u64 vcc, 0', 's_cselect_b32 s12, 1, 0')
        A('s_cmp_eq_u32 s95, 0', 's_cselect_b32 s12, 0, s12', 'v_mov_b32 v40, s12', f'ds_write_b32 v10, v40 offset:{L_FAST}')
        A.label('L_noxid')
    A('v_mov_b32 v43, s9')
    A('s_waitcnt vmcnt(0) lgkmcnt(0)')
    stamp(5)
    A('s_setprio 2')
    A('s_barrier')
    stamp(6)
    A('s_cmp_eq_u32 s4, 0', 's_cbranch_scc0 L_O')
    A('ds_read_b32 v36, v18 offset:524', 'ds_read_b32 v37, v18 offset:12')
    for i in range(4): A(f'ds_read_b128 v[{96+8*i}:{99+8*i}], v19 offset:{1024*i}', f'ds_read_b128 v[{100+8*i}:{103+8*i}], v19 offset:{1024*i+512}')
    A('s_waitcnt lgkmcnt(8)')
    A(f'v_max_f32_dpp v38, v36, v36 quad_perm:[1,0,3,2] {DPPF}', f'v_max_f32_dpp v38, v38, v38 quad_perm:[2,3,0,1] {DPPF}', f'v_max_f32_dpp v38, v38, v38 row_half_mirror {DPPF}')
    A('v_sub_f32 v36, v36, v38', 'v_mul_f32 v36, s58, v36', 'v_exp_f32 v36, v36', 'v_mul_f32 v37, v37, v36')
    lch = [f'v_add_f32_dpp v37, v37, v37 quad_perm:[1,0,3,2] {DPPF}', f'v_add_f32_dpp v37, v37, v37 quad_perm:[2,3,0,1] {DPPF}', f'v_add_f32_dpp v37, v37, v37 row_half_mirror {DPPF}', 'v_rcp_f32 v39, v37']
    for i in range(4):
        A(f's_waitcnt lgkmcnt({6 - 2*i})')
        for k in range(3):
            op = 'v_mul_f32_dpp' if i == 0 else 'v_fmac_f32_dpp'
            A(f'{op} v{56+2*k}, v36, v{96+8*i+k} row_newbcast:{i} {DPPF}', f'{op} v{57+2*k}, v36, v{100+8*i+k} row_newbcast:{i} {DPPF}')
        A(lch[i])
    A('v_permlane32_swap_b32 v58, v59', 'v_permlane32_swap_b32 v56, v60', 'v_permlane32_swap_b32 v57, v61')
    A('v_add_f32 v58, v58, v59', 'v_add_f32 v56, v56, v60', 'v_add_f32 v57, v57, v61')
    A('v_mul_f32 v58, v58, v39', 'v_mul_f32 v56, v56, v39', 'v_mul_f32 v57, v57, v39')
    A('v_mov_b32 v59, v58', 'v_cvt_pk_bf16_f32 v40, v56, v57', 'v_cvt_pk_bf16_f32 v42, v56, v57')
    A('v_permlane32_swap_b32 v58, v59', 'v_permlane32_swap_b32 v40, v42')
    A('v_cvt_pk_bf16_f32 v41, v58, v59')
    A('v_cndmask_b32 v40, v40, v38, s[56:57]', 'v_cndmask_b32 v41, v41, v37, s[56:57]')
    A('s_mov_b32 exec_hi, 1')
    if fast:
        A('s_cmp_eq_u32 s12, 1', 's_cbranch_scc0 L_slowrec')
        A('buffer_store_dwordx4 v[40:43], v1, s[44:47], s15 offen')
        A('s_branch L_recdone')
        A.label('L_slowrec')
    A('buffer_store_dwordx4 v[40:43], v1, s[44:47], s15 offen sc1')
    A.label('L_recdone')
    A('s_mov_b32 exec_hi, -1')
    A.label('L_O')
    stamp(7)
    A('s_mov_b64 exec, s[96:97]')
    A.label('L_opoll')
    A('buffer_load_dwordx4 v[44:47], v1, s[44:47], s14 offen sc1')
    A('s_waitcnt vmcnt(0)')
    check_tags(['v47'], None, 'L_opoll', sleep)
    A('v_mov_b32 v47, 0')
    A('ds_write_b128 v15, v[44:47]')
    A('s_mov_b64 exec, -1')
    A('s_waitcnt lgkmcnt(0)')
    A('s_barrier')
    stamp(8)
    A('ds_read_b64 v[36:37], v17')
    for kk in range(8): A(f'ds_read_b128 v[{96+4*kk}:{99+4*kk}], v16 offset:{64*kk}')
    A('v_mov_b32 v51, s9', 's_mov_b32 s16, 0x07060501', 's_mov_b32 s17, 0x07060502', 's_mov_b32 s18, 0x07060503')
    A('s_waitcnt lgkmcnt(8)')
    A(f'v_max_f32_dpp v38, v36, v36 quad_perm:[1,0,3,2] {DPPF}')
    for kk in range(8):
        A(f's_waitcnt lgkmcnt({7-kk})')
        mfma(40, 96 + 4*kk, 64 + 4*kk, kk == 0)
        if kk == 0: A('v_sub_f32 v36, v36, v38', 'v_mul_f32 v36, s58, v36')
        if kk == 1: A('v_exp_f32 v36, v36')
        if kk == 2: A('v_mul_f32 v36, v36, v37')
        if kk == 3: A(f'v_add_f32_dpp v37, v36, v36 quad_perm:[1,0,3,2] {DPPF}')
        if kk == 4: A('v_rcp_f32 v37, v37')
        if kk == 5: A('v_mul_f32 v36, v36, v37')
    A(f'v_mul_f32_dpp v44, v36, v40 quad_perm:[0,0,0,0] {DPPF}', f'v_mul_f32_dpp v45, v36, v42 quad_perm:[2,2,2,2] {DPPF}')
    A(f'v_fmac_f32_dpp v44, v36, v41 quad_perm:[1,1,1,1] {DPPF}', f'v_fmac_f32_dpp v45, v36, v43 quad_perm:[3,3,3,3] {DPPF}')
    A('v_permlane16_swap_b32 v44, v46', 'v_permlane16_swap_b32 v45, v47')
    A('v_perm_b32 v48, v44, v47, s16', 'v_perm_b32 v49, v45, v47, s17', 'v_perm_b32 v50, v46, v47, s18')
    A('s_mov_b64 exec, 0xffff')
    A('buffer_store_dwordx4 v[48:51], v1, s[44:47], s43 offen sc1')
    A('s_mov_b64 exec, -1')
    stamp(9)
    A('s_mul_i32 s14, s5, 10240', f's_add_u32 s14, s14, {WS_X1}')
    A('s_cmp_eq_u32 s60, 3', 's_cbranch_scc1 L_F2')
    A('s_cmp_eq_u32 s60, 2', 's_cbranch_scc0 L_R')
    f1frags()
    A('s_add_u32 s3, s63, s14', 's_mov_b32 s13, 0x3f803f80')
    A.label('L_xpoll')
    A('buffer_load_dwordx4 v[48:51], v2, s[44:47], s3 offen sc1', 'buffer_load_dwordx4 v[52:55], v2, s[44:47], s3 offen offset:128 sc1')
    A('s_waitcnt vmcnt(0)')
    check_tags(['v50', 'v54'], 'v39', 'L_xpoll', xs)
    stamp(10)
    k0 = -2.0 * 1.4426950408889634 * 0.7978845608028654
    if lin:
        unpack(56, [48, 49, 52, 53])
        for i in range(4): pk('mul', 56+2*i, 56+2*i, 20+2*i)
        for i in range(4): A(f'v_cvt_pk_bf16_f32 v{40+i}, v{56+2*i}, v{57+2*i}')
        side = []
        for i, r in enumerate([48, 49, 52, 53]):
            side += [f'v_dot2_f32_bf16 v56, v{r}, s13, {"0" if i == 0 else "v56"}', f'v_dot2_f32_bf16 v57, v{r}, v{r}, {"0" if i == 0 else "v57"}']
        sh = lambda ks: [f'v_mov_b32_dpp v{40+4*ks+i}, v{40+i} row_shl:{4*ks} {DPPF} bound_ctrl:0' for i in range(4)]
        red = [f'v_add_f32_dpp v56, v56, v56 row_ror:4 {DPPF}', f'v_add_f32_dpp v57, v57, v57 row_ror:4 {DPPF}', f'v_add_f32_dpp v56, v56, v56 row_ror:8 {DPPF}', f'v_add_f32_dpp v57, v57, v57 row_ror:8 {DPPF}',
               'v_permlane16_swap_b32 v56, v57', 'v_add_f32 v56, v56, v57', 'v_mov_b32 v58, v56', 'v_permlane32_swap_b32 v56, v58', 'v_add_f32 v56, v56, v58', 'v_mov_b32 v57, v56', 'v_permlane16_swap_b32 v56, v57']
        fill = {0: sh(1)[:2], 1: sh(1)[2:], 2: side[:4], 3: side[4:], 4: sh(2)[:2], 5: sh(2)[2:], 6: red[:2], 7: red[2:4], 8: sh(3)[:2], 9: sh(3)[2:], 10: red[4:6], 11: red[6:7], 12: red[7:9], 13: red[9:10], 14: red[10:]}
        dd = [20, 24, 32, 36]
        A('s_waitcnt lgkmcnt(0)')
        for ks in range(4):
            for a_ in range(4):
                mfma(dd[a_], 40 + 4*ks, 64 + 16*a_ + 4*ks, ks == 0)
                A(*fill.get(4*ks + a_, []))
        A('s_mov_b64 exec, 15', f'ds_write_b64 v12, v[56:57] offset:{L_ST}')
        A('s_lshl_b32 s3, s61, 1', 's_add_u32 s3, s3, s4', 's_lshl_b32 s3, s3, 8', f's_add_u32 s3, s3, {WS_G}')
        A('s_mov_b64 exec, 0xffff')
        for a_ in range(4): A(f'ds_write_b128 v13, v[{dd[a_]}:{dd[a_]+3}] offset:{256*a_}')
        A('s_mov_b64 exec, -1', 'v_mov_b32 v58, s9', 'v_mov_b32 v59, s9')
        A('s_waitcnt lgkmcnt(0)')
        A('s_barrier')
        A('s_cmp_lt_u32 s4, 2', 's_cbranch_scc0 L_tend')
        A(f'ds_read2_b64 v[64:67], v11 offset0:{L_ST//8} offset1:{L_ST//8+4}', f'ds_read2_b64 v[68:71], v11 offset0:{L_ST//8+8} offset1:{L_ST//8+12}', f'ds_read_b64 v[72:73], v11 offset:{L_ST+128}')
        dsum(40, 0); dsum(46, 1)
        A(f'v_mov_b32 v52, {hex(f2u(k0))}', f'v_mov_b32 v38, {hex(f2u(1e-5))}')
        A('s_waitcnt lgkmcnt(6)')
        pk('add', 64, 64, 66); pk('add', 68, 68, 70); pk('add', 72, 72, 64); pk('add', 72, 72, 68)
        A(f'v_mul_f32 v72, {hex(f2u(1/640))}, v72', f'v_fmac_f32 v38, {hex(f2u(1/640))}, v73', 'v_fma_f32 v38, -v72, v72, v38')
        A('s_waitcnt lgkmcnt(3)')
        A('v_add_f32 v40, v40, v41', f'v_max_f32 v38, {hex(f2u(1e-5))}, v38', 'v_add_f32 v42, v42, v43', 'v_rsq_f32 v38, v38', 'v_add_f32 v40, v40, v44', 'v_fma_f32 v42, -v72, v28, v42', 'v_add_f32 v40, v40, v42')
        A('s_waitcnt lgkmcnt(0)')
        A('v_fma_f32 v40, v40, v38, v29', 'v_add_f32 v46, v46, v47', 'v_mul_f32 v41, v40, v40', 'v_add_f32 v48, v48, v49', f'v_fmac_f32 v52, {hex(f2u(k0*0.044715))}, v41', 'v_add_f32 v46, v46, v50', 'v_mul_f32 v52, v52, v40')
        A('v_fma_f32 v48, -v72, v30, v48', 'v_exp_f32 v52, v52', 'v_add_f32 v46, v46, v48', 'v_add_f32 v52, 1.0, v52', 'v_fma_f32 v46, v46, v38, v31', 'v_rcp_f32 v52, v52', 'v_mul_f32 v40, v40, v46', 'v_mul_f32 v40, v40, v52')
    else:
        for i, r in enumerate([48, 49, 52, 53]):
            A(f'v_dot2_f32_bf16 v36, v{r}, s13, {"0" if i == 0 else "v36"}', f'v_dot2_f32_bf16 v37, v{r}, v{r}, {"0" if i == 0 else "v37"}')
        unpack(56, [48, 49])
        allreduce_b('v36', 'v37', 'v38')
        A('s_mov_b64 exec, 15', f'ds_write_b64 v12, v[36:37] offset:{L_ST}', 's_mov_b64 exec, -1')
        unpack(60, [52, 53])
        A('s_lshl_b32 s3, s61, 1', 's_add_u32 s3, s3, s4', 's_lshl_b32 s3, s3, 8', f's_add_u32 s3, s3, {WS_G}', f'v_mov_b32 v38, {hex(f2u(1e-5))}')
        A('s_waitcnt lgkmcnt(0)')
        A('s_barrier')
        A(f'ds_read2_b64 v[40:43], v11 offset0:{L_ST//8} offset1:{L_ST//8+4}', f'ds_read2_b64 v[44:47], v11 offset0:{L_ST//8+8} offset1:{L_ST//8+12}', f'ds_read_b64 v[36:37], v11 offset:{L_ST+128}')
        A('s_waitcnt lgkmcnt(0)')
        pk('add', 40, 40, 42); pk('add', 44, 44, 46); pk('add', 36, 36, 40); pk('add', 36, 36, 44)
        A(f'v_mul_f32 v36, {hex(f2u(1/640))}, v36', f'v_fmac_f32 v38, {hex(f2u(1/640))}, v37', 'v_fma_f32 v38, -v36, v36, v38')
        for i in range(2): pk('add', 56+2*i, 56+2*i, 36, 'op_sel_hi:[1,0] neg_lo:[0,1] neg_hi:[0,1]')
        A(f'v_max_f32 v38, {hex(f2u(1e-5))}, v38', 'v_rsq_f32 v38, v38')
        for i in range(2, 4): pk('add', 56+2*i, 56+2*i, 36, 'op_sel_hi:[1,0] neg_lo:[0,1] neg_hi:[0,1]')
        for i in range(4): pk('mul', 56+2*i, 56+2*i, 20+2*i)
        for i in range(4): A(f'v_pk_fma_f32 v[{56+2*i}:{57+2*i}], v[{56+2*i}:{57+2*i}], v[38:39], v[{28+2*i}:{29+2*i}] op_sel_hi:[1,0,1]')
        for i in range(4): A(f'v_cvt_pk_bf16_f32 v{40+i}, v{56+2*i}, v{57+2*i}')
        A('v_mov_b32 v58, s9', 'v_mov_b32 v59, s9')
        for ks in range(4):
            for a_ in range(4):
                mfma(20 + 4*a_, 40 + 4*ks, 64 + 16*a_ + 4*ks, ks == 0)
                if ks < 3 and a_ < 2:
                    for i in (2*a_, 2*a_+1): A(f'v_mov_b32_dpp v{44+4*ks+i}, v{40+i} row_shl:{4*ks+4} {DPPF} bound_ctrl:0')
        A('s_mov_b64 exec, 0xffff')
        for a_ in range(4): A(f'ds_write_b128 v13, v[{20+4*a_}:{23+4*a_}] offset:{256*a_}')
        A('s_mov_b64 exec, -1')
        A('s_waitcnt lgkmcnt(0)')
        A('s_barrier')
        A('s_cmp_lt_u32 s4, 2', 's_cbranch_scc0 L_tend')
        for m in range(2):
            r = 40 + 6 * m
            A(f'ds_read2st64_b32 v[{r}:{r+1}], v14 offset0:{2*m} offset1:{4+2*m}', f'ds_read2st64_b32 v[{r+2}:{r+3}], v14 offset0:{8+2*m} offset1:{12+2*m}', f'ds_read_b32 v{r+4}, v14 offset:{4096+512*m}')
        k0 = -2.0 * 1.4426950408889634 * 0.7978845608028654
        A(f'v_mov_b32 v52, {hex(f2u(k0))}')
        A('s_waitcnt lgkmcnt(3)')
        A('v_add_f32 v40, v40, v41', 'v_add_f32 v42, v42, v43', 'v_add_f32 v40, v40, v44', 'v_add_f32 v40, v40, v42', 'v_mul_f32 v41, v40, v40')
        A('s_waitcnt lgkmcnt(0)')
        A('v_add_f32 v46, v46, v47', f'v_fmac_f32 v52, {hex(f2u(k0*0.044715))}, v41', 'v_add_f32 v48, v48, v49', 'v_mul_f32 v52, v52, v40', 'v_add_f32 v46, v46, v50')
        A('v_exp_f32 v52, v52', 'v_add_f32 v46, v46, v48', 'v_add_f32 v52, 1.0, v52', 'v_mul_f32 v40, v40, v46', 'v_rcp_f32 v52, v52', 'v_mul_f32 v40, v40, v52')
    pub4('v40', 56, 's3')
    stamp(11)
    A('s_branch L_tend')
    A.label('L_R')
    A('s_cmp_eq_u32 s59, -1', 's_cbranch_scc1 L_tend')
    A('s_lshl_b32 s3, s59, 13', f's_add_u32 s3, s3, {WS_Y}', 's_add_u32 s13, s3, 4096')
    A('s_lshl_b32 s59, s59, 8', 's_add_u32 s14, s14, s59')
    A('v_mov_b32 v42, s9', 'v_mov_b32 v43, s9', 's_mov_b32 s15, 15', 's_mov_b32 s16, 0x0c04000c', 's_mov_b32 s17, 0x04020100')
    if fast: A(f'ds_read_b32 v36, v10 offset:{L_FAST}', 's_waitcnt lgkmcnt(0)', 'v_readfirstlane_b32 s12, v36')
    A.label('L_ypoll')
    for g in range(4):
        A(f's_bitcmp1_b32 s15, {g}', f's_cbranch_scc0 L_yl{g}')
        for i in range(2): A(f'buffer_load_dwordx4 v[{64+8*g+4*i}:{67+8*g+4*i}], v1, s[44:47], {"s3" if g < 2 else "s13"} offen offset:{2048*(g&1)+1024*i} sc1')
        A.label(f'L_yl{g}')
    A('s_waitcnt vmcnt(0)')
    for g in range(4):
        r = 64 + 8 * g
        A(f's_bitcmp1_b32 s15, {g}', f's_cbranch_scc0 L_yc{g}')
        A(f'v_xor_b32 v36, s9, v{r+3}', f'v_perm_b32 v37, v{r+1}, v{r}, s16', f'v_bitop3_b32 v36, v36, v{r+7}, s9 bitop3:0xf6', f'v_perm_b32 v38, v{r+5}, v{r+4}, s16')
        A('v_cmp_ne_u32 vcc, 0, v36', f'v_perm_b32 v{r+3}, v{r+2}, v37, s17', f'v_perm_b32 v{r+7}, v{r+6}, v38, s17')
        A(f's_cbranch_vccnz L_yc{g}')
        pk('add', r, r, r + 4); A(f's_bitset0_b32 s15, {g}'); pk('add', r + 2, r + 2, r + 6)
        A.label(f'L_yc{g}')
    A('s_cmp_eq_u32 s15, 0', 's_cbranch_scc1 L_yok')
    if ysleep: A(f's_sleep {ysleep}')
    A('s_sub_u32 s95, s95, 1', 's_cbranch_scc0 L_ypoll', 's_mov_b32 s95, 0')
    A.label('L_yok')
    stamp(10)
    pk('add', 64, 64, 72); pk('add', 80, 80, 88); pk('add', 66, 66, 74); pk('add', 82, 82, 90); pk('add', 64, 64, 80); pk('add', 66, 66, 82)
    A('v_permlane16_swap_b32 v64, v65', 'v_permlane16_swap_b32 v66, v67', 'v_add_f32 v64, v64, v65', 'v_add_f32 v66, v66, v67')
    A('v_permlane32_swap_b32 v64, v66', 'v_add_f32 v44, v64, v66', 'v_fma_f32 v44, v44, v21, v20')
    A(f'v_mov_b32_dpp v46, v44 quad_perm:[1,1,3,3] {DPPF}', 'v_cvt_pk_bf16_f32 v40, v44, v46', f'v_mov_b32_dpp v41, v40 quad_perm:[2,2,2,2] {DPPF}')
    A('s_mov_b32 exec_lo, 0x11111111', 's_mov_b32 exec_hi, 0x11111111')
    if fast:
        A('s_cmp_eq_u32 s12, 1', 's_cbranch_scc0 L_slowx1')
        A('buffer_store_dwordx4 v[40:43], v12, s[44:47], s14 offen')
        A('s_branch L_x1done')
        A.label('L_slowx1')
    A('buffer_store_dwordx4 v[40:43], v12, s[44:47], s14 offen sc1')
    A.label('L_x1done')
    stamp(11)
    A('s_branch L_tend')
    A.label('L_F2')
    A('s_cmp_eq_u32 s4, 4', 's_cbranch_scc1 L_tend')
    for ks in range(12): tr(64 + 4*ks, 'v9', 1024*ks, 1024*ks + 128)
    A('s_lshl_b32 s3, s61, 8', 's_add_u32 s14, s14, s3')
    A.label('L_x2poll')
    A('buffer_load_dwordx4 v[24:27], v11, s[44:47], s14 offen sc1', 's_waitcnt vmcnt(0)')
    check_tags(['v26'], None, 'L_x2poll', 2)
    A('v_cndmask_b32 v24, v25, v24, s[98:99]', 'v_lshlrev_b32 v20, v22, v24', 'v_and_b32 v20, 0xffff0000, v20')
    A('s_mul_i32 s3, s4, 6144', f's_add_u32 s3, s3, {WS_G}', 's_add_u32 s13, s3, 4096', 's_lshl_b32 s42, s61, 5')
    A('v_lshrrev_b32 v23, 2, v0', 'v_lshlrev_b32 v23, 1, v23', 'v_mul_u32_u24 v24, 1280, v4', 'v_add_u32 v23, v23, v24')
    A.label('L_gpoll')
    for i in range(6):
        A(f'buffer_load_dwordx4 v[{36+4*i}:{39+4*i}], v2, s[44:47], {"s3" if i < 4 else "s13"} offen offset:{2048*((i//2)%2)+128*(i%2)} sc1')
    A('s_waitcnt vmcnt(0)')
    check_tags([f'v{38+4*i}' for i in range(6)], 'v60', 'L_gpoll', 0)
    stamp(10)
    for n in range(12):
        blk, ks = divmod(n, 4)
        for i in range(4):
            sr = 36 + 8 * blk + (i & 1) + 4 * (i >> 1)
            if ks == 0: A(f'v_mov_b32 v{112+i}, v{sr}')
            else: A(f'v_mov_b32_dpp v{112+4*ks+i}, v{sr} row_shl:{4*ks} {DPPF} bound_ctrl:0')
        if n: mfma(60, 112 + 4*((n-1) % 4), 64 + 4*(n-1), n == 1)
    mfma(60, 124, 108, False)
    A('s_mov_b64 exec, 0xffff')
    A('ds_write_b128 v13, v[60:63]')
    A('s_mov_b64 exec, -1')
    A('s_waitcnt lgkmcnt(0)')
    A('s_barrier')
    A('s_cmp_eq_u32 s4, 0', 's_cbranch_scc0 L_tend')
    A('ds_read2st64_b32 v[40:41], v14 offset0:0 offset1:4', 'ds_read2st64_b32 v[42:43], v14 offset0:8 offset1:12')
    A('s_waitcnt lgkmcnt(0)')
    pk('add', 40, 40, 42)
    A('v_add_f32 v40, v40, v41', 'v_fma_f32 v40, v40, v21, v20', 'v_cvt_pk_bf16_f32 v40, v40, v40')
    A(f'buffer_store_short v40, v23, s[52:55], s42 offen {OP}')
    stamp(11)
    A('s_cmp_eq_u32 s61, 0', 's_cbranch_scc0 L_tend')
    A('v_mov_b32 v41, s9', 's_mov_b64 exec, 1')
    A(f'buffer_store_dword v41, v10, s[44:47], 0 offen {OP}')
    A.label('L_tend')
    if stamps: A('s_memtime s[90:91]', 's_memrealtime s[92:93]')
    stamp_flush(15)
    A.label('L_end')
    A('s_endpgm')

    body = A.fix()
    hdr = open('adaLN_cond__gqa_block_cached__geglu_ffn__decode.s.ref').read().split('\n')
    hdr = [l for l in hdr if l.startswith(';') and '@launch' not in l and 'Override' not in l and 'grid=ceil' not in l]
    out = hdr + [f'; @launch grid=(256,1,1) block=(832,1,1) lds={LDS_SIZE}',
                 '.amdgcn_target "amdgcn-amd-amdhsa--gfx950"', '.text', f'.globl {KNAME}', '.p2align 8', f'.type {KNAME},@function', f'{KNAME}:']
    out += [('' if l.endswith(':') else '    ') + l for l in body]
    out += ['.section .rodata,"a"', '.p2align 6', f'.amdhsa_kernel {KNAME}',
            '  .amdhsa_next_free_vgpr 128', '  .amdhsa_next_free_sgpr 100', '  .amdhsa_accum_offset 128',
            '  .amdhsa_float_denorm_mode_32 3',
            '  .amdhsa_group_segment_fixed_size 0', '  .amdhsa_kernarg_size 112', '  .amdhsa_user_sgpr_count 2',
            '  .amdhsa_user_sgpr_kernarg_segment_ptr 1', '  .amdhsa_system_sgpr_workgroup_id_x 1', '.end_amdhsa_kernel']
    return '\n'.join(out) + '\n'

if __name__ == '__main__':
    kw = eval('dict(' + (sys.argv[2] if len(sys.argv) > 2 else '') + ')')
    open(sys.argv[1], 'w').write(gen(**kw))
```

```python
import struct, sys
from asmgen import Asm
KNAME = 'adaLN_cond__gqa_block_cached__geglu_ffn__decode_kernel'
def f2u(x): return struct.unpack('<I', struct.pack('<f', x))[0]
LOG2E = f2u(1.4426950408889634)
SCALE = f2u(192 ** -0.5)
DPPF = 'row_mask:0xf bank_mask:0xf'

WS_EP = 0
WS_XID = 0x110000
WS_X1 = 0xfa000
WS_G = 0x5000
WS_MOD = 0xb000
WS_Q = 0x1a000
WS_REC = 0x32000
WS_Y = 0x5a000
WS_STAMP = 0x180000
WS_SIZE = 0x200000
L_CNT = 0
L_FAST = 16
L_ST = 128
L_D = 512
L_RC = 5632
L_REC = 10880
L_WO = 19072
L_Q = 49792
L_W = 50176
LDS_SIZE = L_W + 81920
assert L_W % 128 == 0

def ngroups(D):
    out = []
    for i in range(256):
        x = i & 7; k = i >> 3; p = k >> 1
        d = 0 if p >= 11 else D[3] if p >= 9 else D[2] if x + 8 * p >= 60 else D[0] if p < 5 else D[1]
        out.append(128 + d if k & 1 else 128 - d)
    return out

def rwaves():
    ty, _ = roles(); out = []
    for i in range(256):
        k = i >> 3; p = k >> 1
        if ty[i] in (2, 3): continue
        r = (p - 9 if p < 11 else k - 20) if ty[i] == 0 else 12 + p
        if r < 20: out.append(i)
    return out

def roles():
    ty, crit = [], []
    for i in range(256):
        x = i & 7; k = i >> 3; p = k >> 1; sp = k & 1; m = x + 8 * p
        if p >= 11: t = 0
        elif sp == 0: t = 3 if p < 5 else 2
        elif p >= 9: t = 0
        else: t = 1 if m < 60 else 4
        ty.append(t); crit.append(t == 1 and m < 20)
    return ty, crit

def gen(H0=16, QP=3, D=(4, 5, 8, 3), fast=1, sleep=1, qsleep=4, xs=0, stamps=False, POL='nt', KP=None, VP=None, WP='', st0=0, OP='', ysleep=1, lin=1, pat=0, rot=3):
    KP = POL if KP is None else KP; VP = POL if VP is None else VP
    A = Asm()
    def stamp(i):
        if stamps: A(f's_memrealtime s[{64+2*i}:{65+2*i}]')
    def stamp_flush(n):
        if not stamps: return
        A('s_waitcnt lgkmcnt(0)')
        A('s_lshl_b32 s60, s2, 4', 's_add_u32 s60, s60, s4', 's_lshl_b32 s60, s60, 6', f's_add_u32 s60, s60, {WS_STAMP}')
        A('v_mov_b32 v126, 0', 's_mov_b64 exec, 1')
        for i in range(n):
            A(f'v_mov_b32 v127, s{64+2*i}', f'buffer_store_dword v127, v126, s[44:47], s60 offen offset:{4*i}')
        A('s_waitcnt vmcnt(0)')
    def rnd(dst, src, tmp=None):
        t = tmp or dst
        A(f'v_cvt_pk_bf16_f32 {t}, {src}, {src}', f'v_lshlrev_b32 {dst}, 16, {t}')
    def srd(base, ptr, size, off=None):
        if off is None:
            A(f's_mov_b32 s{base}, s{ptr}', f's_mov_b32 s{base+1}, s{ptr+1}')
        else:
            A(f's_add_u32 s{base}, s{ptr}, {off}', f's_addc_u32 s{base+1}, s{ptr+1}, 0')
        A(f's_mov_b32 s{base+2}, {size}', f's_mov_b32 s{base+3}, 0x20000')
    def tagcalc():
        A('s_mul_i32 s9, s9, 0x9e3779b1', 's_add_u32 s9, s9, 0x7f4a7c15')
    def xidpub(name):
        if not fast: return
        A('s_cmp_eq_u32 s4, 0', f's_cbranch_scc0 {name}')
        A('s_getreg_b32 s3, hwreg(HW_REG_XCC_ID)', 'v_mov_b32 v24, s3', 'v_mov_b32 v25, s9', 's_lshl_b32 s3, s5, 5', 's_add_u32 s3, s3, s6', 's_lshl_b32 s3, s3, 7', f's_add_u32 s3, s3, {WS_XID}')
        A('s_mov_b64 exec, 1', 'buffer_store_dwordx2 v[24:25], v10, s[44:47], s3 offen sc1', 's_mov_b64 exec, -1')
        A.label(name)
    def check_tags(regs, acc, retry, slp):
        done = retry + '_ok'
        if len(regs) == 1:
            A(f'v_cmp_ne_u32 vcc, s9, {regs[0]}')
        else:
            A(f'v_xor_b32 {acc}, s9, {regs[0]}')
            for r in regs[1:]:
                A(f'v_bitop3_b32 {acc}, {acc}, {r}, s9 bitop3:0xf6')
            A(f'v_cmp_ne_u32 vcc, 0, {acc}')
        A(f's_cbranch_vccz {done}')
        if slp: A(f's_sleep {slp}')
        A('s_sub_u32 s95, s95, 1', f's_cbranch_scc0 {retry}', 's_mov_b32 s95, 0')
        A.label(done)
    def lds_signal(cnt):
        A('s_mov_b64 exec, 1', f'ds_add_u32 v10, v11 offset:{cnt}', 's_mov_b64 exec, -1')
    def lds_wait(cnt, target, name, vtmp='v12', vaddr='v10', stmp='s3', slp=0):
        A.label(name)
        if slp: A(f's_sleep {slp}')
        A(f'ds_read_b32 {vtmp}, {vaddr} offset:{cnt}', 's_waitcnt lgkmcnt(0)', f'v_readfirstlane_b32 {stmp}, {vtmp}', f's_cmp_ge_u32 {stmp}, {target}',
          f's_cbranch_scc1 {name}_x', 's_sub_u32 s95, s95, 1', f's_cbranch_scc0 {name}', 's_mov_b32 s95, 0')
        A.label(name + '_x')
    def dma_loop(n, voff, step, name, extra=(), pol=None):
        pol = WP if pol is None else pol
        A(f's_mov_b32 s3, {n}')
        A.label(name)
        A(f'buffer_load_dwordx4 {voff}, s[48:51], s13 offen {pol} lds')
        A(*extra)
        A('s_add_u32 m0, m0, 1024')
        if step: A(f's_add_u32 s13, s13, {step}')
        A('s_sub_u32 s3, s3, 1', 's_cmp_lg_u32 s3, 0', f's_cbranch_scc1 {name}')
    def allreduce_b(s1, s2, t):
        for r in (4, 8):
            A(f'v_add_f32_dpp {s1}, {s1}, {s1} row_ror:{r} {DPPF}', f'v_add_f32_dpp {s2}, {s2}, {s2} row_ror:{r} {DPPF}')
        A(f'v_permlane16_swap_b32 {s1}, {s2}', f'v_add_f32 {s1}, {s1}, {s2}')
        A(f'v_mov_b32 {t}, {s1}', f'v_permlane32_swap_b32 {s1}, {t}', f'v_add_f32 {s1}, {s1}, {t}')
        A(f'v_mov_b32 {s2}, {s1}', f'v_permlane16_swap_b32 {s1}, {s2}')
    def rnd8(e, t):
        for i in range(4): A(f'v_cvt_pk_bf16_f32 v{t+i}, v{e+2*i}, v{e+2*i+1}')
        for i in range(4): A(f'v_lshlrev_b32 v{e+2*i}, 16, v{t+i}', f'v_and_b32 v{e+2*i+1}, 0xffff0000, v{t+i}')
    def unpack(dst, srcs):
        for i, s_ in enumerate(srcs): A(f'v_lshlrev_b32 v{dst+2*i}, 16, v{s_}', f'v_and_b32 v{dst+2*i+1}, 0xffff0000, v{s_}')
    def pk(op, d, a, b, mod=''):
        A(f'v_pk_{op}_f32 v[{d}:{d+1}], v[{a}:{a+1}], v[{b}:{b+1}] {mod}')
    def plus1(e):
        for i in range(4): A(f'v_pk_add_f32 v[{e+2*i}:{e+1+2*i}], v[{e+2*i}:{e+1+2*i}], 1.0 op_sel_hi:[1,0]')
    def ashift(a0):
        for ks in range(1, 4):
            for i in range(4): A(f'v_mov_b32_dpp v{a0+4*ks+i}, v{a0+i} row_shl:{4*ks} {DPPF} bound_ctrl:0')
    def vpub(dst, c, b, tmp):
        A(f'v_bfe_u32 {tmp}, {c}, 2, 1', f'v_lshlrev_b32 {dst}, 7, {tmp}', f'v_lshrrev_b32 {tmp}, 3, {c}', f'v_lshl_add_u32 {dst}, {tmp}, 6, {dst}',
          f'v_bfe_u32 {tmp}, {c}, 1, 1', f'v_lshl_add_u32 {dst}, {tmp}, 2, {dst}', f'v_lshl_add_u32 {dst}, {b}, 4, {dst}')
    def pub4(val, g, soff):
        A(f'v_mov_b32_dpp v{g+1}, {val} row_shl:4 {DPPF} bound_ctrl:0', f'v_cvt_pk_bf16_f32 v{g}, {val}, v{g+1}', f'v_mov_b32_dpp v{g+1}, v{g} row_shl:8 {DPPF} bound_ctrl:0')
        A('s_mov_b32 exec_lo, 0x000f000f', 's_mov_b32 exec_hi, 0x000f000f')
        A(f'buffer_store_dwordx4 v[{g}:{g+3}], v3, s[44:47], {soff} offen sc1')
    def mfma(d, a, b, first):
        A(f'v_mfma_f32_16x16x32_bf16 v[{d}:{d+3}], v[{a}:{a+3}], v[{b}:{b+3}], {"0" if first else f"v[{d}:{d+3}]"}')
    def tr(r, addr, o0, o1, addr1=None):
        A(f'ds_read_b64_tr_b16 v[{r}:{r+1}], {addr} offset:{o0}', f'ds_read_b64_tr_b16 v[{r+2}:{r+3}], {addr1 or addr} offset:{o1}')

    A('s_cmp_ge_u32 s2, 256', 's_cbranch_scc1 L_end')
    stamp(0)
    if stamps: A('s_memtime s[88:89]')
    A('s_load_dwordx16 s[16:31], s[0:1], 0', 's_load_dwordx8 s[32:39], s[0:1], 64', 's_load_dwordx2 s[40:41], s[0:1], 104')
    A('v_lshrrev_b32 v1, 6, v0', 'v_and_b32 v0, 63, v0', 'v_readfirstlane_b32 s4, v1            ; wave')
    A('s_and_b32 s5, s2, 7', 's_lshr_b32 s6, s2, 3', 's_lshr_b32 s3, s6, 3', 's_lshl_b32 s7, s5, 2', 's_add_u32 s7, s7, s3                 ; head', 's_and_b32 s8, s6, 7')
    A('s_mov_b32 s95, 0x80000')
    A('s_lshr_b32 s3, s6, 1', 's_and_b32 s13, s6, 1')
    A('s_mov_b32 s60, 0', 's_sub_u32 s61, s6, 20', 's_mov_b32 s63, 0')
    A('s_cmp_ge_u32 s3, 11', 's_cbranch_scc1 L_roled')
    A('s_lshl_b32 s14, s3, 3', 's_add_u32 s14, s14, s5')
    A('s_cmp_lt_u32 s3, 5', f's_cselect_b32 s63, {D[0]}, {D[1]}', 's_cmp_ge_u32 s14, 60', f's_cselect_b32 s63, {D[2]}, s63', 's_cmp_ge_u32 s3, 9', f's_cselect_b32 s63, {D[3]}, s63')
    A('s_cmp_eq_u32 s13, 0', 's_cbranch_scc1 L_role0')
    A('s_sub_u32 s61, s3, 9', 's_cmp_ge_u32 s3, 9', 's_cbranch_scc1 L_roled')
    A('s_mov_b32 s61, s14', 's_cmp_lt_u32 s14, 60', 's_cselect_b32 s60, 1, 4', 's_branch L_roled')
    A.label('L_role0')
    A('s_cmp_lt_u32 s3, 5', 's_cselect_b32 s60, 3, 2', 's_cselect_b32 s14, 5, 6', 's_cselect_b32 s15, 0, 5', 's_mul_i32 s61, s5, s14', 's_add_u32 s61, s61, s3', 's_sub_u32 s61, s61, s15')
    A.label('L_roled')
    A('s_cmp_lt_u32 s4, 5', 's_cbranch_scc1 L_service')

    q = ['v4', 'v5', 'v6']
    acc = [f'v{8+i}' for i in range(6)]
    vM, vL = 'v14', 'v15'
    def ld(kind, j):
        r, s = (32 + 4 * j, 48) if kind == 'K' else (64 + 4 * j, 52)
        vo, off = ('v1', j * 768) if j < 5 else ('v2', (j - 5) * 768)
        A(f'buffer_load_dwordx3 v[{r}:{r+2}], {vo}, s[{s}:{s+3}], s10 offen offset:{off} {KP if kind == "K" else VP}')
    def goff(t):
        if pat == 1: A(f's_lshl_b32 s10, {t}, 1', 's_add_u32 s10, s10, s86')
        else: A(f's_and_b32 s10, {t}, -8', f's_add_u32 s10, s10, {t}', 's_add_u32 s10, s10, s86')
        if rot: A('s_add_u32 s10, s10, s42', 's_sub_u32 s3, s10, 224', 's_cmp_ge_u32 s10, 224', 's_cselect_b32 s10, s3, s10')
        A(f's_mul_i32 s3, {t}, s94', 's_add_u32 s3, s3, s87', f's_cmp_lt_u32 {t}, 112', 's_cselect_b32 s10, s10, s3', 's_mul_i32 s10, s10, 6144')
    A('v_mul_u32_u24 v1, 12, v0', 'v_add_u32 v2, 3840, v1')
    A('s_lshr_b32 s3, s8, 1', 's_lshl_b32 s3, s3, 5', 's_add_u32 s3, s3, s7', 's_mul_i32 s12, s3, 1572864')
    if rot: A(f's_mul_i32 s42, s3, {rot}', 's_mul_hi_u32 s86, s42, 306783379', 's_mul_i32 s86, s86, 14', 's_sub_u32 s42, s42, s86', 's_lshl_b32 s42, s42, 4')
    A('s_mov_b32 s86, s13' if pat == 1 else 's_lshl_b32 s86, s13, 3', 's_mul_i32 s87, s13, 255', 's_add_u32 s87, s87, 112', 's_cmp_eq_u32 s13, 0', 's_cselect_b32 s94, 1, -1')
    A('s_mul_i32 s63, s63, s94', 's_sub_u32 s63, 128, s63')
    A('s_sub_u32 s11, s4, 5')
    goff('s11')
    A('s_cmp_lt_u32 s61, 20', 's_cselect_b32 s15, 2, 0', 's_cmp_eq_u32 s60, 1', 's_cselect_b32 s15, s15, 0', 's_cmp_eq_u32 s60, 0', 's_cselect_b32 s15, 1, s15')
    A('v_mov_b32 v29, 0', 'v_mov_b32 v30, 1')
    A('s_waitcnt lgkmcnt(0)')
    if st0: stamp(3)
    srd(48, 18, 1572864, 's12'); srd(52, 20, 1572864, 's12')
    A('s_load_dword s9, s[40:41], 0')
    A('s_cmp_eq_u32 s15, 0', 's_cbranch_scc1 L_hold2_x')
    A('s_barrier')
    A('s_cmp_eq_u32 s15, 2', 's_cbranch_scc0 L_hold2_x')
    lds_wait(4, 4, 'L_hold2', 'v16', 'v29', 's14', 2)
    order = [('K', j) for j in range(8)] + [('V', j) for j in range(8)]
    for n, o in enumerate(order):
        if n == H0:
            A('s_cmp_eq_u32 s15, 1', 's_cbranch_scc0 L_hold1_x')
            lds_wait(4, 4, 'L_hold1', 'v16', 'v29', 's14', 2)
        if QP and QP <= n < H0:
            A('s_cmp_eq_u32 s15, 1', f's_cbranch_scc0 L_qp{n}', f's_waitcnt vmcnt({QP - 1})')
            A('ds_read_b32 v16, v29 offset:4', 's_waitcnt lgkmcnt(0)', 'v_readfirstlane_b32 s14, v16', 's_cmp_ge_u32 s14, 4', 's_cselect_b32 s15, 3, 1')
            A.label(f'L_qp{n}')
        ld(*o)
        if st0 and n == 0: A('s_waitcnt vmcnt(0)'); stamp(4)
    A('s_cmp_eq_u32 s15, 0', 's_cbranch_scc0 L_nobar')
    A('s_barrier')
    A.label('L_nobar')
    if stamps: srd(44, 40, WS_SIZE)
    A('s_mul_i32 s14, s7, 3072', 's_lshr_b32 s3, s8, 1', 's_lshl_b32 s3, s3, 6', 's_add_u32 s14, s14, s3', f's_add_u32 s14, s14, {WS_Q}')
    A('s_lshl_b32 s3, s11, 9', 's_add_u32 s14, s14, s3', 's_add_u32 s84, s40, s14', 's_addc_u32 s85, s41, 0')
    A('v_and_b32 v3, 31, v0', 'v_mul_u32_u24 v3, 12, v3', 's_lshl_b32 s3, s11, 6', 'v_lshlrev_b32 v31, 2, v0', 'v_add_u32 v31, s3, v31')
    A('s_lshl_b32 s3, s11, 10', f's_add_u32 s3, s3, {L_REC}', 'v_lshlrev_b32 v7, 4, v0', 'v_add_u32 v7, s3, v7')
    A('s_mov_b32 s56, 0xcccccccc', 's_mov_b32 s57, 0xcccccccc', f's_mov_b32 s58, {hex(LOG2E)}', f's_mov_b32 s59, {hex(SCALE)}', 's_mov_b32 s43, 1572864')
    for a in acc: A(f'v_mov_b32 {a}, 0')
    A(f'v_mov_b32 {vM}, 0xff7fffff', f'v_mov_b32 {vL}, 0')
    A('s_waitcnt lgkmcnt(0)')
    tagcalc()
    stamp(1)
    A('s_cmp_lt_u32 s11, 6', 's_cbranch_scc0 L_qw')
    A('s_branch L_qpoll')
    A.label('L_qretry')
    A(f's_sleep {qsleep}', 's_sub_u32 s95, s95, 1', 's_cbranch_scc0 L_qpoll', 's_mov_b32 s95, 0', 's_branch L_qgot')
    A.label('L_qpoll')
    A('s_load_dwordx16 s[16:31], s[84:85], 0 glc', 's_load_dwordx8 s[32:39], s[84:85], 256 glc', 's_load_dwordx8 s[76:83], s[84:85], 288 glc', 's_waitcnt lgkmcnt(0)')
    sq = list(range(16, 40, 2)) + list(range(76, 84, 2))
    for r in sq: A(f's_cmp_eq_u32 s{r+1}, s9', 's_cbranch_scc0 L_qretry')
    A.label('L_qgot')
    for i, r in enumerate(sq): A(f'v_writelane_b32 v16, s{r}, {i}')
    A('s_mov_b64 exec, 0xffff', f'ds_write_b32 v31, v16 offset:{L_Q}', 's_mov_b64 exec, 1', 'ds_add_u32 v29, v30 offset:12', 's_mov_b64 exec, -1')
    lds_wait(12, 6, 'L_qw', 'v16', 'v29', 's14', 1)
    stamp(2)
    for i in range(3): A(f'ds_read_b32 {q[i]}, v3 offset:{L_Q + 4*i}')
    A('s_waitcnt lgkmcnt(0)')
    A.label('L_loop')
    A('s_add_u32 s11, s11, 8')
    goff('s11')
    A('s_cmp_ge_u32 s11, s63', 's_cselect_b32 s50, 0, s43', 's_cselect_b32 s54, 0, s43')
    T = lambda j: f'v{35+4*j}'
    for j in range(8):
        A('s_waitcnt vmcnt(15)')
        for i in range(3): A(f'v_dot2_f32_bf16 {T(j)}, v{32+4*j+i}, {q[i]}, {T(j) if i else "0"}')
        ld('K', j)
    for i in range(4): A(f'v_add_f32_dpp v{16+i}, {T(i)}, {T(i)} row_ror:8 row_mask:0xf bank_mask:0x3')
    for i in range(4): A(f'v_add_f32_dpp v{16+i}, {T(i+4)}, {T(i+4)} row_ror:8 row_mask:0xf bank_mask:0xc')
    for i in range(2): A(f'v_add_f32_dpp v{20+i}, v{16+i}, v{16+i} row_half_mirror row_mask:0xf bank_mask:0x5')
    for i in range(2): A(f'v_add_f32_dpp v{20+i}, v{18+i}, v{18+i} row_half_mirror row_mask:0xf bank_mask:0xa')
    A(f'v_add_f32_dpp v22, v20, v20 quad_perm:[2,3,0,1] {DPPF}', f'v_add_f32_dpp v23, v21, v21 quad_perm:[2,3,0,1] {DPPF}')
    A('v_cndmask_b32 v22, v22, v23, s[56:57]')
    A(f'v_add_f32_dpp v22, v22, v22 quad_perm:[1,0,3,2] {DPPF}')
    A('v_mov_b32 v23, v22', 'v_permlane16_swap_b32 v22, v23', 'v_add_f32 v22, v22, v23')
    rnd('v22', 'v22'); A('v_mul_f32 v22, s59, v22'); rnd('v22', 'v22')
    A(f'v_max_f32_dpp v23, v22, v22 quad_perm:[2,3,0,1] {DPPF}', f'v_max_f32_dpp v23, v23, v23 row_half_mirror {DPPF}', f'v_max_f32_dpp v23, v23, v23 row_ror:8 {DPPF}')
    A('v_mov_b32 v25, v23', 'v_permlane32_swap_b32 v23, v25', f'v_max3_f32 v23, v23, v25, {vM}')
    A(f'v_sub_f32 v24, {vM}, v23', 'v_sub_f32 v22, v22, v23', f'v_mov_b32 {vM}, v23')
    A('v_mul_f32 v24, s58, v24', 'v_mul_f32 v22, s58, v22', 'v_exp_f32 v24, v24', 'v_exp_f32 v22, v22')
    for i in range(3): pk('mul', 8+2*i, 8+2*i, 24, 'op_sel_hi:[1,0]')
    A('v_cvt_pk_bf16_f32 v26, v22, 0', 'v_cvt_pk_bf16_f32 v27, 0, v22')
    A(f'v_add_f32_dpp v22, v22, v22 quad_perm:[2,3,0,1] {DPPF}', f'v_mul_f32 {vL}, {vL}, v24', f'v_add_f32_dpp v22, v22, v22 row_half_mirror {DPPF}')
    A(f'v_add_f32_dpp v22, v22, v22 row_ror:8 {DPPF}', f'v_mul_f32 v31, 0.5, {vM}', f'v_add_f32 {vL}, {vL}, v22')
    for j in range(8):
        A('s_waitcnt vmcnt(15)')
        for i in range(3):
            A(f'v_dot2c_f32_bf16_dpp {acc[2*i]}, v26, v{64+4*j+i} row_newbcast:{2*j} {DPPF}')
            A(f'v_dot2c_f32_bf16_dpp {acc[2*i+1]}, v27, v{64+4*j+i} row_newbcast:{2*j} {DPPF}')
        ld('V', j)
    A('s_cmp_lt_u32 s11, s63', 's_cbranch_scc1 L_loop')
    if not st0: stamp(3)
    A(f'v_permlane32_swap_b32 {vL}, v31')
    for i in range(3): A(f'v_permlane32_swap_b32 {acc[2*i]}, {acc[2*i+1]}')
    A(f'v_add_f32 v23, {vL}, v31')
    for i in range(3): A(f'v_add_f32 v{20+i}, {acc[2*i]}, {acc[2*i+1]}')
    A('ds_write_b128 v7, v[20:23]')
    A('s_waitcnt lgkmcnt(0)', 's_barrier')
    if not st0: stamp(4)
    stamp_flush(5)
    A('s_endpgm')

    A.label('L_service')
    A('s_setprio 2')
    A('v_and_b32 v4, 3, v0', 'v_bfe_u32 v5, v0, 2, 2', 'v_lshrrev_b32 v6, 4, v0', 'v_mov_b32 v15, 0')
    A('v_mov_b32 v10, 0', 'v_mov_b32 v11, 1', 'v_lshlrev_b32 v1, 4, v0')
    A('s_cmp_eq_u32 s4, 0', 's_cbranch_scc0 L_nozero')
    for o in (0, 4, 8, 12, 20, 24): A(f'ds_write_b32 v10, v10 offset:{o}')
    A.label('L_nozero')
    A('s_lshl_b32 s62, s4, 14', f's_add_u32 s62, s62, {L_W}')
    A('s_waitcnt lgkmcnt(0)')
    A('s_load_dword s9, s[40:41], 0')
    A('s_cmp_gt_u32 s60, 1', 's_cbranch_scc1 L_nojob')
    A('v_mul_u32_u24 v7, 1280, v4', 'v_lshl_add_u32 v7, v5, 6, v7', 'v_lshl_add_u32 v7, v6, 4, v7', 's_lshl_b32 s3, s4, 8')
    A('s_cmp_eq_u32 s60, 0', 's_cbranch_scc0 L_modjob')
    srd(52, 16, 5120)
    srd(48, 22, 640 * 12288)
    A('s_mov_b32 s42, 12288', 's_mov_b32 s59, s61', 's_mul_i32 s13, s5, 12', 's_add_u32 s61, s61, s13', 's_lshl_b32 s13, s61, 7')
    A('s_branch L_dojob')
    A.label('L_modjob')
    srd(52, 34, 5120)
    A('buffer_load_dwordx4 v[36:39], v7, s[52:55], s3 offen', 's_mov_b32 s54, 0')
    srd(48, 36, 640 * 7680)
    A('s_mov_b32 s42, 7680', 's_lshl_b32 s13, s61, 7')
    A.label('L_dojob')
    A('v_lshrrev_b32 v8, 3, v0', 's_lshl_b32 s3, s4, 7', 'v_add_u32 v8, s3, v8', 'v_mul_lo_u32 v8, v8, s42')
    A('v_and_b32 v9, 7, v0', 'v_lshlrev_b32 v9, 4, v9', 'v_and_b32 v12, 1, v6', 'v_lshlrev_b32 v12, 5, v12', 'v_xor_b32 v9, v9, v12', 'v_add_u32 v8, v8, v9')
    A('s_lshl_b32 s42, s42, 3', 's_mov_b32 m0, s62')
    dma_loop(16, 'v8', 's42', 'L_dma0', ['v_xor_b32 v8, 64, v8'], POL)
    for t in range(5): A(f'buffer_load_dwordx4 v[{20+4*t}:{23+4*t}], v7, s[52:55], 0 offen offset:{256*t}' if t < 4 else 'buffer_load_dwordx4 v[60:63], v7, s[52:55], 0 offen offset:1024')
    A('s_lshl_b32 s3, s4, 8', 'buffer_load_dwordx4 v[56:59], v7, s[52:55], s3 offen')
    A.label('L_nojob')
    A('s_barrier')
    srd(44, 40, WS_SIZE)
    A('s_lshr_b32 s3, s6, 1', 's_add_u32 s3, s3, 12', 's_cmp_eq_u32 s60, 0', 's_cselect_b32 s3, s59, s3', 's_lshl_b32 s59, s3, 1', 's_add_u32 s59, s59, s4', 's_sub_u32 s59, s59, 1')
    A('s_cmp_lt_u32 s3, 20', 's_cselect_b32 s59, s59, -1', 's_and_b32 s3, s60, 6', 's_cmp_eq_u32 s3, 2', 's_cselect_b32 s59, -1, s59', 's_sub_u32 s3, s4, 1', 's_cmp_lt_u32 s3, 2', 's_cselect_b32 s59, s59, -1')
    A('v_lshrrev_b32 v2, 2, v0')
    vpub('v3', 'v2', 'v4', 'v12')
    A('v_lshrrev_b32 v12, 1, v6', 'v_lshlrev_b32 v2, 8, v12', 'v_lshl_add_u32 v2, v5, 9, v2', 'v_and_b32 v12, 1, v6', 'v_lshl_add_u32 v2, v12, 6, v2', 'v_lshl_add_u32 v2, v4, 4, v2')
    A('s_lshl_b32 s63, s4, 11')
    A('s_lshl_b32 s3, s4, 10', f's_add_u32 s3, s3, {L_D}', 'v_add_u32 v13, s3, v1')
    A('s_lshl_b32 s3, s4, 8', f's_add_u32 s3, s3, {L_D}', 'v_lshlrev_b32 v14, 2, v0', 'v_add_u32 v14, s3, v14')
    A('s_cmp_gt_u32 s60, 1', 's_cbranch_scc1 L_tailw0')
    A('v_lshlrev_b32 v9, 10, v6', 'v_lshl_add_u32 v9, v5, 7, v9', 'v_lshl_add_u32 v9, v4, 3, v9')
    A('v_lshrrev_b32 v12, 1, v5', 'v_lshl_add_u32 v9, v12, 5, v9', 'v_and_b32 v12, 1, v6', 'v_lshl_add_u32 v9, v12, 6, v9', 'v_add_u32 v9, s62, v9')
    A('s_lshl_b32 s43, s61, 2', 's_add_u32 s43, s43, s4', 's_lshl_b32 s43, s43, 8')
    A('v_xor_b32 v16, 32, v9', 'v_xor_b32 v17, 64, v9', 'v_xor_b32 v18, 0x60, v9')
    A('s_cmp_eq_u32 s60, 0', 's_cbranch_scc1 L_btr')
    A('s_waitcnt vmcnt(22)')
    unpack(48, [36, 37, 38, 39])
    for i in range(8): A(f'v_mul_f32 v{36+i}, {hex(LOG2E ^ 0x80000000)}, v{48+i}')
    for i in range(8): A(f'v_exp_f32 v{36+i}, v{36+i}')
    plus1(36)
    for i in range(8): A(f'v_rcp_f32 v{36+i}, v{36+i}')
    for i in range(4): pk('mul', 48+2*i, 48+2*i, 36+2*i)
    for i in range(4): A(f'v_cvt_pk_bf16_f32 v{40+i}, v{48+2*i}, v{49+2*i}')
    ashift(40)
    A(f's_add_u32 s43, s43, {WS_MOD}')
    A.label('L_btr')
    A('s_waitcnt lgkmcnt(0)')
    tagcalc()
    for ks in range(4):
        A(f's_waitcnt vmcnt({18-4*ks})')
        for tl in range(4): tr(64 + 16*tl + 4*ks, ['v9', 'v16', 'v17', 'v18'][tl], 4096*ks, 4096*ks + 512)
    stamp(1)
    A('s_waitcnt vmcnt(0)')
    A('s_cmp_eq_u32 s60, 0', 's_cbranch_scc0 L_amov')
    A('s_mov_b32 s3, 0x3f803f80')
    for i, r in enumerate(list(range(20, 36)) + [60, 61, 62, 63]):
        A(f'v_dot2_f32_bf16 v36, v{r}, s3, {"0" if i == 0 else "v36"}', f'v_dot2_f32_bf16 v37, v{r}, v{r}, {"0" if i == 0 else "v37"}')
    for i in range(4): A(f'v_mov_b32 v{40+i}, v{56+i}')
    unpack(56, [40, 41, 42, 43])
    allreduce_b('v36', 'v37', 'v38')
    A(f'v_mul_f32 v36, {hex(f2u(1/640))}, v36', f'v_mul_f32 v37, {hex(f2u(1/640))}, v37', 'v_fma_f32 v37, -v36, v36, v37', 'v_max_f32 v37, 0, v37')
    A('v_cvt_pk_bf16_f32 v38, v36, v37', 'v_and_b32 v37, 0xffff0000, v38', 'v_lshlrev_b32 v36, 16, v38')
    A(f'v_add_f32 v37, {hex(f2u(1e-5))}, v37'); rnd('v37', 'v37'); A('v_sqrt_f32 v37, v37'); rnd('v37', 'v37'); A('v_rcp_f32 v37, v37')
    for i in range(4): pk('add', 56+2*i, 56+2*i, 36, 'op_sel_hi:[1,0] neg_lo:[0,1] neg_hi:[0,1]')
    rnd8(56, 40)
    for i in range(4): pk('mul', 56+2*i, 56+2*i, 36, 'op_sel:[0,1] op_sel_hi:[1,1]')
    rnd8(56, 40)
    A('v_lshlrev_b32 v15, 6, v4', 'v_lshrrev_b32 v12, 3, v0', 'v_lshl_add_u32 v15, v12, 3, v15', f's_add_u32 s43, s43, {WS_Q}')
    A(f's_add_u32 s3, s63, {WS_MOD}', f's_add_u32 s13, s63, {WS_MOD + 10240}')
    A.label('L_hpoll')
    A('buffer_load_dwordx4 v[28:31], v2, s[44:47], s13 offen sc1', 'buffer_load_dwordx4 v[32:35], v2, s[44:47], s13 offen offset:128 sc1')
    A('buffer_load_dwordx4 v[20:23], v2, s[44:47], s3 offen sc1', 'buffer_load_dwordx4 v[24:27], v2, s[44:47], s3 offen offset:128 sc1')
    A('s_waitcnt vmcnt(0)')
    check_tags(['v22', 'v26', 'v30', 'v34'], 'v36', 'L_hpoll', 1)
    stamp(2)
    unpack(44, [28, 29, 32, 33]); plus1(44); rnd8(44, 36)
    for i in range(4): pk('mul', 44+2*i, 44+2*i, 56+2*i)
    unpack(56, [20, 21, 24, 25])
    rnd8(44, 36)
    for i in range(4): pk('add', 44+2*i, 44+2*i, 56+2*i)
    for i in range(4): A(f'v_cvt_pk_bf16_f32 v{40+i}, v{44+2*i}, v{45+2*i}')
    ashift(40)
    A.label('L_amov')
    A('s_waitcnt lgkmcnt(8)' if not stamps else 's_waitcnt lgkmcnt(0)')
    for ks in range(4):
        if ks == 3: A('s_waitcnt lgkmcnt(0)')
        for tl in range(4): mfma(20 + 4*tl, 40 + 4*ks, 64 + 16*tl + 4*ks, ks == 0)
    A('s_mov_b64 exec, 0xffff')
    for tl in range(4): A(f'ds_write_b128 v13, v[{20+4*tl}:{23+4*tl}] offset:{256*tl}')
    lds_signal(0)
    A('s_cmp_eq_u32 s4, 4', 's_cbranch_scc0 L_fin0')
    lds_wait(4, 4, 'L_w1')
    A('s_branch L_tailw')
    A.label('L_fin0')
    A('v_mov_b32 v50, s9', 'v_mov_b32 v51, s9', 'v_mov_b32 v41, s9')
    lds_wait(0, 5, 'L_w0')
    A('ds_read2st64_b32 v[42:43], v14 offset0:0 offset1:4', 'ds_read2st64_b32 v[44:45], v14 offset0:8 offset1:12', 'ds_read_b32 v46, v14 offset:4096')
    A('s_waitcnt lgkmcnt(0)')
    A('v_add_f32 v42, v42, v43', 'v_add_f32 v44, v44, v45', 'v_add_f32 v42, v42, v46', 'v_add_f32 v42, v42, v44')
    A('s_cmp_eq_u32 s60, 0', 's_cbranch_scc1 L_finq')
    pub4('v42', 48, 's43')
    A('s_branch L_fin1')
    A.label('L_finq')
    A(f'v_mov_b32_dpp v43, v42 row_shl:4 {DPPF} bound_ctrl:0', 'v_cvt_pk_bf16_f32 v40, v42, v43')
    A('s_mov_b32 exec_lo, 0x0f0f0f0f', 's_mov_b32 exec_hi, 0x0f0f0f0f')
    A('buffer_store_dwordx2 v[40:41], v15, s[44:47], s43 offen sc1')
    A.label('L_fin1')
    stamp(3)
    lds_signal(4)
    A('s_branch L_tailw')
    A.label('L_tailw0')
    A('s_waitcnt lgkmcnt(0)')
    tagcalc()
    A('s_cmp_eq_u32 s60, 2', 's_cbranch_scc0 L_twF2')
    A('v_lshrrev_b32 v8, 2, v0', 's_lshl_b32 s3, s4, 7', 'v_add_u32 v8, s3, v8', 'v_mul_u32_u24 v8, 3072, v8', 'v_lshl_add_u32 v8, v4, 4, v8')
    srd(48, 28, 640 * 3072)
    A('s_lshl_b32 s13, s61, 6', 's_mov_b32 m0, s62')
    dma_loop(8, 'v8', 49152, 'L_dma5')
    srd(48, 30, 640 * 3072)
    A('s_lshl_b32 s13, s61, 6')
    dma_loop(8, 'v8', 49152, 'L_dma6')
    A('s_branch L_tailw')
    A.label('L_twF2')
    A('s_cmp_eq_u32 s60, 3', 's_cbranch_scc0 L_tailw', 's_cmp_eq_u32 s4, 4', 's_cbranch_scc1 L_tailw')
    A('v_lshrrev_b32 v8, 1, v0', 'v_mul_u32_u24 v8, 1280, v8', 'v_and_b32 v12, 1, v0', 'v_lshl_add_u32 v8, v12, 4, v8')
    srd(48, 32, 1536 * 1280)
    A('s_mul_i32 s13, s4, 491520', 's_lshl_b32 s3, s61, 5', 's_add_u32 s13, s13, s3', 's_mov_b32 m0, s62')
    dma_loop(12, 'v8', 40960, 'L_dma4')
    A.label('L_tailw')
    A('s_setprio 0')
    xidpub('L_xp')
    srd(48, 24, 6144 * 1280)
    A('s_mul_i32 s13, s7, 245760', 's_mul_i32 s3, s8, 160', 's_add_u32 s13, s13, s3')
    A('s_mul_i32 s3, s4, 6144', f's_add_u32 m0, s3, {L_WO}', 's_mul_i32 s3, s4, 384', 'v_add_u32 v9, s3, v0')
    wo_addr = ['v_mul_u32_u24 v8, 6554, v9', 'v_lshrrev_b32 v8, 16, v8', 'v_mul_u32_u24 v8, 1120, v8', 'v_lshl_add_u32 v8, v9, 4, v8']
    A(*wo_addr)
    dma_loop(6, 'v8', None, 'L_dma3', ['v_add_u32 v9, 64, v9'] + wo_addr)
    stamp(4)
    A(f's_mov_b32 s58, {hex(LOG2E)}', 's_mov_b32 s56, 0', 's_mov_b32 s57, -1', 's_mov_b32 s12, 0')
    srd(52, 38, 5120)
    A('s_mul_i32 s14, s7, 5120', f's_add_u32 s14, s14, {WS_REC}')
    A('s_mul_i32 s15, s8, 640', 's_add_u32 s15, s15, s14')
    A('s_lshl_b32 s3, s4, 10', "s_add_u32 s14, s14, s3")
    A('s_lshl_b32 s3, s4, 6', 'v_add_u32 v12, s3, v0', 'v_mul_u32_u24 v15, 1639, v12', 'v_lshrrev_b32 v15, 16, v15')
    A('v_mul_u32_u24 v16, 40, v15', 'v_sub_u32 v16, v12, v16', 'v_cmp_gt_u32 s[96:97], 33, v16')
    A('v_add_u32 v15, v15, v12', 'v_lshlrev_b32 v15, 4, v15', f'v_add_u32 v15, {L_RC}, v15')
    A('v_and_b32 v12, 7, v0', 'v_mul_u32_u24 v16, 656, v12', 'v_lshl_add_u32 v16, v6, 4, v16', f'v_add_u32 v16, {L_RC}, v16')
    A('v_and_b32 v17, 1, v6', 'v_lshl_add_u32 v17, v17, 2, v4', 'v_mul_u32_u24 v17, 656, v17', f'v_add_u32 v17, {L_RC + 512}, v17')
    A('v_lshrrev_b32 v19, 5, v0', 'v_lshlrev_b32 v18, 2, v19', 'v_xor_b32 v12, v12, v18', 'v_lshlrev_b32 v18, 10, v12', f'v_add_u32 v18, {L_REC}, v18')
    A('v_and_b32 v12, 31, v0', 'v_lshlrev_b32 v12, 4, v12', 'v_lshl_add_u32 v19, v19, 12, v12', f'v_add_u32 v19, {L_REC}, v19')
    A('v_mul_u32_u24 v12, 960, v6', 'v_lshl_add_u32 v12, v4, 3, v12', 's_lshl_b32 s3, s4, 5', f's_add_u32 s3, s3, {L_WO}', 'v_add_u32 v12, s3, v12')
    A('v_mul_u32_u24 v7, 160, v5', 'v_add_u32 v7, v7, v12', 'v_and_b32 v8, 1, v5', 'v_mul_u32_u24 v8, 160, v8', 'v_add_u32 v8, v8, v12', 'v_add_u32 v8, 640, v8')
    A('s_mul_i32 s43, s8, 5', 's_add_u32 s43, s43, s4', 's_lshl_b32 s43, s43, 5', 's_add_u32 s43, s43, s7', 's_lshl_b32 s43, s43, 8', f's_add_u32 s43, s43, {WS_Y}')
    A('s_cmp_eq_u32 s60, 2', 's_cselect_b32 s3, 6, 5', 's_add_u32 s13, s3, 3')
    A('v_lshlrev_b32 v9, s13, v6', 'v_lshlrev_b32 v20, s3, v5', 'v_add_u32 v9, v9, v20', 'v_lshl_add_u32 v9, v4, 3, v9', 'v_add_u32 v9, s62, v9')
    def wofrags():
        for kk in range(8): tr(64 + 4*kk, 'v7', 3840*kk, 3840*kk, 'v8')
    def f1frags():
        for a_ in range(4):
            for ks in range(4):
                o = 8192 * (a_ >> 1) + 2048 * ks + 32 * (a_ & 1)
                tr(64 + 16*a_ + 4*ks, 'v9', o, o + 256)
    def dsum(r, m):
        A(f'ds_read2st64_b32 v[{r}:{r+1}], v14 offset0:{2*m} offset1:{4+2*m}', f'ds_read2st64_b32 v[{r+2}:{r+3}], v14 offset0:{8+2*m} offset1:{12+2*m}', f'ds_read_b32 v{r+4}, v14 offset:{4096+512*m}')
    A('s_waitcnt vmcnt(0)')
    lds_signal(8)
    A('s_cmp_eq_u32 s60, 2', 's_cbranch_scc0 L_preW')
    A(f's_add_u32 s3, s63, {WS_MOD + 3*10240}', f's_add_u32 s13, s63, {WS_MOD + 4*10240}')
    A.label('L_scpoll')
    A('buffer_load_dwordx4 v[36:39], v2, s[44:47], s13 offen sc1', 'buffer_load_dwordx4 v[40:43], v2, s[44:47], s13 offen offset:128 sc1')
    A('buffer_load_dwordx4 v[44:47], v2, s[44:47], s3 offen sc1', 'buffer_load_dwordx4 v[48:51], v2, s[44:47], s3 offen offset:128 sc1')
    A('s_waitcnt vmcnt(0)')
    check_tags(['v38', 'v42', 'v46', 'v50'], 'v52', 'L_scpoll', 8)
    if not lin:
        unpack(20, [36, 37, 40, 41]); unpack(28, [44, 45, 48, 49]); plus1(20); rnd8(20, 36)
    else:
        f1frags()
        unpack(20, [36, 37, 40, 41]); plus1(20)
        A('v_mov_b32 v60, v44', 'v_mov_b32 v61, v45', 'v_mov_b32 v62, v48', 'v_mov_b32 v63, v49')
        rnd8(20, 40)
        for rnd_, cnt in ((0, 20), (1, 24)):
            if rnd_:
                for i in range(4): A(f'v_mov_b32 v{40+i}, v{60+i}')
            ashift(40)
            A('s_waitcnt lgkmcnt(0)')
            dd = [32, 36, 56, 60] if rnd_ else [32, 36, 56, 28]
            for ks in range(4):
                for a_ in range(4): mfma(dd[a_], 40 + 4*ks, 64 + 16*a_ + 4*ks, ks == 0)
            if rnd_: lds_wait(20, 7, 'L_c1')
            A('s_mov_b64 exec, 0xffff')
            for a_ in range(4): A(f'ds_write_b128 v13, v[{dd[a_]}:{dd[a_]+3}] offset:{256*a_}')
            lds_signal(cnt)
            A('s_cmp_lt_u32 s4, 2', f's_cbranch_scc0 L_c2{rnd_}')
            lds_wait(cnt, 5, f'L_c3{rnd_}')
            dsum(44, 0); dsum(50, 1)
            A('s_waitcnt lgkmcnt(0)')
            for r, d in ((44, 28 + rnd_), (50, 30 + rnd_)):
                A(f'v_add_f32 v{r}, v{r}, v{r+1}', f'v_add_f32 v{r+2}, v{r+2}, v{r+3}', f'v_add_f32 v{r}, v{r}, v{r+4}', f'v_add_f32 v{d}, v{r}, v{r+2}')
            lds_signal(cnt)
            A.label(f'L_c2{rnd_}')
    A.label('L_preW')
    lds_wait(8, 5, 'L_wow', slp=4)
    wofrags()
    A('v_mov_b32 v12, 0')
    A('s_cmp_eq_u32 s60, 2', 's_cbranch_scc0 L_preB')
    A('v_lshlrev_b32 v11, 3, v4', 's_lshl_b32 s3, s4, 5', 'v_add_u32 v12, s3, v11')
    A('s_branch L_preD')
    A.label('L_preB')
    A('s_cmp_eq_u32 s60, 3', 's_cbranch_scc0 L_preR')
    A('s_lshl_b32 s13, s61, 8', f's_add_u32 s13, s13, {WS_MOD + 5*10240}', 'v_mov_b32 v12, v3', 'v_lshrrev_b32 v21, 2, v0')
    A('s_branch L_preG0')
    A.label('L_preR')
    A('s_cmp_eq_u32 s59, -1', 's_cbranch_scc1 L_preD')
    A('v_and_b32 v21, 15, v0', 'v_mov_b32 v22, v6')
    vpub('v12', 'v21', 'v22', 'v23')
    srd(48, 16, 5120)
    A('v_mul_u32_u24 v23, 1280, v22', 'v_lshl_add_u32 v23, v21, 1, v23', 's_lshl_b32 s3, s59, 5')
    A('buffer_load_ushort v20, v23, s[48:51], s3 offen')
    A('s_lshl_b32 s13, s59, 8', f's_add_u32 s13, s13, {WS_MOD + 2*10240}')
    A.label('L_preG0')
    A('v_and_b32 v11, -16, v12', 'v_and_b32 v23, 2, v21', 'v_cmp_eq_u32 s[98:99], 0, v23', 'v_and_b32 v22, 1, v21', 'v_lshlrev_b32 v22, 4, v22', 'v_sub_u32 v22, 16, v22')
    A.label('L_preG')
    A('buffer_load_dwordx4 v[24:27], v11, s[44:47], s13 offen sc1')
    A('s_waitcnt vmcnt(0)')
    check_tags(['v26'], None, 'L_preG', 8)
    A('v_cndmask_b32 v24, v25, v24, s[98:99]', 'v_lshlrev_b32 v21, v22, v24', 'v_and_b32 v21, 0xffff0000, v21')
    A('v_lshlrev_b32 v20, 16, v20')
    A.label('L_preD')
    if fast:
        A('s_cmp_eq_u32 s4, 0', 's_cbranch_scc0 L_noxid')
        A('s_getreg_b32 s42, hwreg(HW_REG_XCC_ID)', 's_lshl_b32 s13, s5, 12', f's_add_u32 s13, s13, {WS_XID}', 'v_lshlrev_b32 v38, 7, v0', 's_mov_b32 exec_hi, 0')
        A.label('L_xid')
        A('s_sleep 127', 'buffer_load_dwordx2 v[40:41], v38, s[44:47], s13 offen sc1', 's_waitcnt vmcnt(0)')
        check_tags(['v41'], None, 'L_xid', 0)
        A('v_cmp_ne_u32 vcc, s42, v40', 's_mov_b32 exec_hi, -1', 's_cmp_eq_u64 vcc, 0', 's_cselect_b32 s12, 1, 0')
        A('s_cmp_eq_u32 s95, 0', 's_cselect_b32 s12, 0, s12', 'v_mov_b32 v40, s12', f'ds_write_b32 v10, v40 offset:{L_FAST}')
        A.label('L_noxid')
    A('v_mov_b32 v43, s9')
    A('s_waitcnt vmcnt(0) lgkmcnt(0)')
    stamp(5)
    A('s_setprio 2')
    A('s_barrier')
    stamp(6)
    A('s_cmp_eq_u32 s4, 0', 's_cbranch_scc0 L_O')
    A('ds_read_b32 v36, v18 offset:524', 'ds_read_b32 v37, v18 offset:12')
    for i in range(4): A(f'ds_read_b128 v[{96+8*i}:{99+8*i}], v19 offset:{1024*i}', f'ds_read_b128 v[{100+8*i}:{103+8*i}], v19 offset:{1024*i+512}')
    A('s_waitcnt lgkmcnt(8)')
    A(f'v_max_f32_dpp v38, v36, v36 quad_perm:[1,0,3,2] {DPPF}', f'v_max_f32_dpp v38, v38, v38 quad_perm:[2,3,0,1] {DPPF}', f'v_max_f32_dpp v38, v38, v38 row_half_mirror {DPPF}')
    A('v_sub_f32 v36, v36, v38', 'v_mul_f32 v36, s58, v36', 'v_exp_f32 v36, v36', 'v_mul_f32 v37, v37, v36')
    lch = [f'v_add_f32_dpp v37, v37, v37 quad_perm:[1,0,3,2] {DPPF}', f'v_add_f32_dpp v37, v37, v37 quad_perm:[2,3,0,1] {DPPF}', f'v_add_f32_dpp v37, v37, v37 row_half_mirror {DPPF}', 'v_rcp_f32 v39, v37']
    for i in range(4):
        A(f's_waitcnt lgkmcnt({6 - 2*i})')
        for k in range(3):
            op = 'v_mul_f32_dpp' if i == 0 else 'v_fmac_f32_dpp'
            A(f'{op} v{56+2*k}, v36, v{96+8*i+k} row_newbcast:{i} {DPPF}', f'{op} v{57+2*k}, v36, v{100+8*i+k} row_newbcast:{i} {DPPF}')
        A(lch[i])
    A('v_permlane32_swap_b32 v58, v59', 'v_permlane32_swap_b32 v56, v60', 'v_permlane32_swap_b32 v57, v61')
    A('v_add_f32 v58, v58, v59', 'v_add_f32 v56, v56, v60', 'v_add_f32 v57, v57, v61')
    A('v_mul_f32 v58, v58, v39', 'v_mul_f32 v56, v56, v39', 'v_mul_f32 v57, v57, v39')
    A('v_mov_b32 v59, v58', 'v_cvt_pk_bf16_f32 v40, v56, v57', 'v_cvt_pk_bf16_f32 v42, v56, v57')
    A('v_permlane32_swap_b32 v58, v59', 'v_permlane32_swap_b32 v40, v42')
    A('v_cvt_pk_bf16_f32 v41, v58, v59')
    A('v_cndmask_b32 v40, v40, v38, s[56:57]', 'v_cndmask_b32 v41, v41, v37, s[56:57]')
    A('s_mov_b32 exec_hi, 1')
    if fast:
        A('s_cmp_eq_u32 s12, 1', 's_cbranch_scc0 L_slowrec')
        A('buffer_store_dwordx4 v[40:43], v1, s[44:47], s15 offen')
        A('s_branch L_recdone')
        A.label('L_slowrec')
    A('buffer_store_dwordx4 v[40:43], v1, s[44:47], s15 offen sc1')
    A.label('L_recdone')
    A('s_mov_b32 exec_hi, -1')
    A.label('L_O')
    stamp(7)
    A('s_mov_b64 exec, s[96:97]')
    A.label('L_opoll')
    A('buffer_load_dwordx4 v[44:47], v1, s[44:47], s14 offen sc1')
    A('s_waitcnt vmcnt(0)')
    check_tags(['v47'], None, 'L_opoll', sleep)
    A('v_mov_b32 v47, 0')
    A('ds_write_b128 v15, v[44:47]')
    A('s_mov_b64 exec, -1')
    A('s_waitcnt lgkmcnt(0)')
    A('s_barrier')
    stamp(8)
    A('ds_read_b64 v[36:37], v17')
    for kk in range(8): A(f'ds_read_b128 v[{96+4*kk}:{99+4*kk}], v16 offset:{64*kk}')
    A('v_mov_b32 v51, s9', 's_mov_b32 s16, 0x07060501', 's_mov_b32 s17, 0x07060502', 's_mov_b32 s18, 0x07060503')
    A('s_waitcnt lgkmcnt(8)')
    A(f'v_max_f32_dpp v38, v36, v36 quad_perm:[1,0,3,2] {DPPF}')
    for kk in range(8):
        A(f's_waitcnt lgkmcnt({7-kk})')
        mfma(40, 96 + 4*kk, 64 + 4*kk, kk == 0)
        if kk == 0: A('v_sub_f32 v36, v36, v38', 'v_mul_f32 v36, s58, v36')
        if kk == 1: A('v_exp_f32 v36, v36')
        if kk == 2: A('v_mul_f32 v36, v36, v37')
        if kk == 3: A(f'v_add_f32_dpp v37, v36, v36 quad_perm:[1,0,3,2] {DPPF}')
        if kk == 4: A('v_rcp_f32 v37, v37')
        if kk == 5: A('v_mul_f32 v36, v36, v37')
    A(f'v_mul_f32_dpp v44, v36, v40 quad_perm:[0,0,0,0] {DPPF}', f'v_mul_f32_dpp v45, v36, v42 quad_perm:[2,2,2,2] {DPPF}')
    A(f'v_fmac_f32_dpp v44, v36, v41 quad_perm:[1,1,1,1] {DPPF}', f'v_fmac_f32_dpp v45, v36, v43 quad_perm:[3,3,3,3] {DPPF}')
    A('v_permlane16_swap_b32 v44, v46', 'v_permlane16_swap_b32 v45, v47')
    A('v_perm_b32 v48, v44, v47, s16', 'v_perm_b32 v49, v45, v47, s17', 'v_perm_b32 v50, v46, v47, s18')
    A('s_mov_b64 exec, 0xffff')
    A('buffer_store_dwordx4 v[48:51], v1, s[44:47], s43 offen sc1')
    A('s_mov_b64 exec, -1')
    stamp(9)
    A('s_mul_i32 s14, s5, 10240', f's_add_u32 s14, s14, {WS_X1}')
    A('s_cmp_eq_u32 s60, 3', 's_cbranch_scc1 L_F2')
    A('s_cmp_eq_u32 s60, 2', 's_cbranch_scc0 L_R')
    f1frags()
    A('s_add_u32 s3, s63, s14', 's_mov_b32 s13, 0x3f803f80')
    A.label('L_xpoll')
    A('buffer_load_dwordx4 v[48:51], v2, s[44:47], s3 offen sc1', 'buffer_load_dwordx4 v[52:55], v2, s[44:47], s3 offen offset:128 sc1')
    A('s_waitcnt vmcnt(0)')
    check_tags(['v50', 'v54'], 'v39', 'L_xpoll', xs)
    stamp(10)
    k0 = -2.0 * 1.4426950408889634 * 0.7978845608028654
    if lin:
        unpack(56, [48, 49, 52, 53])
        for i in range(4): pk('mul', 56+2*i, 56+2*i, 20+2*i)
        for i in range(4): A(f'v_cvt_pk_bf16_f32 v{40+i}, v{56+2*i}, v{57+2*i}')
        side = []
        for i, r in enumerate([48, 49, 52, 53]):
            side += [f'v_dot2_f32_bf16 v56, v{r}, s13, {"0" if i == 0 else "v56"}', f'v_dot2_f32_bf16 v57, v{r}, v{r}, {"0" if i == 0 else "v57"}']
        sh = lambda ks: [f'v_mov_b32_dpp v{40+4*ks+i}, v{40+i} row_shl:{4*ks} {DPPF} bound_ctrl:0' for i in range(4)]
        red = [f'v_add_f32_dpp v56, v56, v56 row_ror:4 {DPPF}', f'v_add_f32_dpp v57, v57, v57 row_ror:4 {DPPF}', f'v_add_f32_dpp v56, v56, v56 row_ror:8 {DPPF}', f'v_add_f32_dpp v57, v57, v57 row_ror:8 {DPPF}',
               'v_permlane16_swap_b32 v56, v57', 'v_add_f32 v56, v56, v57', 'v_mov_b32 v58, v56', 'v_permlane32_swap_b32 v56, v58', 'v_add_f32 v56, v56, v58', 'v_mov_b32 v57, v56', 'v_permlane16_swap_b32 v56, v57']
        fill = {0: sh(1)[:2], 1: sh(1)[2:], 2: side[:4], 3: side[4:], 4: sh(2)[:2], 5: sh(2)[2:], 6: red[:2], 7: red[2:4], 8: sh(3)[:2], 9: sh(3)[2:], 10: red[4:6], 11: red[6:7], 12: red[7:9], 13: red[9:10], 14: red[10:]}
        dd = [20, 24, 32, 36]
        A('s_waitcnt lgkmcnt(0)')
        for ks in range(4):
            for a_ in range(4):
                mfma(dd[a_], 40 + 4*ks, 64 + 16*a_ + 4*ks, ks == 0)
                A(*fill.get(4*ks + a_, []))
        A('s_mov_b64 exec, 15', f'ds_write_b64 v12, v[56:57] offset:{L_ST}')
        A('s_lshl_b32 s3, s61, 1', 's_add_u32 s3, s3, s4', 's_lshl_b32 s3, s3, 8', f's_add_u32 s3, s3, {WS_G}')
        A('s_mov_b64 exec, 0xffff')
        for a_ in range(4): A(f'ds_write_b128 v13, v[{dd[a_]}:{dd[a_]+3}] offset:{256*a_}')
        A('s_mov_b64 exec, -1', 'v_mov_b32 v58, s9', 'v_mov_b32 v59, s9')
        A('s_waitcnt lgkmcnt(0)')
        A('s_barrier')
        A('s_cmp_lt_u32 s4, 2', 's_cbranch_scc0 L_tend')
        A(f'ds_read2_b64 v[64:67], v11 offset0:{L_ST//8} offset1:{L_ST//8+4}', f'ds_read2_b64 v[68:71], v11 offset0:{L_ST//8+8} offset1:{L_ST//8+12}', f'ds_read_b64 v[72:73], v11 offset:{L_ST+128}')
        dsum(40, 0); dsum(46, 1)
        A(f'v_mov_b32 v52, {hex(f2u(k0))}', f'v_mov_b32 v74, {hex(f2u(1/640))}')
        A('s_waitcnt lgkmcnt(6)')
        pk('add', 64, 64, 66); pk('add', 68, 68, 70); pk('add', 72, 72, 64); pk('add', 72, 72, 68)
        pk('mul', 72, 72, 74, 'op_sel_hi:[1,0]')
        A('v_fma_f32 v38, -v72, v72, v73', 'v_max_f32 v38, 0, v38', 'v_cvt_pk_bf16_f32 v72, v72, v38')
        A('s_waitcnt lgkmcnt(3)')
        A('v_and_b32 v38, 0xffff0000, v72', 'v_add_f32 v40, v40, v41', f'v_add_f32 v38, {hex(f2u(1e-5))}, v38', 'v_add_f32 v42, v42, v43', 'v_cvt_pk_bf16_f32 v38, v38, v38', 'v_lshlrev_b32 v72, 16, v72', 'v_lshlrev_b32 v38, 16, v38')
        A('v_sqrt_f32 v38, v38', 'v_add_f32 v40, v40, v44', 'v_cvt_pk_bf16_f32 v38, v38, v38', 'v_fma_f32 v42, -v72, v28, v42', 'v_lshlrev_b32 v38, 16, v38', 'v_rcp_f32 v38, v38', 'v_add_f32 v40, v40, v42')
        A('s_waitcnt lgkmcnt(0)')
        A('v_fma_f32 v40, v40, v38, v29', 'v_add_f32 v46, v46, v47', 'v_mul_f32 v41, v40, v40', 'v_add_f32 v48, v48, v49', f'v_fmac_f32 v52, {hex(f2u(k0*0.044715))}, v41', 'v_add_f32 v46, v46, v50', 'v_mul_f32 v52, v52, v40')
        A('v_fma_f32 v48, -v72, v30, v48', 'v_exp_f32 v52, v52', 'v_add_f32 v46, v46, v48', 'v_add_f32 v52, 1.0, v52', 'v_fma_f32 v46, v46, v38, v31', 'v_rcp_f32 v52, v52', 'v_mul_f32 v40, v40, v46', 'v_mul_f32 v40, v40, v52')
    else:
        for i, r in enumerate([48, 49, 52, 53]):
            A(f'v_dot2_f32_bf16 v36, v{r}, s13, {"0" if i == 0 else "v36"}', f'v_dot2_f32_bf16 v37, v{r}, v{r}, {"0" if i == 0 else "v37"}')
        unpack(56, [48, 49])
        allreduce_b('v36', 'v37', 'v38')
        A('s_mov_b64 exec, 15', f'ds_write_b64 v12, v[36:37] offset:{L_ST}', 's_mov_b64 exec, -1')
        unpack(60, [52, 53])
        A('s_lshl_b32 s3, s61, 1', 's_add_u32 s3, s3, s4', 's_lshl_b32 s3, s3, 8', f's_add_u32 s3, s3, {WS_G}', f'v_mov_b32 v38, {hex(f2u(1e-5))}')
        A('s_waitcnt lgkmcnt(0)')
        A('s_barrier')
        A(f'ds_read2_b64 v[40:43], v11 offset0:{L_ST//8} offset1:{L_ST//8+4}', f'ds_read2_b64 v[44:47], v11 offset0:{L_ST//8+8} offset1:{L_ST//8+12}', f'ds_read_b64 v[36:37], v11 offset:{L_ST+128}')
        A('s_waitcnt lgkmcnt(0)')
        pk('add', 40, 40, 42); pk('add', 44, 44, 46); pk('add', 36, 36, 40); pk('add', 36, 36, 44)
        A(f'v_mul_f32 v36, {hex(f2u(1/640))}, v36', f'v_fmac_f32 v38, {hex(f2u(1/640))}, v37', 'v_fma_f32 v38, -v36, v36, v38')
        for i in range(2): pk('add', 56+2*i, 56+2*i, 36, 'op_sel_hi:[1,0] neg_lo:[0,1] neg_hi:[0,1]')
        A(f'v_max_f32 v38, {hex(f2u(1e-5))}, v38', 'v_rsq_f32 v38, v38')
        for i in range(2, 4): pk('add', 56+2*i, 56+2*i, 36, 'op_sel_hi:[1,0] neg_lo:[0,1] neg_hi:[0,1]')
        for i in range(4): pk('mul', 56+2*i, 56+2*i, 20+2*i)
        for i in range(4): A(f'v_pk_fma_f32 v[{56+2*i}:{57+2*i}], v[{56+2*i}:{57+2*i}], v[38:39], v[{28+2*i}:{29+2*i}] op_sel_hi:[1,0,1]')
        for i in range(4): A(f'v_cvt_pk_bf16_f32 v{40+i}, v{56+2*i}, v{57+2*i}')
        A('v_mov_b32 v58, s9', 'v_mov_b32 v59, s9')
        for ks in range(4):
            for a_ in range(4):
                mfma(20 + 4*a_, 40 + 4*ks, 64 + 16*a_ + 4*ks, ks == 0)
                if ks < 3 and a_ < 2:
                    for i in (2*a_, 2*a_+1): A(f'v_mov_b32_dpp v{44+4*ks+i}, v{40+i} row_shl:{4*ks+4} {DPPF} bound_ctrl:0')
        A('s_mov_b64 exec, 0xffff')
        for a_ in range(4): A(f'ds_write_b128 v13, v[{20+4*a_}:{23+4*a_}] offset:{256*a_}')
        A('s_mov_b64 exec, -1')
        A('s_waitcnt lgkmcnt(0)')
        A('s_barrier')
        A('s_cmp_lt_u32 s4, 2', 's_cbranch_scc0 L_tend')
        for m in range(2):
            r = 40 + 6 * m
            A(f'ds_read2st64_b32 v[{r}:{r+1}], v14 offset0:{2*m} offset1:{4+2*m}', f'ds_read2st64_b32 v[{r+2}:{r+3}], v14 offset0:{8+2*m} offset1:{12+2*m}', f'ds_read_b32 v{r+4}, v14 offset:{4096+512*m}')
        k0 = -2.0 * 1.4426950408889634 * 0.7978845608028654
        A(f'v_mov_b32 v52, {hex(f2u(k0))}')
        A('s_waitcnt lgkmcnt(3)')
        A('v_add_f32 v40, v40, v41', 'v_add_f32 v42, v42, v43', 'v_add_f32 v40, v40, v44', 'v_add_f32 v40, v40, v42', 'v_mul_f32 v41, v40, v40')
        A('s_waitcnt lgkmcnt(0)')
        A('v_add_f32 v46, v46, v47', f'v_fmac_f32 v52, {hex(f2u(k0*0.044715))}, v41', 'v_add_f32 v48, v48, v49', 'v_mul_f32 v52, v52, v40', 'v_add_f32 v46, v46, v50')
        A('v_exp_f32 v52, v52', 'v_add_f32 v46, v46, v48', 'v_add_f32 v52, 1.0, v52', 'v_mul_f32 v40, v40, v46', 'v_rcp_f32 v52, v52', 'v_mul_f32 v40, v40, v52')
    pub4('v40', 56, 's3')
    stamp(11)
    A('s_branch L_tend')
    A.label('L_R')
    A('s_cmp_eq_u32 s59, -1', 's_cbranch_scc1 L_tend')
    A('s_lshl_b32 s3, s59, 13', f's_add_u32 s3, s3, {WS_Y}', 's_add_u32 s13, s3, 4096')
    A('s_lshl_b32 s59, s59, 8', 's_add_u32 s14, s14, s59')
    A('v_mov_b32 v42, s9', 'v_mov_b32 v43, s9', 's_mov_b32 s15, 15', 's_mov_b32 s16, 0x0c04000c', 's_mov_b32 s17, 0x04020100')
    if fast: A(f'ds_read_b32 v36, v10 offset:{L_FAST}', 's_waitcnt lgkmcnt(0)', 'v_readfirstlane_b32 s12, v36')
    A.label('L_ypoll')
    for g in range(4):
        A(f's_bitcmp1_b32 s15, {g}', f's_cbranch_scc0 L_yl{g}')
        for i in range(2): A(f'buffer_load_dwordx4 v[{64+8*g+4*i}:{67+8*g+4*i}], v1, s[44:47], {"s3" if g < 2 else "s13"} offen offset:{2048*(g&1)+1024*i} sc1')
        A.label(f'L_yl{g}')
    A('s_waitcnt vmcnt(0)')
    for g in range(4):
        r = 64 + 8 * g
        A(f's_bitcmp1_b32 s15, {g}', f's_cbranch_scc0 L_yc{g}')
        A(f'v_xor_b32 v36, s9, v{r+3}', f'v_perm_b32 v37, v{r+1}, v{r}, s16', f'v_bitop3_b32 v36, v36, v{r+7}, s9 bitop3:0xf6', f'v_perm_b32 v38, v{r+5}, v{r+4}, s16')
        A('v_cmp_ne_u32 vcc, 0, v36', f'v_perm_b32 v{r+3}, v{r+2}, v37, s17', f'v_perm_b32 v{r+7}, v{r+6}, v38, s17')
        A(f's_cbranch_vccnz L_yc{g}')
        pk('add', r, r, r + 4); A(f's_bitset0_b32 s15, {g}'); pk('add', r + 2, r + 2, r + 6)
        A.label(f'L_yc{g}')
    A('s_cmp_eq_u32 s15, 0', 's_cbranch_scc1 L_yok')
    if ysleep: A(f's_sleep {ysleep}')
    A('s_sub_u32 s95, s95, 1', 's_cbranch_scc0 L_ypoll', 's_mov_b32 s95, 0')
    A.label('L_yok')
    stamp(10)
    pk('add', 64, 64, 72); pk('add', 80, 80, 88); pk('add', 66, 66, 74); pk('add', 82, 82, 90); pk('add', 64, 64, 80); pk('add', 66, 66, 82)
    A('v_permlane16_swap_b32 v64, v65', 'v_permlane16_swap_b32 v66, v67', 'v_add_f32 v64, v64, v65', 'v_add_f32 v66, v66, v67')
    A('v_permlane32_swap_b32 v64, v66', 'v_add_f32 v44, v64, v66', 'v_fma_f32 v44, v44, v21, v20')
    A(f'v_mov_b32_dpp v46, v44 quad_perm:[1,1,3,3] {DPPF}', 'v_cvt_pk_bf16_f32 v40, v44, v46', f'v_mov_b32_dpp v41, v40 quad_perm:[2,2,2,2] {DPPF}')
    A('s_mov_b32 exec_lo, 0x11111111', 's_mov_b32 exec_hi, 0x11111111')
    if fast:
        A('s_cmp_eq_u32 s12, 1', 's_cbranch_scc0 L_slowx1')
        A('buffer_store_dwordx4 v[40:43], v12, s[44:47], s14 offen')
        A('s_branch L_x1done')
        A.label('L_slowx1')
    A('buffer_store_dwordx4 v[40:43], v12, s[44:47], s14 offen sc1')
    A.label('L_x1done')
    stamp(11)
    A('s_or_b32 s59, s59, s5', 's_cbranch_scc1 L_tend')
    A('s_mov_b64 exec, 1', 'buffer_store_dword v42, v10, s[44:47], 0 offen sc1')
    A('s_branch L_tend')
    A.label('L_F2')
    A('s_cmp_eq_u32 s4, 4', 's_cbranch_scc1 L_tend')
    for ks in range(12): tr(64 + 4*ks, 'v9', 1024*ks, 1024*ks + 128)
    A('s_lshl_b32 s3, s61, 8', 's_add_u32 s14, s14, s3')
    A.label('L_x2poll')
    A('buffer_load_dwordx4 v[24:27], v11, s[44:47], s14 offen sc1', 's_waitcnt vmcnt(0)')
    check_tags(['v26'], None, 'L_x2poll', 2)
    A('v_cndmask_b32 v24, v25, v24, s[98:99]', 'v_lshlrev_b32 v20, v22, v24', 'v_and_b32 v20, 0xffff0000, v20')
    A('s_mul_i32 s3, s4, 6144', f's_add_u32 s3, s3, {WS_G}', 's_add_u32 s13, s3, 4096', 's_lshl_b32 s42, s61, 5')
    A('v_lshrrev_b32 v23, 2, v0', 'v_lshlrev_b32 v23, 1, v23', 'v_mul_u32_u24 v24, 1280, v4', 'v_add_u32 v23, v23, v24')
    A.label('L_gpoll')
    for i in range(6):
        A(f'buffer_load_dwordx4 v[{36+4*i}:{39+4*i}], v2, s[44:47], {"s3" if i < 4 else "s13"} offen offset:{2048*((i//2)%2)+128*(i%2)} sc1')
    A('s_waitcnt vmcnt(0)')
    check_tags([f'v{38+4*i}' for i in range(6)], 'v60', 'L_gpoll', 0)
    stamp(10)
    for n in range(12):
        blk, ks = divmod(n, 4)
        for i in range(4):
            sr = 36 + 8 * blk + (i & 1) + 4 * (i >> 1)
            if ks == 0: A(f'v_mov_b32 v{112+i}, v{sr}')
            else: A(f'v_mov_b32_dpp v{112+4*ks+i}, v{sr} row_shl:{4*ks} {DPPF} bound_ctrl:0')
        if n: mfma(60, 112 + 4*((n-1) % 4), 64 + 4*(n-1), n == 1)
    mfma(60, 124, 108, False)
    A('s_mov_b64 exec, 0xffff')
    A('ds_write_b128 v13, v[60:63]')
    A('s_mov_b64 exec, -1')
    A('s_waitcnt lgkmcnt(0)')
    A('s_barrier')
    A('s_cmp_eq_u32 s4, 0', 's_cbranch_scc0 L_tend')
    A('ds_read2st64_b32 v[40:41], v14 offset0:0 offset1:4', 'ds_read2st64_b32 v[42:43], v14 offset0:8 offset1:12')
    A('s_waitcnt lgkmcnt(0)')
    pk('add', 40, 40, 42)
    A('v_add_f32 v40, v40, v41', 'v_fma_f32 v40, v40, v21, v20', 'v_cvt_pk_bf16_f32 v40, v40, v40')
    A(f'buffer_store_short v40, v23, s[52:55], s42 offen {OP}')
    stamp(11)
    A.label('L_tend')
    if stamps: A('s_memtime s[90:91]', 's_memrealtime s[92:93]')
    stamp_flush(15)
    A.label('L_end')
    A('s_endpgm')

    body = A.fix()
    hdr = open('adaLN_cond__gqa_block_cached__geglu_ffn__decode.s.ref').read().split('\n')
    hdr = [l for l in hdr if l.startswith(';') and '@launch' not in l and 'Override' not in l and 'grid=ceil' not in l]
    notes = '''One persistent launch, one workgroup per CU: workgroup = (head, batch, half of the keys).
Waves 5..12 stream K/V (16 keys per step, online softmax).  Waves 0..4 run the small matmuls:
  start : silu(c) @ w_mod strips -> layernorm / modulate -> q strips; weights of the later stages go to LDS
  end   : merge of the splits, o @ wo, sum over heads + residual, layernorm, gate / up, gelu, down, residual
Workgroups hand data over through d_ws in 8 / 16 byte granules that carry a per-launch tag
(derived from an epoch word in d_ws that the launch advances); consumers poll the tags.
Write-through stores are used unless a run-time check shows producer and consumers on one XCD.'''
    hdr += ['; ' + l for l in notes.split('\n')]
    out = hdr + [f'; @launch grid=(256,1,1) block=(832,1,1) lds={LDS_SIZE}',
                 '.amdgcn_target "amdgcn-amd-amdhsa--gfx950"', '.text', f'.globl {KNAME}', '.p2align 8', f'.type {KNAME},@function', f'{KNAME}:']
    out += [('' if l.endswith(':') else '    ') + l for l in body]
    out += ['.section .rodata,"a"', '.p2align 6', f'.amdhsa_kernel {KNAME}',
            '  .amdhsa_next_free_vgpr 128', '  .amdhsa_next_free_sgpr 100', '  .amdhsa_accum_offset 128',
            '  .amdhsa_float_denorm_mode_32 3',
            '  .amdhsa_group_segment_fixed_size 0', '  .amdhsa_kernarg_size 112', '  .amdhsa_user_sgpr_count 2',
            '  .amdhsa_user_sgpr_kernarg_segment_ptr 1', '  .amdhsa_system_sgpr_workgroup_id_x 1', '.end_amdhsa_kernel']
    return '\n'.join(out) + '\n'

if __name__ == '__main__':
    kw = eval('dict(' + (sys.argv[2] if len(sys.argv) > 2 else '') + ')')
    open(sys.argv[1], 'w').write(gen(**kw))
```

```python
import struct, sys
from asmgen import Asm
KNAME = 'adaLN_cond__gqa_block_cached__geglu_ffn__decode_kernel'
def f2u(x): return struct.unpack('<I', struct.pack('<f', x))[0]
LOG2E = f2u(1.4426950408889634)
SCALE = f2u(192 ** -0.5)
DPPF = 'row_mask:0xf bank_mask:0xf'

WS_EP = 0
WS_XID = 0x110000
WS_X1 = 0xfa000
WS_G = 0x5000
WS_MOD = 0xb000
WS_Q = 0x1a000
WS_REC = 0x32000
WS_Y = 0x5a000
WS_STAMP = 0x180000
WS_SIZE = 0x200000
L_CNT = 0
L_FAST = 16
L_ST = 128
L_D = 512
L_RC = 5632
L_REC = 10880
L_WO = 19072
L_Q = 49792
L_W = 50176
L_SC = L_W + 81920
LDS_SIZE = L_SC + 9216
assert L_W % 128 == 0

def ngroups(D):
    out = []
    for i in range(256):
        x = i & 7; k = i >> 3; p = k >> 1
        d = 0 if p >= 11 else D[3] if p >= 9 else D[2] if x + 8 * p >= 60 else D[0] if p < 5 else D[1]
        out.append(128 + d if k & 1 else 128 - d)
    return out

def rwaves():
    ty, _ = roles(); out = []
    for i in range(256):
        k = i >> 3; p = k >> 1
        if ty[i] in (2, 3): continue
        r = (p - 9 if p < 11 else k - 20) if ty[i] == 0 else 12 + p
        if r < 20: out.append(i)
    return out

def roles():
    ty, crit = [], []
    for i in range(256):
        x = i & 7; k = i >> 3; p = k >> 1; sp = k & 1; m = x + 8 * p
        if p >= 11: t = 0
        elif sp == 0: t = 3 if p < 5 else 2
        elif p >= 9: t = 0
        else: t = 1 if m < 60 else 4
        ty.append(t); crit.append(t == 1 and m < 20)
    return ty, crit

def gen(H0=16, QP=3, D=(4, 5, 8, 3), fast=1, sleep=1, qsleep=4, xs=0, stamps=False, POL='nt', KP=None, VP=None, WP='', st0=0, OP='', ysleep=1, lin=1, pat=0, rot=3, hm=0, rw=0, rs=0, sp=0, sep=1):
    KP = POL if KP is None else KP; VP = POL if VP is None else VP
    A = Asm()
    def stamp(i):
        if stamps: A(f's_memrealtime s[{64+2*i}:{65+2*i}]')
    def stamp_flush(n):
        if not stamps: return
        A('s_waitcnt lgkmcnt(0)')
        A('s_lshl_b32 s60, s2, 4', 's_add_u32 s60, s60, s4', 's_lshl_b32 s60, s60, 6', f's_add_u32 s60, s60, {WS_STAMP}')
        A('v_mov_b32 v126, 0', 's_mov_b64 exec, 1')
        for i in range(n):
            A(f'v_mov_b32 v127, s{64+2*i}', f'buffer_store_dword v127, v126, s[44:47], s60 offen offset:{4*i}')
        A('s_waitcnt vmcnt(0)')
    def rnd(dst, src, tmp=None):
        t = tmp or dst
        A(f'v_cvt_pk_bf16_f32 {t}, {src}, {src}', f'v_lshlrev_b32 {dst}, 16, {t}')
    def srd(base, ptr, size, off=None):
        if off is None:
            A(f's_mov_b32 s{base}, s{ptr}', f's_mov_b32 s{base+1}, s{ptr+1}')
        else:
            A(f's_add_u32 s{base}, s{ptr}, {off}', f's_addc_u32 s{base+1}, s{ptr+1}, 0')
        A(f's_mov_b32 s{base+2}, {size}', f's_mov_b32 s{base+3}, 0x20000')
    def tagcalc():
        A('s_mul_i32 s9, s9, 0x9e3779b1', 's_add_u32 s9, s9, 0x7f4a7c15')
    def xidpub(name):
        if not fast: return
        A('s_cmp_eq_u32 s4, 0', f's_cbranch_scc0 {name}')
        A('s_getreg_b32 s3, hwreg(HW_REG_XCC_ID)', 'v_mov_b32 v24, s3', 'v_mov_b32 v25, s9', 's_lshl_b32 s3, s5, 5', 's_add_u32 s3, s3, s6', 's_lshl_b32 s3, s3, 7', f's_add_u32 s3, s3, {WS_XID}')
        A('s_mov_b64 exec, 1', 'buffer_store_dwordx2 v[24:25], v10, s[44:47], s3 offen sc1', 's_mov_b64 exec, -1')
        A.label(name)
    def check_tags(regs, acc, retry, slp):
        done = retry + '_ok'
        if len(regs) == 1:
            A(f'v_cmp_ne_u32 vcc, s9, {regs[0]}')
        else:
            A(f'v_xor_b32 {acc}, s9, {regs[0]}')
            for r in regs[1:]:
                A(f'v_bitop3_b32 {acc}, {acc}, {r}, s9 bitop3:0xf6')
            A(f'v_cmp_ne_u32 vcc, 0, {acc}')
        A(f's_cbranch_vccz {done}')
        if slp: A(f's_sleep {slp}')
        A('s_sub_u32 s95, s95, 1', f's_cbranch_scc0 {retry}', 's_mov_b32 s95, 0')
        A.label(done)
    def lds_signal(cnt):
        A('s_mov_b64 exec, 1', f'ds_add_u32 v10, v11 offset:{cnt}', 's_mov_b64 exec, -1')
    def lds_wait(cnt, target, name, vtmp='v12', vaddr='v10', stmp='s3', slp=0):
        A.label(name)
        if slp: A(f's_sleep {slp}')
        A(f'ds_read_b32 {vtmp}, {vaddr} offset:{cnt}', 's_waitcnt lgkmcnt(0)', f'v_readfirstlane_b32 {stmp}, {vtmp}', f's_cmp_ge_u32 {stmp}, {target}',
          f's_cbranch_scc1 {name}_x', 's_sub_u32 s95, s95, 1', f's_cbranch_scc0 {name}', 's_mov_b32 s95, 0')
        A.label(name + '_x')
    def dma_loop(n, voff, step, name, extra=(), pol=None):
        pol = WP if pol is None else pol
        A(f's_mov_b32 s3, {n}')
        A.label(name)
        A(f'buffer_load_dwordx4 {voff}, s[48:51], s13 offen {pol} lds')
        A(*extra)
        A('s_add_u32 m0, m0, 1024')
        if step: A(f's_add_u32 s13, s13, {step}')
        A('s_sub_u32 s3, s3, 1', 's_cmp_lg_u32 s3, 0', f's_cbranch_scc1 {name}')
    def allreduce_b(s1, s2, t):
        for r in (4, 8):
            A(f'v_add_f32_dpp {s1}, {s1}, {s1} row_ror:{r} {DPPF}', f'v_add_f32_dpp {s2}, {s2}, {s2} row_ror:{r} {DPPF}')
        A(f'v_permlane16_swap_b32 {s1}, {s2}', f'v_add_f32 {s1}, {s1}, {s2}')
        A(f'v_mov_b32 {t}, {s1}', f'v_permlane32_swap_b32 {s1}, {t}', f'v_add_f32 {s1}, {s1}, {t}')
        A(f'v_mov_b32 {s2}, {s1}', f'v_permlane16_swap_b32 {s1}, {s2}')
    def rnd8(e, t):
        for i in range(4): A(f'v_cvt_pk_bf16_f32 v{t+i}, v{e+2*i}, v{e+2*i+1}')
        for i in range(4): A(f'v_lshlrev_b32 v{e+2*i}, 16, v{t+i}', f'v_and_b32 v{e+2*i+1}, 0xffff0000, v{t+i}')
    def unpack(dst, srcs):
        for i, s_ in enumerate(srcs): A(f'v_lshlrev_b32 v{dst+2*i}, 16, v{s_}', f'v_and_b32 v{dst+2*i+1}, 0xffff0000, v{s_}')
    def pk(op, d, a, b, mod=''):
        A(f'v_pk_{op}_f32 v[{d}:{d+1}], v[{a}:{a+1}], v[{b}:{b+1}] {mod}')
    def plus1(e):
        for i in range(4): A(f'v_pk_add_f32 v[{e+2*i}:{e+1+2*i}], v[{e+2*i}:{e+1+2*i}], 1.0 op_sel_hi:[1,0]')
    def ashift(a0):
        for ks in range(1, 4):
            for i in range(4): A(f'v_mov_b32_dpp v{a0+4*ks+i}, v{a0+i} row_shl:{4*ks} {DPPF} bound_ctrl:0')
    def vpub(dst, c, b, tmp):
        A(f'v_bfe_u32 {tmp}, {c}, 2, 1', f'v_lshlrev_b32 {dst}, 7, {tmp}', f'v_lshrrev_b32 {tmp}, 3, {c}', f'v_lshl_add_u32 {dst}, {tmp}, 6, {dst}',
          f'v_bfe_u32 {tmp}, {c}, 1, 1', f'v_lshl_add_u32 {dst}, {tmp}, 2, {dst}', f'v_lshl_add_u32 {dst}, {b}, 4, {dst}')
    def pub4(val, g, soff):
        A(f'v_mov_b32_dpp v{g+1}, {val} row_shl:4 {DPPF} bound_ctrl:0', f'v_cvt_pk_bf16_f32 v{g}, {val}, v{g+1}', f'v_mov_b32_dpp v{g+1}, v{g} row_shl:8 {DPPF} bound_ctrl:0')
        A('s_mov_b32 exec_lo, 0x000f000f', 's_mov_b32 exec_hi, 0x000f000f')
        A(f'buffer_store_dwordx4 v[{g}:{g+3}], v3, s[44:47], {soff} offen sc1')
    def mfma(d, a, b, first):
        A(f'v_mfma_f32_16x16x32_bf16 v[{d}:{d+3}], v[{a}:{a+3}], v[{b}:{b+3}], {"0" if first else f"v[{d}:{d+3}]"}')
    def tr(r, addr, o0, o1, addr1=None):
        A(f'ds_read_b64_tr_b16 v[{r}:{r+1}], {addr} offset:{o0}', f'ds_read_b64_tr_b16 v[{r+2}:{r+3}], {addr1 or addr} offset:{o1}')

    A('s_cmp_ge_u32 s2, 256', 's_cbranch_scc1 L_end')
    stamp(0)
    if stamps: A('s_memtime s[88:89]')
    A('s_load_dwordx16 s[16:31], s[0:1], 0', 's_load_dwordx8 s[32:39], s[0:1], 64', 's_load_dwordx2 s[40:41], s[0:1], 104')
    A('v_lshrrev_b32 v1, 6, v0', 'v_and_b32 v0, 63, v0', 'v_readfirstlane_b32 s4, v1            ; wave')
    A('s_and_b32 s5, s2, 7', 's_lshr_b32 s6, s2, 3', *(['s_and_b32 s3, s6, 24', 's_add_u32 s7, s5, s3                 ; head'] if hm else ['s_lshr_b32 s3, s6, 3', 's_lshl_b32 s7, s5, 2', 's_add_u32 s7, s7, s3                 ; head']), 's_and_b32 s8, s6, 7')
    A('s_mov_b32 s95, 0x80000')
    A('s_lshr_b32 s3, s6, 1', 's_and_b32 s13, s6, 1')
    A('s_mov_b32 s60, 0', 's_sub_u32 s61, s6, 20', 's_mov_b32 s63, 0')
    A('s_cmp_ge_u32 s3, 11', 's_cbranch_scc1 L_roled')
    A('s_lshl_b32 s14, s3, 3', 's_add_u32 s14, s14, s5')
    A('s_cmp_lt_u32 s3, 5', f's_cselect_b32 s63, {D[0]}, {D[1]}', 's_cmp_ge_u32 s14, 60', f's_cselect_b32 s63, {D[2]}, s63', 's_cmp_ge_u32 s3, 9', f's_cselect_b32 s63, {D[3]}, s63')
    A('s_cmp_eq_u32 s13, 0', 's_cbranch_scc1 L_role0')
    A('s_sub_u32 s61, s3, 9', 's_cmp_ge_u32 s3, 9', 's_cbranch_scc1 L_roled')
    A('s_mov_b32 s61, s14', 's_cmp_lt_u32 s14, 60', 's_cselect_b32 s60, 1, 4', 's_branch L_roled')
    A.label('L_role0')
    A('s_cmp_lt_u32 s3, 5', 's_cselect_b32 s60, 3, 2', 's_cselect_b32 s14, 5, 6', 's_cselect_b32 s15, 0, 5', 's_mul_i32 s61, s5, s14', 's_add_u32 s61, s61, s3', 's_sub_u32 s61, s61, s15')
    A.label('L_roled')
    A('s_cmp_lt_u32 s4, 5', 's_cbranch_scc1 L_service')

    q = ['v4', 'v5', 'v6']
    acc = [f'v{8+i}' for i in range(6)]
    vM, vL = 'v14', 'v15'
    def ld(kind, j):
        r, s = (32 + 4 * j, 48) if kind == 'K' else (64 + 4 * j, 48 if sep else 52)
        vo, off = ('v1', j * 768) if j < 5 else ('v2', (j - 5) * 768)
        A(f'buffer_load_dwordx3 v[{r}:{r+2}], {vo}, s[{s}:{s+3}], s10 offen offset:{off} {KP if kind == "K" else VP}')
    def goff(t):
        if pat == 1: A(f's_lshl_b32 s10, {t}, 1', 's_add_u32 s10, s10, s86')
        else: A(f's_and_b32 s10, {t}, -8', f's_add_u32 s10, s10, {t}', 's_add_u32 s10, s10, s86')
        if rot: A('s_add_u32 s10, s10, s42', 's_sub_u32 s3, s10, 224', 's_cmp_ge_u32 s10, 224', 's_cselect_b32 s10, s3, s10')
        A(f's_mul_i32 s3, {t}, s94', 's_add_u32 s3, s3, s87', f's_cmp_lt_u32 {t}, 112', 's_cselect_b32 s10, s10, s3', 's_mul_i32 s10, s10, 6144')
    A('v_mul_u32_u24 v1, 12, v0', 'v_add_u32 v2, 3840, v1')
    A('s_lshr_b32 s3, s8, 1', 's_lshl_b32 s3, s3, 5', 's_add_u32 s3, s3, s7', 's_mul_i32 s12, s3, 1572864')
    if rot: A(f's_mul_i32 s42, s3, {rot}', *([f's_mul_i32 s86, s4, {rw}', 's_add_u32 s42, s42, s86'] if rw else []), *([f's_mul_i32 s86, s13, {rs}', 's_add_u32 s42, s42, s86'] if rs else []), 's_mul_hi_u32 s86, s42, 306783379', 's_mul_i32 s86, s86, 14', 's_sub_u32 s42, s42, s86', 's_lshl_b32 s42, s42, 4')
    A('s_mov_b32 s86, s13' if pat == 1 else 's_lshl_b32 s86, s13, 3', 's_mul_i32 s87, s13, 255', 's_add_u32 s87, s87, 112', 's_cmp_eq_u32 s13, 0', 's_cselect_b32 s94, 1, -1')
    A('s_mul_i32 s63, s63, s94', 's_sub_u32 s63, 128, s63')
    A('s_sub_u32 s11, s4, 5')
    goff('s11')
    A('s_cmp_lt_u32 s61, 20', 's_cselect_b32 s15, 2, 0', 's_cmp_eq_u32 s60, 1', 's_cselect_b32 s15, s15, 0', 's_cmp_eq_u32 s60, 0', 's_cselect_b32 s15, 1, s15')
    A('v_mov_b32 v29, 0', 'v_mov_b32 v30, 1')
    A('s_waitcnt lgkmcnt(0)')
    if st0: stamp(3)
    srd(48, 18, 1572864, 's12'); srd(52, 20, 1572864, 's12')
    A('s_load_dword s9, s[40:41], 0')
    A('s_cmp_eq_u32 s15, 0', 's_cbranch_scc1 L_hold2_x')
    A('s_barrier')
    A('s_cmp_eq_u32 s15, 2', 's_cbranch_scc0 L_hold2_x')
    lds_wait(4, 4, 'L_hold2', 'v16', 'v29', 's14', 2)
    order = [('K', j) for j in range(8)] + [('V', j) for j in range(8)]
    for n, o in enumerate(order):
        if n == H0:
            A('s_cmp_eq_u32 s15, 1', 's_cbranch_scc0 L_hold1_x')
            lds_wait(4, 4, 'L_hold1', 'v16', 'v29', 's14', 2)
        if QP and QP <= n < H0:
            A('s_cmp_eq_u32 s15, 1', f's_cbranch_scc0 L_qp{n}', f's_waitcnt vmcnt({QP - 1})')
            A('ds_read_b32 v16, v29 offset:4', 's_waitcnt lgkmcnt(0)', 'v_readfirstlane_b32 s14, v16', 's_cmp_ge_u32 s14, 4', 's_cselect_b32 s15, 3, 1')
            A.label(f'L_qp{n}')
        if sep and n == 8:
            A('s_add_u32 s13, s11, 8'); goff('s13')
        ld(*o)
        if st0 and n == 0: A('s_waitcnt vmcnt(0)'); stamp(4)
    A('s_cmp_eq_u32 s15, 0', 's_cbranch_scc0 L_nobar')
    A('s_barrier')
    A.label('L_nobar')
    if stamps: srd(44, 40, WS_SIZE)
    A('s_mul_i32 s14, s7, 3072', 's_lshr_b32 s3, s8, 1', 's_lshl_b32 s3, s3, 6', 's_add_u32 s14, s14, s3', f's_add_u32 s14, s14, {WS_Q}')
    A('s_lshl_b32 s3, s11, 9', 's_add_u32 s14, s14, s3', 's_add_u32 s84, s40, s14', 's_addc_u32 s85, s41, 0')
    A('v_and_b32 v3, 31, v0', 'v_mul_u32_u24 v3, 12, v3', 's_lshl_b32 s3, s11, 6', 'v_lshlrev_b32 v31, 2, v0', 'v_add_u32 v31, s3, v31')
    A('s_lshl_b32 s3, s11, 10', f's_add_u32 s3, s3, {L_REC}', 'v_lshlrev_b32 v7, 4, v0', 'v_add_u32 v7, s3, v7')
    A('s_mov_b32 s56, 0xcccccccc', 's_mov_b32 s57, 0xcccccccc', f's_mov_b32 s58, {hex(LOG2E)}', f's_mov_b32 s59, {hex(SCALE)}', 's_mov_b32 s43, 1572864')
    for a in acc: A(f'v_mov_b32 {a}, 0')
    A(f'v_mov_b32 {vM}, 0xff7fffff', f'v_mov_b32 {vL}, 0')
    A('s_waitcnt lgkmcnt(0)')
    tagcalc()
    stamp(1)
    A('s_cmp_lt_u32 s11, 6', 's_cbranch_scc0 L_qw')
    A('s_branch L_qpoll')
    A.label('L_qretry')
    A(f's_sleep {qsleep}', 's_sub_u32 s95, s95, 1', 's_cbranch_scc0 L_qpoll', 's_mov_b32 s95, 0', 's_branch L_qgot')
    A.label('L_qpoll')
    A('s_load_dwordx16 s[16:31], s[84:85], 0 glc', 's_load_dwordx8 s[32:39], s[84:85], 256 glc', 's_load_dwordx8 s[76:83], s[84:85], 288 glc', 's_waitcnt lgkmcnt(0)')
    sq = list(range(16, 40, 2)) + list(range(76, 84, 2))
    for r in sq: A(f's_cmp_eq_u32 s{r+1}, s9', 's_cbranch_scc0 L_qretry')
    A.label('L_qgot')
    for i, r in enumerate(sq): A(f'v_writelane_b32 v16, s{r}, {i}')
    A('s_mov_b64 exec, 0xffff', f'ds_write_b32 v31, v16 offset:{L_Q}', 's_mov_b64 exec, 1', 'ds_add_u32 v29, v30 offset:12', 's_mov_b64 exec, -1')
    lds_wait(12, 6, 'L_qw', 'v16', 'v29', 's14', 1)
    stamp(2)
    for i in range(3): A(f'ds_read_b32 {q[i]}, v3 offset:{L_Q + 4*i}')
    A('s_waitcnt lgkmcnt(0)')
    if sep:
        A('s_mov_b32 s12, s11', 's_sub_u32 s15, s63, s11', 's_add_u32 s15, s15, 7', 's_lshr_b32 s15, s15, 3', 's_mov_b32 s13, s15', 's_add_u32 s11, s11, 8')
        A('v_lshrrev_b32 v28, 5, v0', 'v_lshlrev_b32 v28, 3, v28', 'v_bfe_u32 v29, v0, 1, 3', 'v_add_u32 v28, v28, v29', 'v_lshlrev_b32 v28, 2, v28')
        A('s_mul_i32 s3, s12, 1152', f's_add_u32 s3, s3, {L_SC}', 'v_add_u32 v28, s3, v28', 'v_mov_b32 v29, v28')
        def nxt(tag):
            A('s_add_u32 s11, s11, 8', 's_cmp_ge_u32 s11, s63', f's_cbranch_scc0 L_nx{tag}', 's_mov_b32 s11, s12', 's_mov_b32 s48, s52', 's_mov_b32 s49, s53', 's_mov_b32 s50, s54', 's_mov_b32 s54, 0')
            A.label(f'L_nx{tag}')
            goff('s11')
        def kstep(e):
            B = 32 + 32 * e; kd = 'KV'[e]
            T = lambda j: f'v{B+3+4*j}'
            nxt(f'k{e}')
            for j in range(8):
                A('s_waitcnt vmcnt(15)')
                for i in range(3): A(f'v_dot2_f32_bf16 {T(j)}, v{B+4*j+i}, {q[i]}, {T(j) if i else "0"}')
                ld(kd, j)
            for i in range(4): A(f'v_add_f32_dpp v{16+i}, {T(i)}, {T(i)} row_ror:8 row_mask:0xf bank_mask:0x3')
            for i in range(4): A(f'v_add_f32_dpp v{16+i}, {T(i+4)}, {T(i+4)} row_ror:8 row_mask:0xf bank_mask:0xc')
            for i in range(2): A(f'v_add_f32_dpp v{20+i}, v{16+i}, v{16+i} row_half_mirror row_mask:0xf bank_mask:0x5')
            for i in range(2): A(f'v_add_f32_dpp v{20+i}, v{18+i}, v{18+i} row_half_mirror row_mask:0xf bank_mask:0xa')
            A(f'v_add_f32_dpp v22, v20, v20 quad_perm:[2,3,0,1] {DPPF}', f'v_add_f32_dpp v23, v21, v21 quad_perm:[2,3,0,1] {DPPF}')
            A('v_cndmask_b32 v22, v22, v23, s[56:57]')
            A(f'v_add_f32_dpp v22, v22, v22 quad_perm:[1,0,3,2] {DPPF}')
            A('v_mov_b32 v23, v22', 'v_permlane16_swap_b32 v22, v23', 'v_add_f32 v22, v22, v23')
            rnd('v22', 'v22'); A('v_mul_f32 v22, s59, v22'); rnd('v22', 'v22')
            A('ds_write_b32 v28, v22', f'v_max_f32 {vM}, {vM}, v22', 'v_add_u32 v28, 64, v28', 's_sub_u32 s13, s13, 1', 's_cmp_eq_u32 s13, 0')
        def vstep(e):
            B = 32 + 32 * e; kd = 'KV'[e]
            A('ds_read_b32 v22, v29', 'v_add_u32 v29, 64, v29')
            nxt(f'v{e}')
            A('s_waitcnt lgkmcnt(0)', f'v_sub_f32 v22, v22, {vM}', 'v_mul_f32 v22, s58, v22', 'v_exp_f32 v22, v22')
            A('v_cvt_pk_bf16_f32 v26, v22, 0', 'v_cvt_pk_bf16_f32 v27, 0, v22')
            A(f'v_add_f32_dpp v22, v22, v22 quad_perm:[2,3,0,1] {DPPF}', f'v_add_f32_dpp v22, v22, v22 row_half_mirror {DPPF}', f'v_add_f32_dpp v22, v22, v22 row_ror:8 {DPPF}', f'v_add_f32 {vL}, {vL}, v22')
            for j in range(8):
                A('s_waitcnt vmcnt(15)')
                for i in range(3):
                    A(f'v_dot2c_f32_bf16_dpp {acc[2*i]}, v26, v{B+4*j+i} row_newbcast:{2*j} {DPPF}')
                    A(f'v_dot2c_f32_bf16_dpp {acc[2*i+1]}, v27, v{B+4*j+i} row_newbcast:{2*j} {DPPF}')
                ld(kd, j)
            A('s_sub_u32 s13, s13, 1', 's_cmp_eq_u32 s13, 0')
        def turn():
            A(f'v_max_f32_dpp {vM}, {vM}, {vM} quad_perm:[2,3,0,1] {DPPF}', f'v_max_f32_dpp {vM}, {vM}, {vM} row_half_mirror {DPPF}', f'v_max_f32_dpp {vM}, {vM}, {vM} row_ror:8 {DPPF}')
            A(f'v_mov_b32 v25, {vM}', f'v_permlane32_swap_b32 {vM}, v25', f'v_max_f32 {vM}, {vM}, v25', f'v_mul_f32 v31, 0.5, {vM}', 's_mov_b32 s13, s15')
        A.label('L_kA')
        kstep(0)
        A('s_cbranch_scc1 L_toB')
        kstep(1)
        A('s_cbranch_scc0 L_kA')
        turn()
        A.label('L_vA')
        vstep(0)
        A('s_cbranch_scc1 L_done')
        A.label('L_vB')
        vstep(1)
        A('s_cbranch_scc0 L_vA')
        A.label('L_done')
    else:
        if sp == 1: A('s_cmp_ge_u32 s11, 4', 's_cbranch_scc0 L_sp', 's_setprio 1', 'L_sp:')
        if sp == 3:
            for p_ in (1, 2, 3): A(f's_cmp_ge_u32 s11, {2*p_}', f's_cbranch_scc0 L_sp{p_}', f's_setprio {p_}', f'L_sp{p_}:')
        if sp == 5:
            A('s_setprio 3')
            for p_ in (1, 2, 3): A(f's_cmp_ge_u32 s11, {2*p_}', f's_cbranch_scc0 L_sp{p_}', f's_setprio {3-p_}', f'L_sp{p_}:')
        if sp == 6:
            A('s_and_b32 s3, s11, 3')
            for p_ in (1, 2, 3): A(f's_cmp_ge_u32 s3, {p_}', f's_cbranch_scc0 L_sp{p_}', f's_setprio {p_}', f'L_sp{p_}:')
        A.label('L_loop')
        if sp == 4:
            A('s_lshr_b32 s3, s11, 2', 's_lshr_b32 s10, s11, 3', 's_xor_b32 s3, s3, s10', 's_bitcmp1_b32 s3, 0', 's_cbranch_scc0 L_spa', 's_setprio 1', 's_branch L_spb', 'L_spa:', 's_setprio 0', 'L_spb:')
        A('s_add_u32 s11, s11, 8')
        goff('s11')
        A('s_cmp_ge_u32 s11, s63', 's_cselect_b32 s50, 0, s43', 's_cselect_b32 s54, 0, s43')
        T = lambda j: f'v{35+4*j}'
        for j in range(8):
            A('s_waitcnt vmcnt(15)')
            for i in range(3): A(f'v_dot2_f32_bf16 {T(j)}, v{32+4*j+i}, {q[i]}, {T(j) if i else "0"}')
            ld('K', j)
        for i in range(4): A(f'v_add_f32_dpp v{16+i}, {T(i)}, {T(i)} row_ror:8 row_mask:0xf bank_mask:0x3')
        for i in range(4): A(f'v_add_f32_dpp v{16+i}, {T(i+4)}, {T(i+4)} row_ror:8 row_mask:0xf bank_mask:0xc')
        for i in range(2): A(f'v_add_f32_dpp v{20+i}, v{16+i}, v{16+i} row_half_mirror row_mask:0xf bank_mask:0x5')
        for i in range(2): A(f'v_add_f32_dpp v{20+i}, v{18+i}, v{18+i} row_half_mirror row_mask:0xf bank_mask:0xa')
        A(f'v_add_f32_dpp v22, v20, v20 quad_perm:[2,3,0,1] {DPPF}', f'v_add_f32_dpp v23, v21, v21 quad_perm:[2,3,0,1] {DPPF}')
        A('v_cndmask_b32 v22, v22, v23, s[56:57]')
        A(f'v_add_f32_dpp v22, v22, v22 quad_perm:[1,0,3,2] {DPPF}')
        A('v_mov_b32 v23, v22', 'v_permlane16_swap_b32 v22, v23', 'v_add_f32 v22, v22, v23')
        rnd('v22', 'v22'); A('v_mul_f32 v22, s59, v22'); rnd('v22', 'v22')
        A(f'v_max_f32_dpp v23, v22, v22 quad_perm:[2,3,0,1] {DPPF}', f'v_max_f32_dpp v23, v23, v23 row_half_mirror {DPPF}', f'v_max_f32_dpp v23, v23, v23 row_ror:8 {DPPF}')
        A('v_mov_b32 v25, v23', 'v_permlane32_swap_b32 v23, v25', f'v_max3_f32 v23, v23, v25, {vM}')
        A(f'v_sub_f32 v24, {vM}, v23', 'v_sub_f32 v22, v22, v23', f'v_mov_b32 {vM}, v23')
        A('v_mul_f32 v24, s58, v24', 'v_mul_f32 v22, s58, v22', 'v_exp_f32 v24, v24', 'v_exp_f32 v22, v22')
        for i in range(3): pk('mul', 8+2*i, 8+2*i, 24, 'op_sel_hi:[1,0]')
        A('v_cvt_pk_bf16_f32 v26, v22, 0', 'v_cvt_pk_bf16_f32 v27, 0, v22')
        A(f'v_add_f32_dpp v22, v22, v22 quad_perm:[2,3,0,1] {DPPF}', f'v_mul_f32 {vL}, {vL}, v24', f'v_add_f32_dpp v22, v22, v22 row_half_mirror {DPPF}')
        A(f'v_add_f32_dpp v22, v22, v22 row_ror:8 {DPPF}', f'v_mul_f32 v31, 0.5, {vM}', f'v_add_f32 {vL}, {vL}, v22')
        for j in range(8):
            A('s_waitcnt vmcnt(15)')
            for i in range(3):
                A(f'v_dot2c_f32_bf16_dpp {acc[2*i]}, v26, v{64+4*j+i} row_newbcast:{2*j} {DPPF}')
                A(f'v_dot2c_f32_bf16_dpp {acc[2*i+1]}, v27, v{64+4*j+i} row_newbcast:{2*j} {DPPF}')
            ld('V', j)
        A('s_cmp_lt_u32 s11, s63', 's_cbranch_scc1 L_loop')
    if not st0: stamp(3)
    A(f'v_permlane32_swap_b32 {vL}, v31')
    for i in range(3): A(f'v_permlane32_swap_b32 {acc[2*i]}, {acc[2*i+1]}')
    A(f'v_add_f32 v23, {vL}, v31')
    for i in range(3): A(f'v_add_f32 v{20+i}, {acc[2*i]}, {acc[2*i+1]}')
    A('ds_write_b128 v7, v[20:23]')
    A('s_waitcnt lgkmcnt(0)', 's_barrier')
    if not st0: stamp(4)
    stamp_flush(5)
    A('s_endpgm')
    if sep:
        A.label('L_toB')
        turn()
        A('s_branch L_vB')

    A.label('L_service')
    A('s_setprio 2')
    A('v_and_b32 v4, 3, v0', 'v_bfe_u32 v5, v0, 2, 2', 'v_lshrrev_b32 v6, 4, v0', 'v_mov_b32 v15, 0')
    A('v_mov_b32 v10, 0', 'v_mov_b32 v11, 1', 'v_lshlrev_b32 v1, 4, v0')
    A('s_cmp_eq_u32 s4, 0', 's_cbranch_scc0 L_nozero')
    for o in (0, 4, 8, 12, 20, 24): A(f'ds_write_b32 v10, v10 offset:{o}')
    A.label('L_nozero')
    A('s_lshl_b32 s62, s4, 14', f's_add_u32 s62, s62, {L_W}')
    A('s_waitcnt lgkmcnt(0)')
    A('s_load_dword s9, s[40:41], 0')
    A('s_cmp_gt_u32 s60, 1', 's_cbranch_scc1 L_nojob')
    A('v_mul_u32_u24 v7, 1280, v4', 'v_lshl_add_u32 v7, v5, 6, v7', 'v_lshl_add_u32 v7, v6, 4, v7', 's_lshl_b32 s3, s4, 8')
    A('s_cmp_eq_u32 s60, 0', 's_cbranch_scc0 L_modjob')
    srd(52, 16, 5120)
    srd(48, 22, 640 * 12288)
    A('s_mov_b32 s42, 12288', 's_mov_b32 s59, s61', *(['s_mul_i32 s13, s61, 43', 's_lshr_b32 s13, s13, 7', 's_mul_i32 s13, s13, 21', 's_add_u32 s61, s61, s13', 's_mul_i32 s13, s5, 3'] if hm else ['s_mul_i32 s13, s5, 12']), 's_add_u32 s61, s61, s13', 's_lshl_b32 s13, s61, 7')
    A('s_branch L_dojob')
    A.label('L_modjob')
    srd(52, 34, 5120)
    A('buffer_load_dwordx4 v[36:39], v7, s[52:55], s3 offen', 's_mov_b32 s54, 0')
    srd(48, 36, 640 * 7680)
    A('s_mov_b32 s42, 7680', 's_lshl_b32 s13, s61, 7')
    A.label('L_dojob')
    A('v_lshrrev_b32 v8, 3, v0', 's_lshl_b32 s3, s4, 7', 'v_add_u32 v8, s3, v8', 'v_mul_lo_u32 v8, v8, s42')
    A('v_and_b32 v9, 7, v0', 'v_lshlrev_b32 v9, 4, v9', 'v_and_b32 v12, 1, v6', 'v_lshlrev_b32 v12, 5, v12', 'v_xor_b32 v9, v9, v12', 'v_add_u32 v8, v8, v9')
    A('s_lshl_b32 s42, s42, 3', 's_mov_b32 m0, s62')
    dma_loop(4, 'v8', 's42', 'L_dma0', ['v_xor_b32 v8, 64, v8'], POL)
    for t in range(5): A(f'buffer_load_dwordx4 v[{20+4*t}:{23+4*t}], v7, s[52:55], 0 offen offset:{256*t}' if t < 4 else 'buffer_load_dwordx4 v[60:63], v7, s[52:55], 0 offen offset:1024')
    A('s_lshl_b32 s3, s4, 8', 'buffer_load_dwordx4 v[56:59], v7, s[52:55], s3 offen')
    dma_loop(12, 'v8', 's42', 'L_dma1', ['v_xor_b32 v8, 64, v8'], POL)
    A.label('L_nojob')
    A('s_barrier')
    srd(44, 40, WS_SIZE)
    A('s_lshr_b32 s3, s6, 1', 's_add_u32 s3, s3, 12', 's_cmp_eq_u32 s60, 0', 's_cselect_b32 s3, s59, s3', 's_lshl_b32 s59, s3, 1', 's_add_u32 s59, s59, s4', 's_sub_u32 s59, s59, 1')
    A('s_cmp_lt_u32 s3, 20', 's_cselect_b32 s59, s59, -1', 's_and_b32 s3, s60, 6', 's_cmp_eq_u32 s3, 2', 's_cselect_b32 s59, -1, s59', 's_sub_u32 s3, s4, 1', 's_cmp_lt_u32 s3, 2', 's_cselect_b32 s59, s59, -1')
    A('v_lshrrev_b32 v2, 2, v0')
    vpub('v3', 'v2', 'v4', 'v12')
    A('v_lshrrev_b32 v12, 1, v6', 'v_lshlrev_b32 v2, 8, v12', 'v_lshl_add_u32 v2, v5, 9, v2', 'v_and_b32 v12, 1, v6', 'v_lshl_add_u32 v2, v12, 6, v2', 'v_lshl_add_u32 v2, v4, 4, v2')
    A('s_lshl_b32 s63, s4, 11')
    A('s_lshl_b32 s3, s4, 10', f's_add_u32 s3, s3, {L_D}', 'v_add_u32 v13, s3, v1')
    A('s_lshl_b32 s3, s4, 8', f's_add_u32 s3, s3, {L_D}', 'v_lshlrev_b32 v14, 2, v0', 'v_add_u32 v14, s3, v14')
    A('s_cmp_gt_u32 s60, 1', 's_cbranch_scc1 L_tailw0')
    A('v_lshlrev_b32 v9, 10, v6', 'v_lshl_add_u32 v9, v5, 7, v9', 'v_lshl_add_u32 v9, v4, 3, v9')
    A('v_lshrrev_b32 v12, 1, v5', 'v_lshl_add_u32 v9, v12, 5, v9', 'v_and_b32 v12, 1, v6', 'v_lshl_add_u32 v9, v12, 6, v9', 'v_add_u32 v9, s62, v9')
    A('s_lshl_b32 s43, s61, 2', 's_add_u32 s43, s43, s4', 's_lshl_b32 s43, s43, 8')
    A('v_xor_b32 v16, 32, v9', 'v_xor_b32 v17, 64, v9', 'v_xor_b32 v18, 0x60, v9')
    A('s_cmp_eq_u32 s60, 0', 's_cbranch_scc0 L_silu')
    A('s_waitcnt vmcnt(12)')
    A('s_mov_b32 s3, 0x3f803f80')
    for i, r in enumerate(list(range(20, 36)) + [60, 61, 62, 63]):
        A(f'v_dot2_f32_bf16 v36, v{r}, s3, {"0" if i == 0 else "v36"}', f'v_dot2_f32_bf16 v37, v{r}, v{r}, {"0" if i == 0 else "v37"}')
    for i in range(4): A(f'v_mov_b32 v{40+i}, v{56+i}')
    unpack(56, [40, 41, 42, 43])
    allreduce_b('v36', 'v37', 'v38')
    A(f'v_mul_f32 v36, {hex(f2u(1/640))}, v36', f'v_mul_f32 v37, {hex(f2u(1/640))}, v37', 'v_fma_f32 v37, -v36, v36, v37', 'v_max_f32 v37, 0, v37')
    A('v_cvt_pk_bf16_f32 v38, v36, v37', 'v_and_b32 v37, 0xffff0000, v38', 'v_lshlrev_b32 v36, 16, v38')
    A(f'v_add_f32 v37, {hex(f2u(1e-5))}, v37'); rnd('v37', 'v37'); A('v_sqrt_f32 v37, v37'); rnd('v37', 'v37'); A('v_rcp_f32 v37, v37')
    for i in range(4): pk('add', 56+2*i, 56+2*i, 36, 'op_sel_hi:[1,0] neg_lo:[0,1] neg_hi:[0,1]')
    rnd8(56, 40)
    for i in range(4): pk('mul', 56+2*i, 56+2*i, 36, 'op_sel:[0,1] op_sel_hi:[1,1]')
    rnd8(56, 40)
    A('v_lshlrev_b32 v15, 6, v4', 'v_lshrrev_b32 v12, 3, v0', 'v_lshl_add_u32 v15, v12, 3, v15', f's_add_u32 s43, s43, {WS_Q}')
    A('s_branch L_btr')
    A.label('L_silu')
    A('s_waitcnt vmcnt(22)')
    unpack(48, [36, 37, 38, 39])
    for i in range(8): A(f'v_mul_f32 v{36+i}, {hex(LOG2E ^ 0x80000000)}, v{48+i}')
    for i in range(8): A(f'v_exp_f32 v{36+i}, v{36+i}')
    plus1(36)
    for i in range(8): A(f'v_rcp_f32 v{36+i}, v{36+i}')
    for i in range(4): pk('mul', 48+2*i, 48+2*i, 36+2*i)
    for i in range(4): A(f'v_cvt_pk_bf16_f32 v{40+i}, v{48+2*i}, v{49+2*i}')
    ashift(40)
    A(f's_add_u32 s43, s43, {WS_MOD}')
    A.label('L_btr')
    A('s_waitcnt lgkmcnt(0)')
    tagcalc()
    for ks in range(4):
        A(f's_waitcnt vmcnt({12-4*ks})')
        for tl in range(4): tr(64 + 16*tl + 4*ks, ['v9', 'v16', 'v17', 'v18'][tl], 4096*ks, 4096*ks + 512)
    stamp(1)
    A('s_cmp_eq_u32 s60, 0', 's_cbranch_scc0 L_amov')
    A(f's_add_u32 s3, s63, {WS_MOD}', f's_add_u32 s13, s63, {WS_MOD + 10240}')
    A.label('L_hpoll')
    A('buffer_load_dwordx4 v[28:31], v2, s[44:47], s13 offen sc1', 'buffer_load_dwordx4 v[32:35], v2, s[44:47], s13 offen offset:128 sc1')
    A('buffer_load_dwordx4 v[20:23], v2, s[44:47], s3 offen sc1', 'buffer_load_dwordx4 v[24:27], v2, s[44:47], s3 offen offset:128 sc1')
    A('s_waitcnt vmcnt(0)')
    check_tags(['v22', 'v26', 'v30', 'v34'], 'v36', 'L_hpoll', 1)
    stamp(2)
    unpack(44, [28, 29, 32, 33]); plus1(44); rnd8(44, 36)
    for i in range(4): pk('mul', 44+2*i, 44+2*i, 56+2*i)
    unpack(56, [20, 21, 24, 25])
    rnd8(44, 36)
    for i in range(4): pk('add', 44+2*i, 44+2*i, 56+2*i)
    for i in range(4): A(f'v_cvt_pk_bf16_f32 v{40+i}, v{44+2*i}, v{45+2*i}')
    ashift(40)
    A.label('L_amov')
    A('s_waitcnt lgkmcnt(8)' if not stamps else 's_waitcnt lgkmcnt(0)')
    for ks in range(4):
        if ks == 3: A('s_waitcnt lgkmcnt(0)')
        for tl in range(4): mfma(20 + 4*tl, 40 + 4*ks, 64 + 16*tl + 4*ks, ks == 0)
    A('s_mov_b64 exec, 0xffff')
    for tl in range(4): A(f'ds_write_b128 v13, v[{20+4*tl}:{23+4*tl}] offset:{256*tl}')
    lds_signal(0)
    A('s_cmp_eq_u32 s4, 4', 's_cbranch_scc0 L_fin0')
    lds_wait(4, 4, 'L_w1')
    A('s_branch L_tailw')
    A.label('L_fin0')
    A('v_mov_b32 v50, s9', 'v_mov_b32 v51, s9', 'v_mov_b32 v41, s9')
    lds_wait(0, 5, 'L_w0')
    A('ds_read2st64_b32 v[42:43], v14 offset0:0 offset1:4', 'ds_read2st64_b32 v[44:45], v14 offset0:8 offset1:12', 'ds_read_b32 v46, v14 offset:4096')
    A('s_waitcnt lgkmcnt(0)')
    A('v_add_f32 v42, v42, v43', 'v_add_f32 v44, v44, v45', 'v_add_f32 v42, v42, v46', 'v_add_f32 v42, v42, v44')
    A('s_cmp_eq_u32 s60, 0', 's_cbranch_scc1 L_finq')
    pub4('v42', 48, 's43')
    A('s_branch L_fin1')
    A.label('L_finq')
    A(f'v_mov_b32_dpp v43, v42 row_shl:4 {DPPF} bound_ctrl:0', 'v_cvt_pk_bf16_f32 v40, v42, v43')
    A('s_mov_b32 exec_lo, 0x0f0f0f0f', 's_mov_b32 exec_hi, 0x0f0f0f0f')
    A('buffer_store_dwordx2 v[40:41], v15, s[44:47], s43 offen sc1')
    A.label('L_fin1')
    stamp(3)
    lds_signal(4)
    A('s_branch L_tailw')
    A.label('L_tailw0')
    A('s_waitcnt lgkmcnt(0)')
    tagcalc()
    A('s_cmp_eq_u32 s60, 2', 's_cbranch_scc0 L_twF2')
    A('v_lshrrev_b32 v8, 2, v0', 's_lshl_b32 s3, s4, 7', 'v_add_u32 v8, s3, v8', 'v_mul_u32_u24 v8, 3072, v8', 'v_lshl_add_u32 v8, v4, 4, v8')
    srd(48, 28, 640 * 3072)
    A('s_lshl_b32 s13, s61, 6', 's_mov_b32 m0, s62')
    dma_loop(8, 'v8', 49152, 'L_dma5')
    srd(48, 30, 640 * 3072)
    A('s_lshl_b32 s13, s61, 6')
    dma_loop(8, 'v8', 49152, 'L_dma6')
    A('s_branch L_tailw')
    A.label('L_twF2')
    A('s_cmp_eq_u32 s60, 3', 's_cbranch_scc0 L_tailw', 's_cmp_eq_u32 s4, 4', 's_cbranch_scc1 L_tailw')
    A('v_lshrrev_b32 v8, 1, v0', 'v_mul_u32_u24 v8, 1280, v8', 'v_and_b32 v12, 1, v0', 'v_lshl_add_u32 v8, v12, 4, v8')
    srd(48, 32, 1536 * 1280)
    A('s_mul_i32 s13, s4, 491520', 's_lshl_b32 s3, s61, 5', 's_add_u32 s13, s13, s3', 's_mov_b32 m0, s62')
    dma_loop(12, 'v8', 40960, 'L_dma4')
    A.label('L_tailw')
    A('s_setprio 0')
    xidpub('L_xp')
    srd(48, 24, 6144 * 1280)
    A('s_mul_i32 s13, s7, 245760', 's_mul_i32 s3, s8, 160', 's_add_u32 s13, s13, s3')
    A('s_mul_i32 s3, s4, 6144', f's_add_u32 m0, s3, {L_WO}', 's_mul_i32 s3, s4, 384', 'v_add_u32 v9, s3, v0')
    wo_addr = ['v_mul_u32_u24 v8, 6554, v9', 'v_lshrrev_b32 v8, 16, v8', 'v_mul_u32_u24 v8, 1120, v8', 'v_lshl_add_u32 v8, v9, 4, v8']
    A(*wo_addr)
    dma_loop(6, 'v8', None, 'L_dma3', ['v_add_u32 v9, 64, v9'] + wo_addr)
    stamp(4)
    A(f's_mov_b32 s58, {hex(LOG2E)}', 's_mov_b32 s56, 0', 's_mov_b32 s57, -1', 's_mov_b32 s12, 0')
    srd(52, 38, 5120)
    A('s_mul_i32 s14, s7, 5120', f's_add_u32 s14, s14, {WS_REC}')
    A('s_mul_i32 s15, s8, 640', 's_add_u32 s15, s15, s14')
    A('s_lshl_b32 s3, s4, 10', "s_add_u32 s14, s14, s3")
    A('s_lshl_b32 s3, s4, 6', 'v_add_u32 v12, s3, v0', 'v_mul_u32_u24 v15, 1639, v12', 'v_lshrrev_b32 v15, 16, v15')
    A('v_mul_u32_u24 v16, 40, v15', 'v_sub_u32 v16, v12, v16', 'v_cmp_gt_u32 s[96:97], 33, v16')
    A('v_add_u32 v15, v15, v12', 'v_lshlrev_b32 v15, 4, v15', f'v_add_u32 v15, {L_RC}, v15')
    A('v_and_b32 v12, 7, v0', 'v_mul_u32_u24 v16, 656, v12', 'v_lshl_add_u32 v16, v6, 4, v16', f'v_add_u32 v16, {L_RC}, v16')
    A('v_and_b32 v17, 1, v6', 'v_lshl_add_u32 v17, v17, 2, v4', 'v_mul_u32_u24 v17, 656, v17', f'v_add_u32 v17, {L_RC + 512}, v17')
    A('v_lshrrev_b32 v19, 5, v0', 'v_lshlrev_b32 v18, 2, v19', 'v_xor_b32 v12, v12, v18', 'v_lshlrev_b32 v18, 10, v12', f'v_add_u32 v18, {L_REC}, v18')
    A('v_and_b32 v12, 31, v0', 'v_lshlrev_b32 v12, 4, v12', 'v_lshl_add_u32 v19, v19, 12, v12', f'v_add_u32 v19, {L_REC}, v19')
    A('v_mul_u32_u24 v12, 960, v6', 'v_lshl_add_u32 v12, v4, 3, v12', 's_lshl_b32 s3, s4, 5', f's_add_u32 s3, s3, {L_WO}', 'v_add_u32 v12, s3, v12')
    A('v_mul_u32_u24 v7, 160, v5', 'v_add_u32 v7, v7, v12', 'v_and_b32 v8, 1, v5', 'v_mul_u32_u24 v8, 160, v8', 'v_add_u32 v8, v8, v12', 'v_add_u32 v8, 640, v8')
    A('s_mul_i32 s43, s8, 5', 's_add_u32 s43, s43, s4', 's_lshl_b32 s43, s43, 5', 's_add_u32 s43, s43, s7', 's_lshl_b32 s43, s43, 8', f's_add_u32 s43, s43, {WS_Y}')
    A('s_cmp_eq_u32 s60, 2', 's_cselect_b32 s3, 6, 5', 's_add_u32 s13, s3, 3')
    A('v_lshlrev_b32 v9, s13, v6', 'v_lshlrev_b32 v20, s3, v5', 'v_add_u32 v9, v9, v20', 'v_lshl_add_u32 v9, v4, 3, v9', 'v_add_u32 v9, s62, v9')
    def wofrags():
        for kk in range(8): tr(64 + 4*kk, 'v7', 3840*kk, 3840*kk, 'v8')
    def f1frags():
        for a_ in range(4):
            for ks in range(4):
                o = 8192 * (a_ >> 1) + 2048 * ks + 32 * (a_ & 1)
                tr(64 + 16*a_ + 4*ks, 'v9', o, o + 256)
    def dsum(r, m):
        A(f'ds_read2st64_b32 v[{r}:{r+1}], v14 offset0:{2*m} offset1:{4+2*m}', f'ds_read2st64_b32 v[{r+2}:{r+3}], v14 offset0:{8+2*m} offset1:{12+2*m}', f'ds_read_b32 v{r+4}, v14 offset:{4096+512*m}')
    A('s_waitcnt vmcnt(0)')
    lds_signal(8)
    A('s_cmp_eq_u32 s60, 2', 's_cbranch_scc0 L_preW')
    A(f's_add_u32 s3, s63, {WS_MOD + 3*10240}', f's_add_u32 s13, s63, {WS_MOD + 4*10240}')
    A.label('L_scpoll')
    A('buffer_load_dwordx4 v[36:39], v2, s[44:47], s13 offen sc1', 'buffer_load_dwordx4 v[40:43], v2, s[44:47], s13 offen offset:128 sc1')
    A('buffer_load_dwordx4 v[44:47], v2, s[44:47], s3 offen sc1', 'buffer_load_dwordx4 v[48:51], v2, s[44:47], s3 offen offset:128 sc1')
    A('s_waitcnt vmcnt(0)')
    check_tags(['v38', 'v42', 'v46', 'v50'], 'v52', 'L_scpoll', 8)
    if not lin:
        unpack(20, [36, 37, 40, 41]); unpack(28, [44, 45, 48, 49]); plus1(20); rnd8(20, 36)
    else:
        f1frags()
        unpack(20, [36, 37, 40, 41]); plus1(20)
        A('v_mov_b32 v60, v44', 'v_mov_b32 v61, v45', 'v_mov_b32 v62, v48', 'v_mov_b32 v63, v49')
        rnd8(20, 40)
        for rnd_, cnt in ((0, 20), (1, 24)):
            if rnd_:
                for i in range(4): A(f'v_mov_b32 v{40+i}, v{60+i}')
            ashift(40)
            A('s_waitcnt lgkmcnt(0)')
            dd = [32, 36, 56, 60] if rnd_ else [32, 36, 56, 28]
            for ks in range(4):
                for a_ in range(4): mfma(dd[a_], 40 + 4*ks, 64 + 16*a_ + 4*ks, ks == 0)
            if rnd_: lds_wait(20, 7, 'L_c1')
            A('s_mov_b64 exec, 0xffff')
            for a_ in range(4): A(f'ds_write_b128 v13, v[{dd[a_]}:{dd[a_]+3}] offset:{256*a_}')
            lds_signal(cnt)
            A('s_cmp_lt_u32 s4, 2', f's_cbranch_scc0 L_c2{rnd_}')
            lds_wait(cnt, 5, f'L_c3{rnd_}')
            dsum(44, 0); dsum(50, 1)
            A('s_waitcnt lgkmcnt(0)')
            for r, d in ((44, 28 + rnd_), (50, 30 + rnd_)):
                A(f'v_add_f32 v{r}, v{r}, v{r+1}', f'v_add_f32 v{r+2}, v{r+2}, v{r+3}', f'v_add_f32 v{r}, v{r}, v{r+4}', f'v_add_f32 v{d}, v{r}, v{r+2}')
            lds_signal(cnt)
            A.label(f'L_c2{rnd_}')
    A.label('L_preW')
    lds_wait(8, 5, 'L_wow', slp=4)
    wofrags()
    A('v_mov_b32 v12, 0')
    A('s_cmp_eq_u32 s60, 2', 's_cbranch_scc0 L_preB')
    A('v_lshlrev_b32 v11, 3, v4', 's_lshl_b32 s3, s4, 5', 'v_add_u32 v12, s3, v11')
    A('s_branch L_preD')
    A.label('L_preB')
    A('s_cmp_eq_u32 s60, 3', 's_cbranch_scc0 L_preR')
    A('s_lshl_b32 s13, s61, 8', f's_add_u32 s13, s13, {WS_MOD + 5*10240}', 'v_mov_b32 v12, v3', 'v_lshrrev_b32 v21, 2, v0')
    A('s_branch L_preG0')
    A.label('L_preR')
    A('s_cmp_eq_u32 s59, -1', 's_cbranch_scc1 L_preD')
    A('v_and_b32 v21, 15, v0', 'v_mov_b32 v22, v6')
    vpub('v12', 'v21', 'v22', 'v23')
    srd(48, 16, 5120)
    A('v_mul_u32_u24 v23, 1280, v22', 'v_lshl_add_u32 v23, v21, 1, v23', 's_lshl_b32 s3, s59, 5')
    A('buffer_load_ushort v20, v23, s[48:51], s3 offen')
    A('s_lshl_b32 s13, s59, 8', f's_add_u32 s13, s13, {WS_MOD + 2*10240}')
    A.label('L_preG0')
    A('v_and_b32 v11, -16, v12', 'v_and_b32 v23, 2, v21', 'v_cmp_eq_u32 s[98:99], 0, v23', 'v_and_b32 v22, 1, v21', 'v_lshlrev_b32 v22, 4, v22', 'v_sub_u32 v22, 16, v22')
    A.label('L_preG')
    A('buffer_load_dwordx4 v[24:27], v11, s[44:47], s13 offen sc1')
    A('s_waitcnt vmcnt(0)')
    check_tags(['v26'], None, 'L_preG', 8)
    A('v_cndmask_b32 v24, v25, v24, s[98:99]', 'v_lshlrev_b32 v21, v22, v24', 'v_and_b32 v21, 0xffff0000, v21')
    A('v_lshlrev_b32 v20, 16, v20')
    A.label('L_preD')
    if fast:
        A('s_cmp_eq_u32 s4, 0', 's_cbranch_scc0 L_noxid')
        A('s_getreg_b32 s42, hwreg(HW_REG_XCC_ID)', 's_lshl_b32 s13, s5, 12', f's_add_u32 s13, s13, {WS_XID}', 'v_lshlrev_b32 v38, 7, v0', 's_mov_b32 exec_hi, 0')
        A.label('L_xid')
        A('s_sleep 127', 'buffer_load_dwordx2 v[40:41], v38, s[44:47], s13 offen sc1', 's_waitcnt vmcnt(0)')
        check_tags(['v41'], None, 'L_xid', 0)
        A('v_cmp_ne_u32 vcc, s42, v40', 's_mov_b32 exec_hi, -1', 's_cmp_eq_u64 vcc, 0', 's_cselect_b32 s12, 1, 0')
        A('s_cmp_eq_u32 s95, 0', 's_cselect_b32 s12, 0, s12', 'v_mov_b32 v40, s12', f'ds_write_b32 v10, v40 offset:{L_FAST}')
        A.label('L_noxid')
    A('v_mov_b32 v43, s9')
    A('s_waitcnt vmcnt(0) lgkmcnt(0)')
    stamp(5)
    A('s_setprio 2')
    A('s_barrier')
    stamp(6)
    A('s_cmp_eq_u32 s4, 0', 's_cbranch_scc0 L_O')
    A('ds_read_b32 v36, v18 offset:524', 'ds_read_b32 v37, v18 offset:12')
    for i in range(4): A(f'ds_read_b128 v[{96+8*i}:{99+8*i}], v19 offset:{1024*i}', f'ds_read_b128 v[{100+8*i}:{103+8*i}], v19 offset:{1024*i+512}')
    A('s_waitcnt lgkmcnt(8)')
    A(f'v_max_f32_dpp v38, v36, v36 quad_perm:[1,0,3,2] {DPPF}', f'v_max_f32_dpp v38, v38, v38 quad_perm:[2,3,0,1] {DPPF}', f'v_max_f32_dpp v38, v38, v38 row_half_mirror {DPPF}')
    A('v_sub_f32 v36, v36, v38', 'v_mul_f32 v36, s58, v36', 'v_exp_f32 v36, v36', 'v_mul_f32 v37, v37, v36')
    lch = [f'v_add_f32_dpp v37, v37, v37 quad_perm:[1,0,3,2] {DPPF}', f'v_add_f32_dpp v37, v37, v37 quad_perm:[2,3,0,1] {DPPF}', f'v_add_f32_dpp v37, v37, v37 row_half_mirror {DPPF}', 'v_rcp_f32 v39, v37']
    for i in range(4):
        A(f's_waitcnt lgkmcnt({6 - 2*i})')
        for k in range(3):
            op = 'v_mul_f32_dpp' if i == 0 else 'v_fmac_f32_dpp'
            A(f'{op} v{56+2*k}, v36, v{96+8*i+k} row_newbcast:{i} {DPPF}', f'{op} v{57+2*k}, v36, v{100+8*i+k} row_newbcast:{i} {DPPF}')
        A(lch[i])
    A('v_permlane32_swap_b32 v58, v59', 'v_permlane32_swap_b32 v56, v60', 'v_permlane32_swap_b32 v57, v61')
    A('v_add_f32 v58, v58, v59', 'v_add_f32 v56, v56, v60', 'v_add_f32 v57, v57, v61')
    A('v_mul_f32 v58, v58, v39', 'v_mul_f32 v56, v56, v39', 'v_mul_f32 v57, v57, v39')
    A('v_mov_b32 v59, v58', 'v_cvt_pk_bf16_f32 v40, v56, v57', 'v_cvt_pk_bf16_f32 v42, v56, v57')
    A('v_permlane32_swap_b32 v58, v59', 'v_permlane32_swap_b32 v40, v42')
    A('v_cvt_pk_bf16_f32 v41, v58, v59')
    A('v_cndmask_b32 v40, v40, v38, s[56:57]', 'v_cndmask_b32 v41, v41, v37, s[56:57]')
    A('s_mov_b32 exec_hi, 1')
    if fast:
        A('s_cmp_eq_u32 s12, 1', 's_cbranch_scc0 L_slowrec')
        A('buffer_store_dwordx4 v[40:43], v1, s[44:47], s15 offen')
        A('s_branch L_recdone')
        A.label('L_slowrec')
    A('buffer_store_dwordx4 v[40:43], v1, s[44:47], s15 offen sc1')
    A.label('L_recdone')
    A('s_mov_b32 exec_hi, -1')
    A.label('L_O')
    stamp(7)
    A('s_mov_b64 exec, s[96:97]')
    A.label('L_opoll')
    A('buffer_load_dwordx4 v[44:47], v1, s[44:47], s14 offen sc1')
    A('s_waitcnt vmcnt(0)')
    check_tags(['v47'], None, 'L_opoll', sleep)
    A('v_mov_b32 v47, 0')
    A('ds_write_b128 v15, v[44:47]')
    A('s_mov_b64 exec, -1')
    A('s_waitcnt lgkmcnt(0)')
    A('s_barrier')
    stamp(8)
    A('ds_read_b64 v[36:37], v17')
    for kk in range(8): A(f'ds_read_b128 v[{96+4*kk}:{99+4*kk}], v16 offset:{64*kk}')
    A('v_mov_b32 v51, s9', 's_mov_b32 s16, 0x07060501', 's_mov_b32 s17, 0x07060502', 's_mov_b32 s18, 0x07060503')
    A('s_waitcnt lgkmcnt(8)')
    A(f'v_max_f32_dpp v38, v36, v36 quad_perm:[1,0,3,2] {DPPF}')
    for kk in range(8):
        A(f's_waitcnt lgkmcnt({7-kk})')
        mfma(40, 96 + 4*kk, 64 + 4*kk, kk == 0)
        if kk == 0: A('v_sub_f32 v36, v36, v38', 'v_mul_f32 v36, s58, v36')
        if kk == 1: A('v_exp_f32 v36, v36')
        if kk == 2: A('v_mul_f32 v36, v36, v37')
        if kk == 3: A(f'v_add_f32_dpp v37, v36, v36 quad_perm:[1,0,3,2] {DPPF}')
        if kk == 4: A('v_rcp_f32 v37, v37')
        if kk == 5: A('v_mul_f32 v36, v36, v37')
    A(f'v_mul_f32_dpp v44, v36, v40 quad_perm:[0,0,0,0] {DPPF}', f'v_mul_f32_dpp v45, v36, v42 quad_perm:[2,2,2,2] {DPPF}')
    A(f'v_fmac_f32_dpp v44, v36, v41 quad_perm:[1,1,1,1] {DPPF}', f'v_fmac_f32_dpp v45, v36, v43 quad_perm:[3,3,3,3] {DPPF}')
    A('v_permlane16_swap_b32 v44, v46', 'v_permlane16_swap_b32 v45, v47')
    A('v_perm_b32 v48, v44, v47, s16', 'v_perm_b32 v49, v45, v47, s17', 'v_perm_b32 v50, v46, v47, s18')
    A('s_mov_b64 exec, 0xffff')
    A('buffer_store_dwordx4 v[48:51], v1, s[44:47], s43 offen sc1')
    A('s_mov_b64 exec, -1')
    stamp(9)
    A('s_mul_i32 s14, s5, 10240', f's_add_u32 s14, s14, {WS_X1}')
    A('s_cmp_eq_u32 s60, 3', 's_cbranch_scc1 L_F2')
    A('s_cmp_eq_u32 s60, 2', 's_cbranch_scc0 L_R')
    f1frags()
    A('s_add_u32 s3, s63, s14', 's_mov_b32 s13, 0x3f803f80')
    A.label('L_xpoll')
    A('buffer_load_dwordx4 v[48:51], v2, s[44:47], s3 offen sc1', 'buffer_load_dwordx4 v[52:55], v2, s[44:47], s3 offen offset:128 sc1')
    A('s_waitcnt vmcnt(0)')
    check_tags(['v50', 'v54'], 'v39', 'L_xpoll', xs)
    stamp(10)
    k0 = -2.0 * 1.4426950408889634 * 0.7978845608028654
    if lin:
        unpack(56, [48, 49, 52, 53])
        for i in range(4): pk('mul', 56+2*i, 56+2*i, 20+2*i)
        for i in range(4): A(f'v_cvt_pk_bf16_f32 v{40+i}, v{56+2*i}, v{57+2*i}')
        side = []
        for i, r in enumerate([48, 49, 52, 53]):
            side += [f'v_dot2_f32_bf16 v56, v{r}, s13, {"0" if i == 0 else "v56"}', f'v_dot2_f32_bf16 v57, v{r}, v{r}, {"0" if i == 0 else "v57"}']
        sh = lambda ks: [f'v_mov_b32_dpp v{40+4*ks+i}, v{40+i} row_shl:{4*ks} {DPPF} bound_ctrl:0' for i in range(4)]
        red = [f'v_add_f32_dpp v56, v56, v56 row_ror:4 {DPPF}', f'v_add_f32_dpp v57, v57, v57 row_ror:4 {DPPF}', f'v_add_f32_dpp v56, v56, v56 row_ror:8 {DPPF}', f'v_add_f32_dpp v57, v57, v57 row_ror:8 {DPPF}',
               'v_permlane16_swap_b32 v56, v57', 'v_add_f32 v56, v56, v57', 'v_mov_b32 v58, v56', 'v_permlane32_swap_b32 v56, v58', 'v_add_f32 v56, v56, v58', 'v_mov_b32 v57, v56', 'v_permlane16_swap_b32 v56, v57']
        fill = {0: sh(1)[:2], 1: sh(1)[2:], 2: side[:4], 3: side[4:], 4: sh(2)[:2], 5: sh(2)[2:], 6: red[:2], 7: red[2:4], 8: sh(3)[:2], 9: sh(3)[2:], 10: red[4:6], 11: red[6:7], 12: red[7:9], 13: red[9:10], 14: red[10:]}
        dd = [20, 24, 32, 36]
        A('s_waitcnt lgkmcnt(0)')
        for ks in range(4):
            for a_ in range(4):
                mfma(dd[a_], 40 + 4*ks, 64 + 16*a_ + 4*ks, ks == 0)
                A(*fill.get(4*ks + a_, []))
        A('s_mov_b64 exec, 15', f'ds_write_b64 v12, v[56:57] offset:{L_ST}')
        A('s_lshl_b32 s3, s61, 1', 's_add_u32 s3, s3, s4', 's_lshl_b32 s3, s3, 8', f's_add_u32 s3, s3, {WS_G}')
        A('s_mov_b64 exec, 0xffff')
        for a_ in range(4): A(f'ds_write_b128 v13, v[{dd[a_]}:{dd[a_]+3}] offset:{256*a_}')
        A('s_mov_b64 exec, -1', 'v_mov_b32 v58, s9', 'v_mov_b32 v59, s9')
        A('s_waitcnt lgkmcnt(0)')
        A('s_barrier')
        A('s_cmp_lt_u32 s4, 2', 's_cbranch_scc0 L_tend')
        A(f'ds_read2_b64 v[64:67], v11 offset0:{L_ST//8} offset1:{L_ST//8+4}', f'ds_read2_b64 v[68:71], v11 offset0:{L_ST//8+8} offset1:{L_ST//8+12}', f'ds_read_b64 v[72:73], v11 offset:{L_ST+128}')
        dsum(40, 0); dsum(46, 1)
        A(f'v_mov_b32 v52, {hex(f2u(k0))}', f'v_mov_b32 v74, {hex(f2u(1/640))}')
        A('s_waitcnt lgkmcnt(6)')
        pk('add', 64, 64, 66); pk('add', 68, 68, 70); pk('add', 72, 72, 64); pk('add', 72, 72, 68)
        pk('mul', 72, 72, 74, 'op_sel_hi:[1,0]')
        A('v_fma_f32 v38, -v72, v72, v73', 'v_max_f32 v38, 0, v38', 'v_cvt_pk_bf16_f32 v72, v72, v38')
        A('s_waitcnt lgkmcnt(3)')
        A('v_and_b32 v38, 0xffff0000, v72', 'v_add_f32 v40, v40, v41', f'v_add_f32 v38, {hex(f2u(1e-5))}, v38', 'v_add_f32 v42, v42, v43', 'v_cvt_pk_bf16_f32 v38, v38, v38', 'v_lshlrev_b32 v72, 16, v72', 'v_lshlrev_b32 v38, 16, v38')
        A('v_sqrt_f32 v38, v38', 'v_add_f32 v40, v40, v44', 'v_cvt_pk_bf16_f32 v38, v38, v38', 'v_fma_f32 v42, -v72, v28, v42', 'v_lshlrev_b32 v38, 16, v38', 'v_rcp_f32 v38, v38', 'v_add_f32 v40, v40, v42')
        A('s_waitcnt lgkmcnt(0)')
        A('v_fma_f32 v40, v40, v38, v29', 'v_add_f32 v46, v46, v47', 'v_mul_f32 v41, v40, v40', 'v_add_f32 v48, v48, v49', f'v_fmac_f32 v52, {hex(f2u(k0*0.044715))}, v41', 'v_add_f32 v46, v46, v50', 'v_mul_f32 v52, v52, v40')
        A('v_fma_f32 v48, -v72, v30, v48', 'v_exp_f32 v52, v52', 'v_add_f32 v46, v46, v48', 'v_add_f32 v52, 1.0, v52', 'v_fma_f32 v46, v46, v38, v31', 'v_rcp_f32 v52, v52', 'v_mul_f32 v40, v40, v46', 'v_mul_f32 v40, v40, v52')
    else:
        for i, r in enumerate([48, 49, 52, 53]):
            A(f'v_dot2_f32_bf16 v36, v{r}, s13, {"0" if i == 0 else "v36"}', f'v_dot2_f32_bf16 v37, v{r}, v{r}, {"0" if i == 0 else "v37"}')
        unpack(56, [48, 49])
        allreduce_b('v36', 'v37', 'v38')
        A('s_mov_b64 exec, 15', f'ds_write_b64 v12, v[36:37] offset:{L_ST}', 's_mov_b64 exec, -1')
        unpack(60, [52, 53])
        A('s_lshl_b32 s3, s61, 1', 's_add_u32 s3, s3, s4', 's_lshl_b32 s3, s3, 8', f's_add_u32 s3, s3, {WS_G}', f'v_mov_b32 v38, {hex(f2u(1e-5))}')
        A('s_waitcnt lgkmcnt(0)')
        A('s_barrier')
        A(f'ds_read2_b64 v[40:43], v11 offset0:{L_ST//8} offset1:{L_ST//8+4}', f'ds_read2_b64 v[44:47], v11 offset0:{L_ST//8+8} offset1:{L_ST//8+12}', f'ds_read_b64 v[36:37], v11 offset:{L_ST+128}')
        A('s_waitcnt lgkmcnt(0)')
        pk('add', 40, 40, 42); pk('add', 44, 44, 46); pk('add', 36, 36, 40); pk('add', 36, 36, 44)
        A(f'v_mul_f32 v36, {hex(f2u(1/640))}, v36', f'v_fmac_f32 v38, {hex(f2u(1/640))}, v37', 'v_fma_f32 v38, -v36, v36, v38')
        for i in range(2): pk('add', 56+2*i, 56+2*i, 36, 'op_sel_hi:[1,0] neg_lo:[0,1] neg_hi:[0,1]')
        A(f'v_max_f32 v38, {hex(f2u(1e-5))}, v38', 'v_rsq_f32 v38, v38')
        for i in range(2, 4): pk('add', 56+2*i, 56+2*i, 36, 'op_sel_hi:[1,0] neg_lo:[0,1] neg_hi:[0,1]')
        for i in range(4): pk('mul', 56+2*i, 56+2*i, 20+2*i)
        for i in range(4): A(f'v_pk_fma_f32 v[{56+2*i}:{57+2*i}], v[{56+2*i}:{57+2*i}], v[38:39], v[{28+2*i}:{29+2*i}] op_sel_hi:[1,0,1]')
        for i in range(4): A(f'v_cvt_pk_bf16_f32 v{40+i}, v{56+2*i}, v{57+2*i}')
        A('v_mov_b32 v58, s9', 'v_mov_b32 v59, s9')
        for ks in range(4):
            for a_ in range(4):
                mfma(20 + 4*a_, 40 + 4*ks, 64 + 16*a_ + 4*ks, ks == 0)
                if ks < 3 and a_ < 2:
                    for i in (2*a_, 2*a_+1): A(f'v_mov_b32_dpp v{44+4*ks+i}, v{40+i} row_shl:{4*ks+4} {DPPF} bound_ctrl:0')
        A('s_mov_b64 exec, 0xffff')
        for a_ in range(4): A(f'ds_write_b128 v13, v[{20+4*a_}:{23+4*a_}] offset:{256*a_}')
        A('s_mov_b64 exec, -1')
        A('s_waitcnt lgkmcnt(0)')
        A('s_barrier')
        A('s_cmp_lt_u32 s4, 2', 's_cbranch_scc0 L_tend')
        for m in range(2):
            r = 40 + 6 * m
            A(f'ds_read2st64_b32 v[{r}:{r+1}], v14 offset0:{2*m} offset1:{4+2*m}', f'ds_read2st64_b32 v[{r+2}:{r+3}], v14 offset0:{8+2*m} offset1:{12+2*m}', f'ds_read_b32 v{r+4}, v14 offset:{4096+512*m}')
        k0 = -2.0 * 1.4426950408889634 * 0.7978845608028654
        A(f'v_mov_b32 v52, {hex(f2u(k0))}')
        A('s_waitcnt lgkmcnt(3)')
        A('v_add_f32 v40, v40, v41', 'v_add_f32 v42, v42, v43', 'v_add_f32 v40, v40, v44', 'v_add_f32 v40, v40, v42', 'v_mul_f32 v41, v40, v40')
        A('s_waitcnt lgkmcnt(0)')
        A('v_add_f32 v46, v46, v47', f'v_fmac_f32 v52, {hex(f2u(k0*0.044715))}, v41', 'v_add_f32 v48, v48, v49', 'v_mul_f32 v52, v52, v40', 'v_add_f32 v46, v46, v50')
        A('v_exp_f32 v52, v52', 'v_add_f32 v46, v46, v48', 'v_add_f32 v52, 1.0, v52', 'v_mul_f32 v40, v40, v46', 'v_rcp_f32 v52, v52', 'v_mul_f32 v40, v40, v52')
    pub4('v40', 56, 's3')
    stamp(11)
    A('s_branch L_tend')
    A.label('L_R')
    A('s_cmp_eq_u32 s59, -1', 's_cbranch_scc1 L_tend')
    A('s_lshl_b32 s3, s59, 13', f's_add_u32 s3, s3, {WS_Y}', 's_add_u32 s13, s3, 4096')
    A('s_lshl_b32 s59, s59, 8', 's_add_u32 s14, s14, s59')
    A('v_mov_b32 v42, s9', 'v_mov_b32 v43, s9', 's_mov_b32 s15, 15', 's_mov_b32 s16, 0x0c04000c', 's_mov_b32 s17, 0x04020100')
    if fast: A(f'ds_read_b32 v36, v10 offset:{L_FAST}', 's_waitcnt lgkmcnt(0)', 'v_readfirstlane_b32 s12, v36')
    A.label('L_ypoll')
    for g in range(4):
        A(f's_bitcmp1_b32 s15, {g}', f's_cbranch_scc0 L_yl{g}')
        for i in range(2): A(f'buffer_load_dwordx4 v[{64+8*g+4*i}:{67+8*g+4*i}], v1, s[44:47], {"s3" if g < 2 else "s13"} offen offset:{2048*(g&1)+1024*i} sc1')
        A.label(f'L_yl{g}')
    A('s_waitcnt vmcnt(0)')
    for g in range(4):
        r = 64 + 8 * g
        A(f's_bitcmp1_b32 s15, {g}', f's_cbranch_scc0 L_yc{g}')
        A(f'v_xor_b32 v36, s9, v{r+3}', f'v_perm_b32 v37, v{r+1}, v{r}, s16', f'v_bitop3_b32 v36, v36, v{r+7}, s9 bitop3:0xf6', f'v_perm_b32 v38, v{r+5}, v{r+4}, s16')
        A('v_cmp_ne_u32 vcc, 0, v36', f'v_perm_b32 v{r+3}, v{r+2}, v37, s17', f'v_perm_b32 v{r+7}, v{r+6}, v38, s17')
        A(f's_cbranch_vccnz L_yc{g}')
        pk('add', r, r, r + 4); A(f's_bitset0_b32 s15, {g}'); pk('add', r + 2, r + 2, r + 6)
        A.label(f'L_yc{g}')
    A('s_cmp_eq_u32 s15, 0', 's_cbranch_scc1 L_yok')
    if ysleep: A(f's_sleep {ysleep}')
    A('s_sub_u32 s95, s95, 1', 's_cbranch_scc0 L_ypoll', 's_mov_b32 s95, 0')
    A.label('L_yok')
    stamp(10)
    pk('add', 64, 64, 72); pk('add', 80, 80, 88); pk('add', 66, 66, 74); pk('add', 82, 82, 90); pk('add', 64, 64, 80); pk('add', 66, 66, 82)
    A('v_permlane16_swap_b32 v64, v65', 'v_permlane16_swap_b32 v66, v67', 'v_add_f32 v64, v64, v65', 'v_add_f32 v66, v66, v67')
    A('v_permlane32_swap_b32 v64, v66', 'v_add_f32 v44, v64, v66', 'v_fma_f32 v44, v44, v21, v20')
    A(f'v_mov_b32_dpp v46, v44 quad_perm:[1,1,3,3] {DPPF}', 'v_cvt_pk_bf16_f32 v40, v44, v46', f'v_mov_b32_dpp v41, v40 quad_perm:[2,2,2,2] {DPPF}')
    A('s_mov_b32 exec_lo, 0x11111111', 's_mov_b32 exec_hi, 0x11111111')
    if fast:
        A('s_cmp_eq_u32 s12, 1', 's_cbranch_scc0 L_slowx1')
        A('buffer_store_dwordx4 v[40:43], v12, s[44:47], s14 offen')
        A('s_branch L_x1done')
        A.label('L_slowx1')
    A('buffer_store_dwordx4 v[40:43], v12, s[44:47], s14 offen sc1')
    A.label('L_x1done')
    stamp(11)
    A('s_or_b32 s59, s59, s5', 's_cbranch_scc1 L_tend')
    A('s_mov_b64 exec, 1', 'buffer_store_dword v42, v10, s[44:47], 0 offen sc1')
    A('s_branch L_tend')
    A.label('L_F2')
    A('s_cmp_eq_u32 s4, 4', 's_cbranch_scc1 L_tend')
    for ks in range(12): tr(64 + 4*ks, 'v9', 1024*ks, 1024*ks + 128)
    A('s_lshl_b32 s3, s61, 8', 's_add_u32 s14, s14, s3')
    A.label('L_x2poll')
    A('buffer_load_dwordx4 v[24:27], v11, s[44:47], s14 offen sc1', 's_waitcnt vmcnt(0)')
    check_tags(['v26'], None, 'L_x2poll', 2)
    A('v_cndmask_b32 v24, v25, v24, s[98:99]', 'v_lshlrev_b32 v20, v22, v24', 'v_and_b32 v20, 0xffff0000, v20')
    A('s_mul_i32 s3, s4, 6144', f's_add_u32 s3, s3, {WS_G}', 's_add_u32 s13, s3, 4096', 's_lshl_b32 s42, s61, 5')
    A('v_lshrrev_b32 v23, 2, v0', 'v_lshlrev_b32 v23, 1, v23', 'v_mul_u32_u24 v24, 1280, v4', 'v_add_u32 v23, v23, v24')
    A.label('L_gpoll')
    for i in range(6):
        A(f'buffer_load_dwordx4 v[{36+4*i}:{39+4*i}], v2, s[44:47], {"s3" if i < 4 else "s13"} offen offset:{2048*((i//2)%2)+128*(i%2)} sc1')
    A('s_waitcnt vmcnt(0)')
    check_tags([f'v{38+4*i}' for i in range(6)], 'v60', 'L_gpoll', 0)
    stamp(10)
    for n in range(12):
        blk, ks = divmod(n, 4)
        for i in range(4):
            sr = 36 + 8 * blk + (i & 1) + 4 * (i >> 1)
            if ks == 0: A(f'v_mov_b32 v{112+i}, v{sr}')
            else: A(f'v_mov_b32_dpp v{112+4*ks+i}, v{sr} row_shl:{4*ks} {DPPF} bound_ctrl:0')
        if n: mfma(60, 112 + 4*((n-1) % 4), 64 + 4*(n-1), n == 1)
    mfma(60, 124, 108, False)
    A('s_mov_b64 exec, 0xffff')
    A('ds_write_b128 v13, v[60:63]')
    A('s_mov_b64 exec, -1')
    A('s_waitcnt lgkmcnt(0)')
    A('s_barrier')
    A('s_cmp_eq_u32 s4, 0', 's_cbranch_scc0 L_tend')
    A('ds_read2st64_b32 v[40:41], v14 offset0:0 offset1:4', 'ds_read2st64_b32 v[42:43], v14 offset0:8 offset1:12')
    A('s_waitcnt lgkmcnt(0)')
    pk('add', 40, 40, 42)
    A('v_add_f32 v40, v40, v41', 'v_fma_f32 v40, v40, v21, v20', 'v_cvt_pk_bf16_f32 v40, v40, v40')
    A(f'buffer_store_short v40, v23, s[52:55], s42 offen {OP}')
    stamp(11)
    A.label('L_tend')
    if stamps: A('s_memtime s[90:91]', 's_memrealtime s[92:93]')
    stamp_flush(15)
    A.label('L_end')
    A('s_endpgm')

    body = A.fix()
    hdr = open('adaLN_cond__gqa_block_cached__geglu_ffn__decode.s.ref').read().split('\n')
    hdr = [l for l in hdr if l.startswith(';') and '@launch' not in l and 'Override' not in l and 'grid=ceil' not in l]
    notes = '''One persistent launch, one workgroup per CU: workgroup = (head, batch, half of the keys).
Waves 5..12 stream K/V (16 keys per step, online softmax).  Waves 0..4 run the small matmuls:
  start : silu(c) @ w_mod strips -> layernorm / modulate -> q strips; weights of the later stages go to LDS
  end   : merge of the splits, o @ wo, sum over heads + residual, layernorm, gate / up, gelu, down, residual
Workgroups hand data over through d_ws in 8 / 16 byte granules that carry a per-launch tag
(derived from an epoch word in d_ws that the launch advances); consumers poll the tags.
Write-through stores are used unless a run-time check shows producer and consumers on one XCD.'''
    hdr += ['; ' + l for l in notes.split('\n')]
    out = hdr + [f'; @launch grid=(256,1,1) block=(832,1,1) lds={LDS_SIZE}',
                 '.amdgcn_target "amdgcn-amd-amdhsa--gfx950"', '.text', f'.globl {KNAME}', '.p2align 8', f'.type {KNAME},@function', f'{KNAME}:']
    out += [('' if l.endswith(':') else '    ') + l for l in body]
    out += ['.section .rodata,"a"', '.p2align 6', f'.amdhsa_kernel {KNAME}',
            '  .amdhsa_next_free_vgpr 128', '  .amdhsa_next_free_sgpr 100', '  .amdhsa_accum_offset 128',
            '  .amdhsa_float_denorm_mode_32 3',
            '  .amdhsa_group_segment_fixed_size 0', '  .amdhsa_kernarg_size 112', '  .amdhsa_user_sgpr_count 2',
            '  .amdhsa_user_sgpr_kernarg_segment_ptr 1', '  .amdhsa_system_sgpr_workgroup_id_x 1', '.end_amdhsa_kernel']
    return '\n'.join(out) + '\n'

if __name__ == '__main__':
    kw = eval('dict(' + (sys.argv[2] if len(sys.argv) > 2 else '') + ')')
    open(sys.argv[1], 'w').write(gen(**kw))
```

```python
import struct, sys
from asmgen import Asm
KNAME = 'adaLN_cond__gqa_block_cached__geglu_ffn__decode_kernel'
def f2u(x): return struct.unpack('<I', struct.pack('<f', x))[0]
LOG2E = f2u(1.4426950408889634)
SCALE = f2u(192 ** -0.5)
DPPF = 'row_mask:0xf bank_mask:0xf'

WS_EP = 0
WS_XID = 0x110000
WS_X1 = 0xfa000
WS_G = 0x5000
WS_MOD = 0xb000
WS_Q = 0x1a000
WS_REC = 0x32000
WS_Y = 0x5a000
WS_STAMP = 0x180000
WS_SIZE = 0x200000
L_CNT = 0
L_FAST = 16
L_ST = 128
L_D = 512
L_RC = 5632
L_REC = 10880
L_WO = 19072
L_Q = 49792
L_W = 50176
L_SC = L_W + 81920
LDS_SIZE = L_SC + 9216
assert L_W % 128 == 0

def ngroups(D):
    out = []
    for i in range(256):
        x = i & 7; k = i >> 3; p = k >> 1
        d = 0 if p >= 11 else D[3] if p >= 9 else D[2] if x + 8 * p >= 60 else D[0] if p < 5 else D[1]
        out.append(128 + d if k & 1 else 128 - d)
    return out

def rwaves():
    ty, _ = roles(); out = []
    for i in range(256):
        k = i >> 3; p = k >> 1
        if ty[i] in (2, 3): continue
        r = (p - 9 if p < 11 else k - 20) if ty[i] == 0 else 12 + p
        if r < 20: out.append(i)
    return out

def roles():
    ty, crit = [], []
    for i in range(256):
        x = i & 7; k = i >> 3; p = k >> 1; sp = k & 1; m = x + 8 * p
        if p >= 11: t = 0
        elif sp == 0: t = 3 if p < 5 else 2
        elif p >= 9: t = 0
        else: t = 1 if m < 60 else 4
        ty.append(t); crit.append(t == 1 and m < 20)
    return ty, crit

def gen(H0=16, QP=3, D=(4, 5, 8, 3), fast=1, sleep=1, qsleep=4, xs=0, stamps=False, POL='', KP='nt', VP='nt', WP='', st0=0, OP='', ysleep=1, lin=1, pat=0, rot=3, hm=0, rw=0, rs=0, sp=0, sep=1, xr=0, xg=2, qg=0, hg=0):
    KP = POL if KP is None else KP; VP = POL if VP is None else VP
    A = Asm()
    def stamp(i):
        if stamps: A(f's_memrealtime s[{64+2*i}:{65+2*i}]')
    def stamp_flush(n):
        if not stamps: return
        A('s_waitcnt lgkmcnt(0)')
        A('s_lshl_b32 s60, s2, 4', 's_add_u32 s60, s60, s4', 's_lshl_b32 s60, s60, 6', f's_add_u32 s60, s60, {WS_STAMP}')
        A('v_mov_b32 v126, 0', 's_mov_b64 exec, 1')
        for i in range(n):
            A(f'v_mov_b32 v127, s{64+2*i}', f'buffer_store_dword v127, v126, s[44:47], s60 offen offset:{4*i}')
        A('s_waitcnt vmcnt(0)')
    def rnd(dst, src, tmp=None):
        t = tmp or dst
        A(f'v_cvt_pk_bf16_f32 {t}, {src}, {src}', f'v_lshlrev_b32 {dst}, 16, {t}')
    def srd(base, ptr, size, off=None):
        if off is None:
            A(f's_mov_b32 s{base}, s{ptr}', f's_mov_b32 s{base+1}, s{ptr+1}')
        else:
            A(f's_add_u32 s{base}, s{ptr}, {off}', f's_addc_u32 s{base+1}, s{ptr+1}, 0')
        A(f's_mov_b32 s{base+2}, {size}', f's_mov_b32 s{base+3}, 0x20000')
    def tagcalc():
        A('s_mul_i32 s9, s9, 0x9e3779b1', 's_add_u32 s9, s9, 0x7f4a7c15')
    def xidpub(name):
        if not fast: return
        A('s_cmp_eq_u32 s4, 0', f's_cbranch_scc0 {name}')
        A('s_getreg_b32 s3, hwreg(HW_REG_XCC_ID)', 'v_mov_b32 v24, s3', 'v_mov_b32 v25, s9', 's_lshl_b32 s3, s5, 5', 's_add_u32 s3, s3, s6', 's_lshl_b32 s3, s3, 7', f's_add_u32 s3, s3, {WS_XID}')
        A('s_mov_b64 exec, 1', 'buffer_store_dwordx2 v[24:25], v10, s[44:47], s3 offen sc1', 's_mov_b64 exec, -1')
        A.label(name)
    def check_tags(regs, acc, retry, slp):
        done = retry + '_ok'
        if len(regs) == 1:
            A(f'v_cmp_ne_u32 vcc, s9, {regs[0]}')
        else:
            A(f'v_xor_b32 {acc}, s9, {regs[0]}')
            for r in regs[1:]:
                A(f'v_bitop3_b32 {acc}, {acc}, {r}, s9 bitop3:0xf6')
            A(f'v_cmp_ne_u32 vcc, 0, {acc}')
        A(f's_cbranch_vccz {done}')
        if slp: A(f's_sleep {slp}')
        A('s_sub_u32 s95, s95, 1', f's_cbranch_scc0 {retry}', 's_mov_b32 s95, 0')
        A.label(done)
    def lds_signal(cnt):
        A('s_mov_b64 exec, 1', f'ds_add_u32 v10, v11 offset:{cnt}', 's_mov_b64 exec, -1')
    def lds_wait(cnt, target, name, vtmp='v12', vaddr='v10', stmp='s3', slp=0):
        A.label(name)
        A(f'ds_read_b32 {vtmp}, {vaddr} offset:{cnt}', 's_waitcnt lgkmcnt(0)', f'v_readfirstlane_b32 {stmp}, {vtmp}', f's_cmp_ge_u32 {stmp}, {target}', f's_cbranch_scc1 {name}_x')
        if slp: A(f's_sleep {slp}')
        A('s_sub_u32 s95, s95, 1', f's_cbranch_scc0 {name}', 's_mov_b32 s95, 0')
        A.label(name + '_x')
    def dma_loop(n, voff, step, name, extra=(), pol=None):
        pol = WP if pol is None else pol
        A(f's_mov_b32 s3, {n}')
        A.label(name)
        A(f'buffer_load_dwordx4 {voff}, s[48:51], s13 offen {pol} lds')
        A(*extra)
        A('s_add_u32 m0, m0, 1024')
        if step: A(f's_add_u32 s13, s13, {step}')
        A('s_sub_u32 s3, s3, 1', 's_cmp_lg_u32 s3, 0', f's_cbranch_scc1 {name}')
    def allreduce_b(s1, s2, t):
        for r in (4, 8):
            A(f'v_add_f32_dpp {s1}, {s1}, {s1} row_ror:{r} {DPPF}', f'v_add_f32_dpp {s2}, {s2}, {s2} row_ror:{r} {DPPF}')
        A(f'v_permlane16_swap_b32 {s1}, {s2}', f'v_add_f32 {s1}, {s1}, {s2}')
        A(f'v_mov_b32 {t}, {s1}', f'v_permlane32_swap_b32 {s1}, {t}', f'v_add_f32 {s1}, {s1}, {t}')
        A(f'v_mov_b32 {s2}, {s1}', f'v_permlane16_swap_b32 {s1}, {s2}')
    def rnd8(e, t):
        for i in range(4): A(f'v_cvt_pk_bf16_f32 v{t+i}, v{e+2*i}, v{e+2*i+1}')
        for i in range(4): A(f'v_lshlrev_b32 v{e+2*i}, 16, v{t+i}', f'v_and_b32 v{e+2*i+1}, 0xffff0000, v{t+i}')
    def unpack(dst, srcs):
        for i, s_ in enumerate(srcs): A(f'v_lshlrev_b32 v{dst+2*i}, 16, v{s_}', f'v_and_b32 v{dst+2*i+1}, 0xffff0000, v{s_}')
    def pk(op, d, a, b, mod=''):
        A(f'v_pk_{op}_f32 v[{d}:{d+1}], v[{a}:{a+1}], v[{b}:{b+1}] {mod}')
    def plus1(e):
        for i in range(4): A(f'v_pk_add_f32 v[{e+2*i}:{e+1+2*i}], v[{e+2*i}:{e+1+2*i}], 1.0 op_sel_hi:[1,0]')
    def ashift(a0):
        for ks in range(1, 4):
            for i in range(4): A(f'v_mov_b32_dpp v{a0+4*ks+i}, v{a0+i} row_shl:{4*ks} {DPPF} bound_ctrl:0')
    def vpub(dst, c, b, tmp):
        A(f'v_bfe_u32 {tmp}, {c}, 2, 1', f'v_lshlrev_b32 {dst}, 7, {tmp}', f'v_lshrrev_b32 {tmp}, 3, {c}', f'v_lshl_add_u32 {dst}, {tmp}, 6, {dst}',
          f'v_bfe_u32 {tmp}, {c}, 1, 1', f'v_lshl_add_u32 {dst}, {tmp}, 2, {dst}', f'v_lshl_add_u32 {dst}, {b}, 4, {dst}')
    def pub4(val, g, soff):
        A(f'v_mov_b32_dpp v{g+1}, {val} row_shl:4 {DPPF} bound_ctrl:0', f'v_cvt_pk_bf16_f32 v{g}, {val}, v{g+1}', f'v_mov_b32_dpp v{g+1}, v{g} row_shl:8 {DPPF} bound_ctrl:0')
        A('s_mov_b32 exec_lo, 0x000f000f', 's_mov_b32 exec_hi, 0x000f000f')
        A(f'buffer_store_dwordx4 v[{g}:{g+3}], v3, s[44:47], {soff} offen sc1')
    def mfma(d, a, b, first):
        A(f'v_mfma_f32_16x16x32_bf16 v[{d}:{d+3}], v[{a}:{a+3}], v[{b}:{b+3}], {"0" if first else f"v[{d}:{d+3}]"}')
    def tr(r, addr, o0, o1, addr1=None):
        A(f'ds_read_b64_tr_b16 v[{r}:{r+1}], {addr} offset:{o0}', f'ds_read_b64_tr_b16 v[{r+2}:{r+3}], {addr1 or addr} offset:{o1}')

    A('s_cmp_ge_u32 s2, 256', 's_cbranch_scc1 L_end')
    stamp(0)
    if stamps: A('s_memtime s[88:89]')
    A('s_load_dwordx16 s[16:31], s[0:1], 0', 's_load_dwordx8 s[32:39], s[0:1], 64', 's_load_dwordx2 s[40:41], s[0:1], 104')
    A('v_lshrrev_b32 v1, 6, v0', 'v_and_b32 v0, 63, v0', 'v_readfirstlane_b32 s4, v1            ; wave')
    A('s_and_b32 s5, s2, 7', 's_lshr_b32 s6, s2, 3', *(['s_and_b32 s3, s6, 24', 's_add_u32 s7, s5, s3                 ; head'] if hm else ['s_lshr_b32 s3, s6, 3', 's_lshl_b32 s7, s5, 2', 's_add_u32 s7, s7, s3                 ; head']), 's_and_b32 s8, s6, 7')
    A('s_mov_b32 s95, 0x80000')
    A('s_lshr_b32 s3, s6, 1', 's_and_b32 s13, s6, 1')
    A('s_mov_b32 s60, 0', 's_sub_u32 s61, s6, 20', 's_mov_b32 s63, 0')
    A('s_cmp_ge_u32 s3, 11', 's_cbranch_scc1 L_roled')
    A('s_lshl_b32 s14, s3, 3', 's_add_u32 s14, s14, s5')
    A('s_cmp_lt_u32 s3, 5', f's_cselect_b32 s63, {D[0]}, {D[1]}', 's_cmp_ge_u32 s14, 60', f's_cselect_b32 s63, {D[2]}, s63', 's_cmp_ge_u32 s3, 9', f's_cselect_b32 s63, {D[3]}, s63')
    A('s_cmp_eq_u32 s13, 0', 's_cbranch_scc1 L_role0')
    A('s_sub_u32 s61, s3, 9', 's_cmp_ge_u32 s3, 9', 's_cbranch_scc1 L_roled')
    A('s_mov_b32 s61, s14', 's_cmp_lt_u32 s14, 60', 's_cselect_b32 s60, 1, 4', 's_branch L_roled')
    A.label('L_role0')
    A('s_cmp_lt_u32 s3, 5', 's_cselect_b32 s60, 3, 2', 's_cselect_b32 s14, 5, 6', 's_cselect_b32 s15, 0, 5', 's_mul_i32 s61, s5, s14', 's_add_u32 s61, s61, s3', 's_sub_u32 s61, s61, s15')
    A.label('L_roled')
    A('s_cmp_lt_u32 s4, 5', 's_cbranch_scc1 L_service')

    q = ['v4', 'v5', 'v6']
    acc = [f'v{8+i}' for i in range(6)]
    vM, vL = 'v14', 'v15'
    def ld(kind, j):
        r, s = (32 + 4 * j, 48) if kind == 'K' else (64 + 4 * j, 48 if sep else 52)
        vo, off = ('v1', j * 768) if j < 5 else ('v2', (j - 5) * 768)
        A(f'buffer_load_dwordx3 v[{r}:{r+2}], {vo}, s[{s}:{s+3}], s10 offen offset:{off} {KP if kind == "K" else VP}')
    def goff(t):
        if pat == 1: A(f's_lshl_b32 s10, {t}, 1', 's_add_u32 s10, s10, s86')
        else: A(f's_and_b32 s10, {t}, -8', f's_add_u32 s10, s10, {t}', 's_add_u32 s10, s10, s86')
        if rot: A('s_add_u32 s10, s10, s42', 's_sub_u32 s3, s10, 224', 's_cmp_ge_u32 s10, 224', 's_cselect_b32 s10, s3, s10')
        A(f's_mul_i32 s3, {t}, s94', 's_add_u32 s3, s3, s87', f's_cmp_lt_u32 {t}, 112', 's_cselect_b32 s10, s10, s3', *(['s_xor_b32 s10, s10, s62'] if xr else []), 's_mul_i32 s10, s10, 6144')
    A('v_mul_u32_u24 v1, 12, v0', 'v_add_u32 v2, 3840, v1')
    A('s_lshr_b32 s3, s8, 1', 's_lshl_b32 s3, s3, 5', 's_add_u32 s3, s3, s7', 's_mul_i32 s12, s3, 1572864')
    if xr == 1: A('s_and_b32 s62, s3, 1', 's_lshl_b32 s62, s62, 7')
    if xr == 2: A('s_and_b32 s62, s3, 3', 's_lshl_b32 s62, s62, 6')
    if xr == 3: A('s_lshr_b32 s62, s3, 5', 's_xor_b32 s62, s62, s3', 's_and_b32 s62, s62, 1', 's_lshl_b32 s62, s62, 7')
    if xr == 4: A('s_lshr_b32 s62, s3, 1', 's_and_b32 s62, s62, 1', 's_lshl_b32 s62, s62, 7')
    if isinstance(xr, tuple):
        A('s_mov_b32 s62, 0')
        for mk, sh in zip(xr, (7, 6, 5, 4)):
            if mk: A(f's_and_b32 s86, s3, {mk}', 's_bcnt1_i32_b32 s86, s86', 's_and_b32 s86, s86, 1', f's_lshl_b32 s86, s86, {sh}', 's_or_b32 s62, s62, s86')
    if rot: A(f's_mul_i32 s42, s3, {rot}', *([f's_mul_i32 s86, s4, {rw}', 's_add_u32 s42, s42, s86'] if rw else []), *([f's_mul_i32 s86, s13, {rs}', 's_add_u32 s42, s42, s86'] if rs else []), 's_mul_hi_u32 s86, s42, 306783379', 's_mul_i32 s86, s86, 14', 's_sub_u32 s42, s42, s86', 's_lshl_b32 s42, s42, 4')
    A('s_mov_b32 s86, s13' if pat == 1 else 's_lshl_b32 s86, s13, 3', 's_mul_i32 s87, s13, 255', 's_add_u32 s87, s87, 112', 's_cmp_eq_u32 s13, 0', 's_cselect_b32 s94, 1, -1')
    A('s_mul_i32 s63, s63, s94', 's_sub_u32 s63, 128, s63')
    A('s_sub_u32 s11, s4, 5')
    goff('s11')
    A('s_cmp_lt_u32 s61, 20', 's_cselect_b32 s15, 2, 0', 's_cmp_eq_u32 s60, 1', 's_cselect_b32 s15, s15, 0', 's_cmp_eq_u32 s60, 0', 's_cselect_b32 s15, 1, s15')
    A('v_mov_b32 v29, 0', 'v_mov_b32 v30, 1')
    A('s_waitcnt lgkmcnt(0)')
    if st0: stamp(3)
    srd(48, 18, 1572864, 's12'); srd(52, 20, 1572864, 's12')
    A('s_load_dword s9, s[40:41], 0')
    A('s_cmp_eq_u32 s15, 0', 's_cbranch_scc1 L_hold2_x')
    A('s_barrier')
    A('s_cmp_eq_u32 s15, 2', 's_cbranch_scc0 L_hold2_x')
    lds_wait(4, 4, 'L_hold2', 'v16', 'v29', 's14', 2)
    order = [('K', j) for j in range(8)] + [('V', j) for j in range(8)]
    for n, o in enumerate(order):
        if n == H0:
            A('s_cmp_eq_u32 s15, 1', 's_cbranch_scc0 L_hold1_x')
            lds_wait(4, 4, 'L_hold1', 'v16', 'v29', 's14', 2)
        if QP and QP <= n < H0:
            A('s_cmp_eq_u32 s15, 1', f's_cbranch_scc0 L_qp{n}', f's_waitcnt vmcnt({QP - 1})')
            A('ds_read_b32 v16, v29 offset:4', 's_waitcnt lgkmcnt(0)', 'v_readfirstlane_b32 s14, v16', 's_cmp_ge_u32 s14, 4', 's_cselect_b32 s15, 3, 1')
            A.label(f'L_qp{n}')
        if sep and n == 8:
            A('s_add_u32 s13, s11, 8'); goff('s13')
        ld(*o)
        if st0 and n == 0: A('s_waitcnt vmcnt(0)'); stamp(4)
    A('s_cmp_eq_u32 s15, 0', 's_cbranch_scc0 L_nobar')
    A('s_barrier')
    A.label('L_nobar')
    if stamps: srd(44, 40, WS_SIZE)
    A('s_mul_i32 s14, s7, 3072', 's_lshr_b32 s3, s8, 1', 's_lshl_b32 s3, s3, 6', 's_add_u32 s14, s14, s3', f's_add_u32 s14, s14, {WS_Q}')
    A('s_lshl_b32 s3, s11, 9', 's_add_u32 s14, s14, s3', 's_add_u32 s84, s40, s14', 's_addc_u32 s85, s41, 0')
    A('v_and_b32 v3, 31, v0', 'v_mul_u32_u24 v3, 12, v3', 's_lshl_b32 s3, s11, 6', 'v_lshlrev_b32 v31, 2, v0', 'v_add_u32 v31, s3, v31')
    A('s_lshl_b32 s3, s11, 10', f's_add_u32 s3, s3, {L_REC}', 'v_lshlrev_b32 v7, 4, v0', 'v_add_u32 v7, s3, v7')
    A('s_mov_b32 s56, 0xcccccccc', 's_mov_b32 s57, 0xcccccccc', f's_mov_b32 s58, {hex(LOG2E)}', f's_mov_b32 s59, {hex(SCALE)}', 's_mov_b32 s43, 1572864')
    for a in acc: A(f'v_mov_b32 {a}, 0')
    A(f'v_mov_b32 {vM}, 0xff7fffff', f'v_mov_b32 {vL}, 0')
    A('s_waitcnt lgkmcnt(0)')
    tagcalc()
    stamp(1)
    A('s_cmp_lt_u32 s11, 6', 's_cbranch_scc0 L_qw')
    if qg:
        A('s_cmp_eq_u32 s11, 0', 's_cbranch_scc1 L_qpoll')
        lds_wait(12, 1, 'L_qg', 'v16', 'v29', 's14', 1)
    A('s_branch L_qpoll')
    A.label('L_qretry')
    A(f's_sleep {qsleep}', 's_sub_u32 s95, s95, 1', 's_cbranch_scc0 L_qpoll', 's_mov_b32 s95, 0', 's_branch L_qgot')
    A.label('L_qpoll')
    A('s_load_dwordx16 s[16:31], s[84:85], 0 glc', 's_load_dwordx8 s[32:39], s[84:85], 256 glc', 's_load_dwordx8 s[76:83], s[84:85], 288 glc', 's_waitcnt lgkmcnt(0)')
    sq = list(range(16, 40, 2)) + list(range(76, 84, 2))
    for r in sq: A(f's_cmp_eq_u32 s{r+1}, s9', 's_cbranch_scc0 L_qretry')
    A.label('L_qgot')
    for i, r in enumerate(sq): A(f'v_writelane_b32 v16, s{r}, {i}')
    A('s_mov_b64 exec, 0xffff', f'ds_write_b32 v31, v16 offset:{L_Q}', 's_mov_b64 exec, 1', 'ds_add_u32 v29, v30 offset:12', 's_mov_b64 exec, -1')
    lds_wait(12, 6, 'L_qw', 'v16', 'v29', 's14', 1)
    stamp(2)
    for i in range(3): A(f'ds_read_b32 {q[i]}, v3 offset:{L_Q + 4*i}')
    A('s_waitcnt lgkmcnt(0)')
    if sep:
        A('s_mov_b32 s12, s11', 's_sub_u32 s15, s63, s11', 's_add_u32 s15, s15, 7', 's_lshr_b32 s15, s15, 3', 's_mov_b32 s13, s15', 's_add_u32 s11, s11, 8')
        A('v_lshrrev_b32 v28, 5, v0', 'v_lshlrev_b32 v28, 3, v28', 'v_bfe_u32 v29, v0, 1, 3', 'v_add_u32 v28, v28, v29', 'v_lshlrev_b32 v28, 2, v28')
        A('s_mul_i32 s3, s12, 1152', f's_add_u32 s3, s3, {L_SC}', 'v_add_u32 v28, s3, v28', 'v_mov_b32 v29, v28')
        def nxt(tag):
            A('s_add_u32 s11, s11, 8', 's_cmp_ge_u32 s11, s63', f's_cbranch_scc0 L_nx{tag}', 's_mov_b32 s11, s12', 's_mov_b32 s48, s52', 's_mov_b32 s49, s53', 's_mov_b32 s50, s54', 's_mov_b32 s54, 0')
            A.label(f'L_nx{tag}')
            goff('s11')
        def kstep(e):
            B = 32 + 32 * e; kd = 'KV'[e]
            T = lambda j: f'v{B+3+4*j}'
            nxt(f'k{e}')
            for j in range(8):
                A('s_waitcnt vmcnt(15)')
                for i in range(3): A(f'v_dot2_f32_bf16 {T(j)}, v{B+4*j+i}, {q[i]}, {T(j) if i else "0"}')
                ld(kd, j)
            for i in range(4): A(f'v_add_f32_dpp v{16+i}, {T(i)}, {T(i)} row_ror:8 row_mask:0xf bank_mask:0x3')
            for i in range(4): A(f'v_add_f32_dpp v{16+i}, {T(i+4)}, {T(i+4)} row_ror:8 row_mask:0xf bank_mask:0xc')
            for i in range(2): A(f'v_add_f32_dpp v{20+i}, v{16+i}, v{16+i} row_half_mirror row_mask:0xf bank_mask:0x5')
            for i in range(2): A(f'v_add_f32_dpp v{20+i}, v{18+i}, v{18+i} row_half_mirror row_mask:0xf bank_mask:0xa')
            A(f'v_add_f32_dpp v22, v20, v20 quad_perm:[2,3,0,1] {DPPF}', f'v_add_f32_dpp v23, v21, v21 quad_perm:[2,3,0,1] {DPPF}')
            A('v_cndmask_b32 v22, v22, v23, s[56:57]')
            A(f'v_add_f32_dpp v22, v22, v22 quad_perm:[1,0,3,2] {DPPF}')
            A('v_mov_b32 v23, v22', 'v_permlane16_swap_b32 v22, v23', 'v_add_f32 v22, v22, v23')
            rnd('v22', 'v22'); A('v_mul_f32 v22, s59, v22'); rnd('v22', 'v22')
            A('ds_write_b32 v28, v22', f'v_max_f32 {vM}, {vM}, v22', 'v_add_u32 v28, 64, v28', 's_sub_u32 s13, s13, 1', 's_cmp_eq_u32 s13, 0')
        def vstep(e):
            B = 32 + 32 * e; kd = 'KV'[e]
            A('ds_read_b32 v22, v29', 'v_add_u32 v29, 64, v29')
            nxt(f'v{e}')
            A('s_waitcnt lgkmcnt(0)', f'v_sub_f32 v22, v22, {vM}', 'v_mul_f32 v22, s58, v22', 'v_exp_f32 v22, v22')
            A('v_cvt_pk_bf16_f32 v26, v22, 0', 'v_cvt_pk_bf16_f32 v27, 0, v22')
            A(f'v_add_f32_dpp v22, v22, v22 quad_perm:[2,3,0,1] {DPPF}', f'v_add_f32_dpp v22, v22, v22 row_half_mirror {DPPF}', f'v_add_f32_dpp v22, v22, v22 row_ror:8 {DPPF}', f'v_add_f32 {vL}, {vL}, v22')
            for j in range(8):
                A('s_waitcnt vmcnt(15)')
                for i in range(3):
                    A(f'v_dot2c_f32_bf16_dpp {acc[2*i]}, v26, v{B+4*j+i} row_newbcast:{2*j} {DPPF}')
                    A(f'v_dot2c_f32_bf16_dpp {acc[2*i+1]}, v27, v{B+4*j+i} row_newbcast:{2*j} {DPPF}')
                ld(kd, j)
            A('s_sub_u32 s13, s13, 1', 's_cmp_eq_u32 s13, 0')
        def turn():
            A(f'v_max_f32_dpp {vM}, {vM}, {vM} quad_perm:[2,3,0,1] {DPPF}', f'v_max_f32_dpp {vM}, {vM}, {vM} row_half_mirror {DPPF}', f'v_max_f32_dpp {vM}, {vM}, {vM} row_ror:8 {DPPF}')
            A(f'v_mov_b32 v25, {vM}', f'v_permlane32_swap_b32 {vM}, v25', f'v_max_f32 {vM}, {vM}, v25', f'v_mul_f32 v31, 0.5, {vM}', 's_mov_b32 s13, s15')
            if xg: A('v_mov_b32 v25, 28', 's_mov_b64 exec, 1', 'ds_add_u32 v25, v30', 's_mov_b64 exec, -1')
        A.label('L_kA')
        kstep(0)
        A('s_cbranch_scc1 L_toB')
        kstep(1)
        A('s_cbranch_scc0 L_kA')
        turn()
        A.label('L_vA')
        vstep(0)
        A('s_cbranch_scc1 L_done')
        A.label('L_vB')
        vstep(1)
        A('s_cbranch_scc0 L_vA')
        A.label('L_done')
    else:
        if sp == 1: A('s_cmp_ge_u32 s11, 4', 's_cbranch_scc0 L_sp', 's_setprio 1', 'L_sp:')
        if sp == 3:
            for p_ in (1, 2, 3): A(f's_cmp_ge_u32 s11, {2*p_}', f's_cbranch_scc0 L_sp{p_}', f's_setprio {p_}', f'L_sp{p_}:')
        if sp == 5:
            A('s_setprio 3')
            for p_ in (1, 2, 3): A(f's_cmp_ge_u32 s11, {2*p_}', f's_cbranch_scc0 L_sp{p_}', f's_setprio {3-p_}', f'L_sp{p_}:')
        if sp == 6:
            A('s_and_b32 s3, s11, 3')
            for p_ in (1, 2, 3): A(f's_cmp_ge_u32 s3, {p_}', f's_cbranch_scc0 L_sp{p_}', f's_setprio {p_}', f'L_sp{p_}:')
        A.label('L_loop')
        if sp == 4:
            A('s_lshr_b32 s3, s11, 2', 's_lshr_b32 s10, s11, 3', 's_xor_b32 s3, s3, s10', 's_bitcmp1_b32 s3, 0', 's_cbranch_scc0 L_spa', 's_setprio 1', 's_branch L_spb', 'L_spa:', 's_setprio 0', 'L_spb:')
        A('s_add_u32 s11, s11, 8')
        goff('s11')
        A('s_cmp_ge_u32 s11, s63', 's_cselect_b32 s50, 0, s43', 's_cselect_b32 s54, 0, s43')
        T = lambda j: f'v{35+4*j}'
        for j in range(8):
            A('s_waitcnt vmcnt(15)')
            for i in range(3): A(f'v_dot2_f32_bf16 {T(j)}, v{32+4*j+i}, {q[i]}, {T(j) if i else "0"}')
            ld('K', j)
        for i in range(4): A(f'v_add_f32_dpp v{16+i}, {T(i)}, {T(i)} row_ror:8 row_mask:0xf bank_mask:0x3')
        for i in range(4): A(f'v_add_f32_dpp v{16+i}, {T(i+4)}, {T(i+4)} row_ror:8 row_mask:0xf bank_mask:0xc')
        for i in range(2): A(f'v_add_f32_dpp v{20+i}, v{16+i}, v{16+i} row_half_mirror row_mask:0xf bank_mask:0x5')
        for i in range(2): A(f'v_add_f32_dpp v{20+i}, v{18+i}, v{18+i} row_half_mirror row_mask:0xf bank_mask:0xa')
        A(f'v_add_f32_dpp v22, v20, v20 quad_perm:[2,3,0,1] {DPPF}', f'v_add_f32_dpp v23, v21, v21 quad_perm:[2,3,0,1] {DPPF}')
        A('v_cndmask_b32 v22, v22, v23, s[56:57]')
        A(f'v_add_f32_dpp v22, v22, v22 quad_perm:[1,0,3,2] {DPPF}')
        A('v_mov_b32 v23, v22', 'v_permlane16_swap_b32 v22, v23', 'v_add_f32 v22, v22, v23')
        rnd('v22', 'v22'); A('v_mul_f32 v22, s59, v22'); rnd('v22', 'v22')
        A(f'v_max_f32_dpp v23, v22, v22 quad_perm:[2,3,0,1] {DPPF}', f'v_max_f32_dpp v23, v23, v23 row_half_mirror {DPPF}', f'v_max_f32_dpp v23, v23, v23 row_ror:8 {DPPF}')
        A('v_mov_b32 v25, v23', 'v_permlane32_swap_b32 v23, v25', f'v_max3_f32 v23, v23, v25, {vM}')
        A(f'v_sub_f32 v24, {vM}, v23', 'v_sub_f32 v22, v22, v23', f'v_mov_b32 {vM}, v23')
        A('v_mul_f32 v24, s58, v24', 'v_mul_f32 v22, s58, v22', 'v_exp_f32 v24, v24', 'v_exp_f32 v22, v22')
        for i in range(3): pk('mul', 8+2*i, 8+2*i, 24, 'op_sel_hi:[1,0]')
        A('v_cvt_pk_bf16_f32 v26, v22, 0', 'v_cvt_pk_bf16_f32 v27, 0, v22')
        A(f'v_add_f32_dpp v22, v22, v22 quad_perm:[2,3,0,1] {DPPF}', f'v_mul_f32 {vL}, {vL}, v24', f'v_add_f32_dpp v22, v22, v22 row_half_mirror {DPPF}')
        A(f'v_add_f32_dpp v22, v22, v22 row_ror:8 {DPPF}', f'v_mul_f32 v31, 0.5, {vM}', f'v_add_f32 {vL}, {vL}, v22')
        for j in range(8):
            A('s_waitcnt vmcnt(15)')
            for i in range(3):
                A(f'v_dot2c_f32_bf16_dpp {acc[2*i]}, v26, v{64+4*j+i} row_newbcast:{2*j} {DPPF}')
                A(f'v_dot2c_f32_bf16_dpp {acc[2*i+1]}, v27, v{64+4*j+i} row_newbcast:{2*j} {DPPF}')
            ld('V', j)
        A('s_cmp_lt_u32 s11, s63', 's_cbranch_scc1 L_loop')
    if not st0: stamp(3)
    A(f'v_permlane32_swap_b32 {vL}, v31')
    for i in range(3): A(f'v_permlane32_swap_b32 {acc[2*i]}, {acc[2*i+1]}')
    A(f'v_add_f32 v23, {vL}, v31')
    for i in range(3): A(f'v_add_f32 v{20+i}, {acc[2*i]}, {acc[2*i+1]}')
    A('ds_write_b128 v7, v[20:23]')
    A('s_waitcnt lgkmcnt(0)', 's_barrier')
    if not st0: stamp(4)
    stamp_flush(5)
    A('s_endpgm')
    if sep:
        A.label('L_toB')
        turn()
        A('s_branch L_vB')

    A.label('L_service')
    A('s_setprio 2')
    A('v_and_b32 v4, 3, v0', 'v_bfe_u32 v5, v0, 2, 2', 'v_lshrrev_b32 v6, 4, v0', 'v_mov_b32 v15, 0')
    A('v_mov_b32 v10, 0', 'v_mov_b32 v11, 1', 'v_lshlrev_b32 v1, 4, v0')
    A('s_cmp_eq_u32 s4, 0', 's_cbranch_scc0 L_nozero')
    for o in (0, 4, 8, 12, 20, 24, 28, 32): A(f'ds_write_b32 v10, v10 offset:{o}')
    A.label('L_nozero')
    A('s_lshl_b32 s62, s4, 14', f's_add_u32 s62, s62, {L_W}')
    A('s_waitcnt lgkmcnt(0)')
    A('s_load_dword s9, s[40:41], 0')
    A('s_cmp_gt_u32 s60, 1', 's_cbranch_scc1 L_nojob')
    A('v_mul_u32_u24 v7, 1280, v4', 'v_lshl_add_u32 v7, v5, 6, v7', 'v_lshl_add_u32 v7, v6, 4, v7', 's_lshl_b32 s3, s4, 8')
    A('s_cmp_eq_u32 s60, 0', 's_cbranch_scc0 L_modjob')
    srd(52, 16, 5120)
    srd(48, 22, 640 * 12288)
    A('s_mov_b32 s42, 12288', 's_mov_b32 s59, s61', *(['s_mul_i32 s13, s61, 43', 's_lshr_b32 s13, s13, 7', 's_mul_i32 s13, s13, 21', 's_add_u32 s61, s61, s13', 's_mul_i32 s13, s5, 3'] if hm else ['s_mul_i32 s13, s5, 12']), 's_add_u32 s61, s61, s13', 's_lshl_b32 s13, s61, 7')
    A('s_branch L_dojob')
    A.label('L_modjob')
    srd(52, 34, 5120)
    A('buffer_load_dwordx4 v[36:39], v7, s[52:55], s3 offen', 's_mov_b32 s54, 0')
    srd(48, 36, 640 * 7680)
    A('s_mov_b32 s42, 7680', 's_lshl_b32 s13, s61, 7')
    A.label('L_dojob')
    A('v_lshrrev_b32 v8, 3, v0', 's_lshl_b32 s3, s4, 7', 'v_add_u32 v8, s3, v8', 'v_mul_lo_u32 v8, v8, s42')
    A('v_and_b32 v9, 7, v0', 'v_lshlrev_b32 v9, 4, v9', 'v_and_b32 v12, 1, v6', 'v_lshlrev_b32 v12, 5, v12', 'v_xor_b32 v9, v9, v12', 'v_add_u32 v8, v8, v9')
    A('s_lshl_b32 s42, s42, 3', 's_mov_b32 m0, s62')
    dma_loop(4, 'v8', 's42', 'L_dma0', ['v_xor_b32 v8, 64, v8'], POL)
    for t in range(5): A(f'buffer_load_dwordx4 v[{20+4*t}:{23+4*t}], v7, s[52:55], 0 offen offset:{256*t}' if t < 4 else 'buffer_load_dwordx4 v[60:63], v7, s[52:55], 0 offen offset:1024')
    A('s_lshl_b32 s3, s4, 8', 'buffer_load_dwordx4 v[56:59], v7, s[52:55], s3 offen')
    dma_loop(12, 'v8', 's42', 'L_dma1', ['v_xor_b32 v8, 64, v8'], POL)
    A.label('L_nojob')
    A('s_barrier')
    srd(44, 40, WS_SIZE)
    A('s_lshr_b32 s3, s6, 1', 's_add_u32 s3, s3, 12', 's_cmp_eq_u32 s60, 0', 's_cselect_b32 s3, s59, s3', 's_lshl_b32 s59, s3, 1', 's_add_u32 s59, s59, s4', 's_sub_u32 s59, s59, 1')
    A('s_cmp_lt_u32 s3, 20', 's_cselect_b32 s59, s59, -1', 's_and_b32 s3, s60, 6', 's_cmp_eq_u32 s3, 2', 's_cselect_b32 s59, -1, s59', 's_sub_u32 s3, s4, 1', 's_cmp_lt_u32 s3, 2', 's_cselect_b32 s59, s59, -1')
    A('v_lshrrev_b32 v2, 2, v0')
    vpub('v3', 'v2', 'v4', 'v12')
    A('v_lshrrev_b32 v12, 1, v6', 'v_lshlrev_b32 v2, 8, v12', 'v_lshl_add_u32 v2, v5, 9, v2', 'v_and_b32 v12, 1, v6', 'v_lshl_add_u32 v2, v12, 6, v2', 'v_lshl_add_u32 v2, v4, 4, v2')
    A('s_lshl_b32 s63, s4, 11')
    A('s_lshl_b32 s3, s4, 10', f's_add_u32 s3, s3, {L_D}', 'v_add_u32 v13, s3, v1')
    A('s_lshl_b32 s3, s4, 8', f's_add_u32 s3, s3, {L_D}', 'v_lshlrev_b32 v14, 2, v0', 'v_add_u32 v14, s3, v14')
    A('s_cmp_gt_u32 s60, 1', 's_cbranch_scc1 L_tailw0')
    A('v_lshlrev_b32 v9, 10, v6', 'v_lshl_add_u32 v9, v5, 7, v9', 'v_lshl_add_u32 v9, v4, 3, v9')
    A('v_lshrrev_b32 v12, 1, v5', 'v_lshl_add_u32 v9, v12, 5, v9', 'v_and_b32 v12, 1, v6', 'v_lshl_add_u32 v9, v12, 6, v9', 'v_add_u32 v9, s62, v9')
    A('s_lshl_b32 s43, s61, 2', 's_add_u32 s43, s43, s4', 's_lshl_b32 s43, s43, 8')
    A('v_xor_b32 v16, 32, v9', 'v_xor_b32 v17, 64, v9', 'v_xor_b32 v18, 0x60, v9')
    A('s_cmp_eq_u32 s60, 0', 's_cbranch_scc0 L_silu')
    A('s_waitcnt vmcnt(12)')
    A('s_mov_b32 s3, 0x3f803f80')
    for i, r in enumerate(list(range(20, 36)) + [60, 61, 62, 63]):
        A(f'v_dot2_f32_bf16 v36, v{r}, s3, {"0" if i == 0 else "v36"}', f'v_dot2_f32_bf16 v37, v{r}, v{r}, {"0" if i == 0 else "v37"}')
    for i in range(4): A(f'v_mov_b32 v{40+i}, v{56+i}')
    unpack(56, [40, 41, 42, 43])
    allreduce_b('v36', 'v37', 'v38')
    A(f'v_mul_f32 v36, {hex(f2u(1/640))}, v36', f'v_mul_f32 v37, {hex(f2u(1/640))}, v37', 'v_fma_f32 v37, -v36, v36, v37', 'v_max_f32 v37, 0, v37')
    A('v_cvt_pk_bf16_f32 v38, v36, v37', 'v_and_b32 v37, 0xffff0000, v38', 'v_lshlrev_b32 v36, 16, v38')
    A(f'v_add_f32 v37, {hex(f2u(1e-5))}, v37'); rnd('v37', 'v37'); A('v_sqrt_f32 v37, v37'); rnd('v37', 'v37'); A('v_rcp_f32 v37, v37')
    for i in range(4): pk('add', 56+2*i, 56+2*i, 36, 'op_sel_hi:[1,0] neg_lo:[0,1] neg_hi:[0,1]')
    rnd8(56, 40)
    for i in range(4): pk('mul', 56+2*i, 56+2*i, 36, 'op_sel:[0,1] op_sel_hi:[1,1]')
    rnd8(56, 40)
    A('v_lshlrev_b32 v15, 6, v4', 'v_lshrrev_b32 v12, 3, v0', 'v_lshl_add_u32 v15, v12, 3, v15', f's_add_u32 s43, s43, {WS_Q}')
    A('s_branch L_btr')
    A.label('L_silu')
    A('s_waitcnt vmcnt(22)')
    unpack(48, [36, 37, 38, 39])
    for i in range(8): A(f'v_mul_f32 v{36+i}, {hex(LOG2E ^ 0x80000000)}, v{48+i}')
    for i in range(8): A(f'v_exp_f32 v{36+i}, v{36+i}')
    plus1(36)
    for i in range(8): A(f'v_rcp_f32 v{36+i}, v{36+i}')
    for i in range(4): pk('mul', 48+2*i, 48+2*i, 36+2*i)
    for i in range(4): A(f'v_cvt_pk_bf16_f32 v{40+i}, v{48+2*i}, v{49+2*i}')
    ashift(40)
    A(f's_add_u32 s43, s43, {WS_MOD}')
    A.label('L_btr')
    A('s_waitcnt lgkmcnt(0)')
    tagcalc()
    for ks in range(4):
        A(f's_waitcnt vmcnt({12-4*ks})')
        for tl in range(4): tr(64 + 16*tl + 4*ks, ['v9', 'v16', 'v17', 'v18'][tl], 4096*ks, 4096*ks + 512)
    stamp(1)
    A('s_cmp_eq_u32 s60, 0', 's_cbranch_scc0 L_amov')
    A(f's_add_u32 s3, s63, {WS_MOD}', f's_add_u32 s13, s63, {WS_MOD + 10240}')
    if hg:
        A('s_add_u32 s76, s40, s3', 's_addc_u32 s77, s41, 0')
        A.label('L_hg')
        for a_ in range(2):
            for t_ in range(8): A(f's_load_dword s{78 + 8*a_ + t_}, s[76:77], {10240*a_ + 256*t_ + 8} glc')
        A('s_waitcnt lgkmcnt(0)')
        for r in range(78, 94): A(f's_cmp_eq_u32 s{r}, s9', 's_cbranch_scc0 L_hg2')
        A('s_branch L_hpoll')
        A.label('L_hg2')
        A('s_sleep 2', 's_sub_u32 s95, s95, 1', 's_cbranch_scc0 L_hg', 's_mov_b32 s95, 0')
    A.label('L_hpoll')
    A('buffer_load_dwordx4 v[28:31], v2, s[44:47], s13 offen sc1', 'buffer_load_dwordx4 v[32:35], v2, s[44:47], s13 offen offset:128 sc1')
    A('buffer_load_dwordx4 v[20:23], v2, s[44:47], s3 offen sc1', 'buffer_load_dwordx4 v[24:27], v2, s[44:47], s3 offen offset:128 sc1')
    A('s_waitcnt vmcnt(0)')
    check_tags(['v22', 'v26', 'v30', 'v34'], 'v36', 'L_hpoll', 1)
    stamp(2)
    unpack(44, [28, 29, 32, 33]); plus1(44); rnd8(44, 36)
    for i in range(4): pk('mul', 44+2*i, 44+2*i, 56+2*i)
    unpack(56, [20, 21, 24, 25])
    rnd8(44, 36)
    for i in range(4): pk('add', 44+2*i, 44+2*i, 56+2*i)
    for i in range(4): A(f'v_cvt_pk_bf16_f32 v{40+i}, v{44+2*i}, v{45+2*i}')
    ashift(40)
    A.label('L_amov')
    A('s_waitcnt lgkmcnt(8)' if not stamps else 's_waitcnt lgkmcnt(0)')
    for ks in range(4):
        if ks == 3: A('s_waitcnt lgkmcnt(0)')
        for tl in range(4): mfma(20 + 4*tl, 40 + 4*ks, 64 + 16*tl + 4*ks, ks == 0)
    A('s_mov_b64 exec, 0xffff')
    for tl in range(4): A(f'ds_write_b128 v13, v[{20+4*tl}:{23+4*tl}] offset:{256*tl}')
    lds_signal(0)
    A('s_cmp_eq_u32 s4, 4', 's_cbranch_scc0 L_fin0')
    lds_wait(4, 4, 'L_w1')
    A('s_branch L_tailw')
    A.label('L_fin0')
    A('v_mov_b32 v50, s9', 'v_mov_b32 v51, s9', 'v_mov_b32 v41, s9')
    lds_wait(0, 5, 'L_w0')
    A('ds_read2st64_b32 v[42:43], v14 offset0:0 offset1:4', 'ds_read2st64_b32 v[44:45], v14 offset0:8 offset1:12', 'ds_read_b32 v46, v14 offset:4096')
    A('s_waitcnt lgkmcnt(0)')
    A('v_add_f32 v42, v42, v43', 'v_add_f32 v44, v44, v45', 'v_add_f32 v42, v42, v46', 'v_add_f32 v42, v42, v44')
    A('s_cmp_eq_u32 s60, 0', 's_cbranch_scc1 L_finq')
    pub4('v42', 48, 's43')
    A('s_branch L_fin1')
    A.label('L_finq')
    A(f'v_mov_b32_dpp v43, v42 row_shl:4 {DPPF} bound_ctrl:0', 'v_cvt_pk_bf16_f32 v40, v42, v43')
    A('s_mov_b32 exec_lo, 0x0f0f0f0f', 's_mov_b32 exec_hi, 0x0f0f0f0f')
    A('buffer_store_dwordx2 v[40:41], v15, s[44:47], s43 offen sc1')
    A.label('L_fin1')
    stamp(3)
    lds_signal(4)
    A('s_branch L_tailw')
    A.label('L_tailw0')
    A('s_waitcnt lgkmcnt(0)')
    tagcalc()
    A('s_cmp_eq_u32 s60, 2', 's_cbranch_scc0 L_twF2')
    A('v_lshrrev_b32 v8, 2, v0', 's_lshl_b32 s3, s4, 7', 'v_add_u32 v8, s3, v8', 'v_mul_u32_u24 v8, 3072, v8', 'v_lshl_add_u32 v8, v4, 4, v8')
    srd(48, 28, 640 * 3072)
    A('s_lshl_b32 s13, s61, 6', 's_mov_b32 m0, s62')
    dma_loop(8, 'v8', 49152, 'L_dma5')
    srd(48, 30, 640 * 3072)
    A('s_lshl_b32 s13, s61, 6')
    dma_loop(8, 'v8', 49152, 'L_dma6')
    A('s_branch L_tailw')
    A.label('L_twF2')
    A('s_cmp_eq_u32 s60, 3', 's_cbranch_scc0 L_tailw', 's_cmp_eq_u32 s4, 4', 's_cbranch_scc1 L_tailw')
    A('v_lshrrev_b32 v8, 1, v0', 'v_mul_u32_u24 v8, 1280, v8', 'v_and_b32 v12, 1, v0', 'v_lshl_add_u32 v8, v12, 4, v8')
    srd(48, 32, 1536 * 1280)
    A('s_mul_i32 s13, s4, 491520', 's_lshl_b32 s3, s61, 5', 's_add_u32 s13, s13, s3', 's_mov_b32 m0, s62')
    dma_loop(12, 'v8', 40960, 'L_dma4')
    A.label('L_tailw')
    A('s_setprio 0')
    xidpub('L_xp')
    srd(48, 24, 6144 * 1280)
    A('s_mul_i32 s13, s7, 245760', 's_mul_i32 s3, s8, 160', 's_add_u32 s13, s13, s3')
    A('s_mul_i32 s3, s4, 6144', f's_add_u32 m0, s3, {L_WO}', 's_mul_i32 s3, s4, 384', 'v_add_u32 v9, s3, v0')
    wo_addr = ['v_mul_u32_u24 v8, 6554, v9', 'v_lshrrev_b32 v8, 16, v8', 'v_mul_u32_u24 v8, 1120, v8', 'v_lshl_add_u32 v8, v9, 4, v8']
    A(*wo_addr)
    dma_loop(6, 'v8', None, 'L_dma3', ['v_add_u32 v9, 64, v9'] + wo_addr)
    stamp(4)
    A(f's_mov_b32 s58, {hex(LOG2E)}', 's_mov_b32 s56, 0', 's_mov_b32 s57, -1', 's_mov_b32 s12, 0')
    srd(52, 38, 5120)
    A('s_mul_i32 s14, s7, 5120', f's_add_u32 s14, s14, {WS_REC}')
    A('s_mul_i32 s15, s8, 640', 's_add_u32 s15, s15, s14')
    A('s_lshl_b32 s3, s4, 10', "s_add_u32 s14, s14, s3")
    A('s_lshl_b32 s3, s4, 6', 'v_add_u32 v12, s3, v0', 'v_mul_u32_u24 v15, 1639, v12', 'v_lshrrev_b32 v15, 16, v15')
    A('v_mul_u32_u24 v16, 40, v15', 'v_sub_u32 v16, v12, v16', 'v_cmp_gt_u32 s[96:97], 33, v16')
    A('v_add_u32 v15, v15, v12', 'v_lshlrev_b32 v15, 4, v15', f'v_add_u32 v15, {L_RC}, v15')
    A('v_and_b32 v12, 7, v0', 'v_mul_u32_u24 v16, 656, v12', 'v_lshl_add_u32 v16, v6, 4, v16', f'v_add_u32 v16, {L_RC}, v16')
    A('v_and_b32 v17, 1, v6', 'v_lshl_add_u32 v17, v17, 2, v4', 'v_mul_u32_u24 v17, 656, v17', f'v_add_u32 v17, {L_RC + 512}, v17')
    A('v_lshrrev_b32 v19, 5, v0', 'v_lshlrev_b32 v18, 2, v19', 'v_xor_b32 v12, v12, v18', 'v_lshlrev_b32 v18, 10, v12', f'v_add_u32 v18, {L_REC}, v18')
    A('v_and_b32 v12, 31, v0', 'v_lshlrev_b32 v12, 4, v12', 'v_lshl_add_u32 v19, v19, 12, v12', f'v_add_u32 v19, {L_REC}, v19')
    A('v_mul_u32_u24 v12, 960, v6', 'v_lshl_add_u32 v12, v4, 3, v12', 's_lshl_b32 s3, s4, 5', f's_add_u32 s3, s3, {L_WO}', 'v_add_u32 v12, s3, v12')
    A('v_mul_u32_u24 v7, 160, v5', 'v_add_u32 v7, v7, v12', 'v_and_b32 v8, 1, v5', 'v_mul_u32_u24 v8, 160, v8', 'v_add_u32 v8, v8, v12', 'v_add_u32 v8, 640, v8')
    A('s_mul_i32 s43, s8, 5', 's_add_u32 s43, s43, s4', 's_lshl_b32 s43, s43, 5', 's_add_u32 s43, s43, s7', 's_lshl_b32 s43, s43, 8', f's_add_u32 s43, s43, {WS_Y}')
    A('s_cmp_eq_u32 s60, 2', 's_cselect_b32 s3, 6, 5', 's_add_u32 s13, s3, 3')
    A('v_lshlrev_b32 v9, s13, v6', 'v_lshlrev_b32 v20, s3, v5', 'v_add_u32 v9, v9, v20', 'v_lshl_add_u32 v9, v4, 3, v9', 'v_add_u32 v9, s62, v9')
    def wofrags():
        for kk in range(8): tr(64 + 4*kk, 'v7', 3840*kk, 3840*kk, 'v8')
    def f1frags():
        for a_ in range(4):
            for ks in range(4):
                o = 8192 * (a_ >> 1) + 2048 * ks + 32 * (a_ & 1)
                tr(64 + 16*a_ + 4*ks, 'v9', o, o + 256)
    def dsum(r, m):
        A(f'ds_read2st64_b32 v[{r}:{r+1}], v14 offset0:{2*m} offset1:{4+2*m}', f'ds_read2st64_b32 v[{r+2}:{r+3}], v14 offset0:{8+2*m} offset1:{12+2*m}', f'ds_read_b32 v{r+4}, v14 offset:{4096+512*m}')
    A('s_waitcnt vmcnt(0)')
    lds_signal(8)
    if xg == 2: lds_wait(28, 1, 'L_xg', slp=64)
    A('s_cmp_eq_u32 s60, 2', 's_cbranch_scc0 L_preW')
    A(f's_add_u32 s3, s63, {WS_MOD + 3*10240}', f's_add_u32 s13, s63, {WS_MOD + 4*10240}')
    A.label('L_scpoll')
    A('buffer_load_dwordx4 v[36:39], v2, s[44:47], s13 offen sc1', 'buffer_load_dwordx4 v[40:43], v2, s[44:47], s13 offen offset:128 sc1')
    A('buffer_load_dwordx4 v[44:47], v2, s[44:47], s3 offen sc1', 'buffer_load_dwordx4 v[48:51], v2, s[44:47], s3 offen offset:128 sc1')
    A('s_waitcnt vmcnt(0)')
    check_tags(['v38', 'v42', 'v46', 'v50'], 'v52', 'L_scpoll', 8)
    if not lin:
        unpack(20, [36, 37, 40, 41]); unpack(28, [44, 45, 48, 49]); plus1(20); rnd8(20, 36)
    else:
        f1frags()
        unpack(20, [36, 37, 40, 41]); plus1(20)
        A('v_mov_b32 v60, v44', 'v_mov_b32 v61, v45', 'v_mov_b32 v62, v48', 'v_mov_b32 v63, v49')
        rnd8(20, 40)
        for rnd_, cnt in ((0, 20), (1, 24)):
            if rnd_:
                for i in range(4): A(f'v_mov_b32 v{40+i}, v{60+i}')
            ashift(40)
            A('s_waitcnt lgkmcnt(0)')
            dd = [32, 36, 56, 60] if rnd_ else [32, 36, 56, 28]
            for ks in range(4):
                for a_ in range(4): mfma(dd[a_], 40 + 4*ks, 64 + 16*a_ + 4*ks, ks == 0)
            if rnd_: lds_wait(20, 7, 'L_c1')
            A('s_mov_b64 exec, 0xffff')
            for a_ in range(4): A(f'ds_write_b128 v13, v[{dd[a_]}:{dd[a_]+3}] offset:{256*a_}')
            lds_signal(cnt)
            A('s_cmp_lt_u32 s4, 2', f's_cbranch_scc0 L_c2{rnd_}')
            lds_wait(cnt, 5, f'L_c3{rnd_}')
            dsum(44, 0); dsum(50, 1)
            A('s_waitcnt lgkmcnt(0)')
            for r, d in ((44, 28 + rnd_), (50, 30 + rnd_)):
                A(f'v_add_f32 v{r}, v{r}, v{r+1}', f'v_add_f32 v{r+2}, v{r+2}, v{r+3}', f'v_add_f32 v{r}, v{r}, v{r+4}', f'v_add_f32 v{d}, v{r}, v{r+2}')
            lds_signal(cnt)
            A.label(f'L_c2{rnd_}')
    A.label('L_preW')
    lds_wait(8, 5, 'L_wow', slp=4)
    wofrags()
    A('v_mov_b32 v12, 0')
    A('s_cmp_eq_u32 s60, 2', 's_cbranch_scc0 L_preB')
    A('v_lshlrev_b32 v11, 3, v4', 's_lshl_b32 s3, s4, 5', 'v_add_u32 v12, s3, v11')
    A('s_branch L_preD')
    A.label('L_preB')
    A('s_cmp_eq_u32 s60, 3', 's_cbranch_scc0 L_preR')
    A('s_lshl_b32 s13, s61, 8', f's_add_u32 s13, s13, {WS_MOD + 5*10240}', 'v_mov_b32 v12, v3', 'v_lshrrev_b32 v21, 2, v0')
    A('s_branch L_preG0')
    A.label('L_preR')
    A('s_cmp_eq_u32 s59, -1', 's_cbranch_scc1 L_preD')
    A('v_and_b32 v21, 15, v0', 'v_mov_b32 v22, v6')
    vpub('v12', 'v21', 'v22', 'v23')
    srd(48, 16, 5120)
    A('v_mul_u32_u24 v23, 1280, v22', 'v_lshl_add_u32 v23, v21, 1, v23', 's_lshl_b32 s3, s59, 5')
    A('buffer_load_ushort v20, v23, s[48:51], s3 offen')
    A('s_lshl_b32 s13, s59, 8', f's_add_u32 s13, s13, {WS_MOD + 2*10240}')
    A.label('L_preG0')
    A('v_and_b32 v11, -16, v12', 'v_and_b32 v23, 2, v21', 'v_cmp_eq_u32 s[98:99], 0, v23', 'v_and_b32 v22, 1, v21', 'v_lshlrev_b32 v22, 4, v22', 'v_sub_u32 v22, 16, v22')
    A.label('L_preG')
    A('buffer_load_dwordx4 v[24:27], v11, s[44:47], s13 offen sc1')
    A('s_waitcnt vmcnt(0)')
    check_tags(['v26'], None, 'L_preG', 8)
    A('v_cndmask_b32 v24, v25, v24, s[98:99]', 'v_lshlrev_b32 v21, v22, v24', 'v_and_b32 v21, 0xffff0000, v21')
    A('v_lshlrev_b32 v20, 16, v20')
    A.label('L_preD')
    if fast:
        A('s_cmp_eq_u32 s4, 0', 's_cbranch_scc0 L_noxid')
        if xg == 1: lds_wait(28, 1, 'L_xg', vtmp='v40', slp=64)
        A('s_getreg_b32 s42, hwreg(HW_REG_XCC_ID)', 's_lshl_b32 s13, s5, 12', f's_add_u32 s13, s13, {WS_XID}', 'v_lshlrev_b32 v38, 7, v0', 's_mov_b32 exec_hi, 0')
        A.label('L_xid')
        A('buffer_load_dwordx2 v[40:41], v38, s[44:47], s13 offen sc1', 's_waitcnt vmcnt(0)')
        check_tags(['v41'], None, 'L_xid', 100)
        A('v_cmp_ne_u32 vcc, s42, v40', 's_mov_b32 exec_hi, -1', 's_cmp_eq_u64 vcc, 0', 's_cselect_b32 s12, 1, 0')
        A('s_cmp_eq_u32 s95, 0', 's_cselect_b32 s12, 0, s12', 'v_mov_b32 v40, s12', f'ds_write_b32 v10, v40 offset:{L_FAST}')
        A.label('L_noxid')
    A('v_mov_b32 v43, s9')
    A('s_waitcnt vmcnt(0) lgkmcnt(0)')
    stamp(5)
    A('s_setprio 2')
    A('s_barrier')
    stamp(6)
    A('s_cmp_eq_u32 s4, 0', 's_cbranch_scc0 L_O')
    A('ds_read_b32 v36, v18 offset:524', 'ds_read_b32 v37, v18 offset:12')
    for i in range(4): A(f'ds_read_b128 v[{96+8*i}:{99+8*i}], v19 offset:{1024*i}', f'ds_read_b128 v[{100+8*i}:{103+8*i}], v19 offset:{1024*i+512}')
    A('s_waitcnt lgkmcnt(8)')
    A(f'v_max_f32_dpp v38, v36, v36 quad_perm:[1,0,3,2] {DPPF}', f'v_max_f32_dpp v38, v38, v38 quad_perm:[2,3,0,1] {DPPF}', f'v_max_f32_dpp v38, v38, v38 row_half_mirror {DPPF}')
    A('v_sub_f32 v36, v36, v38', 'v_mul_f32 v36, s58, v36', 'v_exp_f32 v36, v36', 'v_mul_f32 v37, v37, v36')
    lch = [f'v_add_f32_dpp v37, v37, v37 quad_perm:[1,0,3,2] {DPPF}', f'v_add_f32_dpp v37, v37, v37 quad_perm:[2,3,0,1] {DPPF}', f'v_add_f32_dpp v37, v37, v37 row_half_mirror {DPPF}', 'v_rcp_f32 v39, v37']
    for i in range(4):
        A(f's_waitcnt lgkmcnt({6 - 2*i})')
        for k in range(3):
            op = 'v_mul_f32_dpp' if i == 0 else 'v_fmac_f32_dpp'
            A(f'{op} v{56+2*k}, v36, v{96+8*i+k} row_newbcast:{i} {DPPF}', f'{op} v{57+2*k}, v36, v{100+8*i+k} row_newbcast:{i} {DPPF}')
        A(lch[i])
    A('v_permlane32_swap_b32 v58, v59', 'v_permlane32_swap_b32 v56, v60', 'v_permlane32_swap_b32 v57, v61')
    A('v_add_f32 v58, v58, v59', 'v_add_f32 v56, v56, v60', 'v_add_f32 v57, v57, v61')
    A('v_mul_f32 v58, v58, v39', 'v_mul_f32 v56, v56, v39', 'v_mul_f32 v57, v57, v39')
    A('v_mov_b32 v59, v58', 'v_cvt_pk_bf16_f32 v40, v56, v57', 'v_cvt_pk_bf16_f32 v42, v56, v57')
    A('v_permlane32_swap_b32 v58, v59', 'v_permlane32_swap_b32 v40, v42')
    A('v_cvt_pk_bf16_f32 v41, v58, v59')
    A('v_cndmask_b32 v40, v40, v38, s[56:57]', 'v_cndmask_b32 v41, v41, v37, s[56:57]')
    A('s_mov_b32 exec_hi, 1')
    if fast:
        A('s_cmp_eq_u32 s12, 1', 's_cbranch_scc0 L_slowrec')
        A('buffer_store_dwordx4 v[40:43], v1, s[44:47], s15 offen')
        A('s_branch L_recdone')
        A.label('L_slowrec')
    A('buffer_store_dwordx4 v[40:43], v1, s[44:47], s15 offen sc1')
    A.label('L_recdone')
    A('s_mov_b32 exec_hi, -1')
    A.label('L_O')
    stamp(7)
    A('s_mov_b64 exec, s[96:97]')
    A.label('L_opoll')
    A('buffer_load_dwordx4 v[44:47], v1, s[44:47], s14 offen sc1')
    A('s_waitcnt vmcnt(0)')
    check_tags(['v47'], None, 'L_opoll', sleep)
    A('v_mov_b32 v47, 0')
    A('ds_write_b128 v15, v[44:47]')
    A('s_mov_b64 exec, -1')
    A('s_waitcnt lgkmcnt(0)')
    A('s_barrier')
    stamp(8)
    A('ds_read_b64 v[36:37], v17')
    for kk in range(8): A(f'ds_read_b128 v[{96+4*kk}:{99+4*kk}], v16 offset:{64*kk}')
    A('v_mov_b32 v51, s9', 's_mov_b32 s16, 0x07060501', 's_mov_b32 s17, 0x07060502', 's_mov_b32 s18, 0x07060503')
    A('s_waitcnt lgkmcnt(8)')
    A(f'v_max_f32_dpp v38, v36, v36 quad_perm:[1,0,3,2] {DPPF}')
    for kk in range(8):
        A(f's_waitcnt lgkmcnt({7-kk})')
        mfma(40, 96 + 4*kk, 64 + 4*kk, kk == 0)
        if kk == 0: A('v_sub_f32 v36, v36, v38', 'v_mul_f32 v36, s58, v36')
        if kk == 1: A('v_exp_f32 v36, v36')
        if kk == 2: A('v_mul_f32 v36, v36, v37')
        if kk == 3: A(f'v_add_f32_dpp v37, v36, v36 quad_perm:[1,0,3,2] {DPPF}')
        if kk == 4: A('v_rcp_f32 v37, v37')
        if kk == 5: A('v_mul_f32 v36, v36, v37')
    A(f'v_mul_f32_dpp v44, v36, v40 quad_perm:[0,0,0,0] {DPPF}', f'v_mul_f32_dpp v45, v36, v42 quad_perm:[2,2,2,2] {DPPF}')
    A(f'v_fmac_f32_dpp v44, v36, v41 quad_perm:[1,1,1,1] {DPPF}', f'v_fmac_f32_dpp v45, v36, v43 quad_perm:[3,3,3,3] {DPPF}')
    A('v_permlane16_swap_b32 v44, v46', 'v_permlane16_swap_b32 v45, v47')
    A('v_perm_b32 v48, v44, v47, s16', 'v_perm_b32 v49, v45, v47, s17', 'v_perm_b32 v50, v46, v47, s18')
    A('s_mov_b64 exec, 0xffff')
    A('buffer_store_dwordx4 v[48:51], v1, s[44:47], s43 offen sc1')
    A('s_mov_b64 exec, -1')
    stamp(9)
    A('s_mul_i32 s14, s5, 10240', f's_add_u32 s14, s14, {WS_X1}')
    A('s_cmp_eq_u32 s60, 3', 's_cbranch_scc1 L_F2')
    A('s_cmp_eq_u32 s60, 2', 's_cbranch_scc0 L_R')
    f1frags()
    A('s_add_u32 s3, s63, s14', 's_mov_b32 s13, 0x3f803f80')
    A.label('L_xpoll')
    A('buffer_load_dwordx4 v[48:51], v2, s[44:47], s3 offen sc1', 'buffer_load_dwordx4 v[52:55], v2, s[44:47], s3 offen offset:128 sc1')
    A('s_waitcnt vmcnt(0)')
    check_tags(['v50', 'v54'], 'v39', 'L_xpoll', xs)
    stamp(10)
    k0 = -2.0 * 1.4426950408889634 * 0.7978845608028654
    if lin:
        unpack(56, [48, 49, 52, 53])
        for i in range(4): pk('mul', 56+2*i, 56+2*i, 20+2*i)
        for i in range(4): A(f'v_cvt_pk_bf16_f32 v{40+i}, v{56+2*i}, v{57+2*i}')
        side = []
        for i, r in enumerate([48, 49, 52, 53]):
            side += [f'v_dot2_f32_bf16 v56, v{r}, s13, {"0" if i == 0 else "v56"}', f'v_dot2_f32_bf16 v57, v{r}, v{r}, {"0" if i == 0 else "v57"}']
        sh = lambda ks: [f'v_mov_b32_dpp v{40+4*ks+i}, v{40+i} row_shl:{4*ks} {DPPF} bound_ctrl:0' for i in range(4)]
        red = [f'v_add_f32_dpp v56, v56, v56 row_ror:4 {DPPF}', f'v_add_f32_dpp v57, v57, v57 row_ror:4 {DPPF}', f'v_add_f32_dpp v56, v56, v56 row_ror:8 {DPPF}', f'v_add_f32_dpp v57, v57, v57 row_ror:8 {DPPF}',
               'v_permlane16_swap_b32 v56, v57', 'v_add_f32 v56, v56, v57', 'v_mov_b32 v58, v56', 'v_permlane32_swap_b32 v56, v58', 'v_add_f32 v56, v56, v58', 'v_mov_b32 v57, v56', 'v_permlane16_swap_b32 v56, v57']
        fill = {0: sh(1)[:2], 1: sh(1)[2:], 2: side[:4], 3: side[4:], 4: sh(2)[:2], 5: sh(2)[2:], 6: red[:2], 7: red[2:4], 8: sh(3)[:2], 9: sh(3)[2:], 10: red[4:6], 11: red[6:7], 12: red[7:9], 13: red[9:10], 14: red[10:]}
        dd = [20, 24, 32, 36]
        A('s_waitcnt lgkmcnt(0)')
        for ks in range(4):
            for a_ in range(4):
                mfma(dd[a_], 40 + 4*ks, 64 + 16*a_ + 4*ks, ks == 0)
                A(*fill.get(4*ks + a_, []))
        A('s_mov_b64 exec, 15', f'ds_write_b64 v12, v[56:57] offset:{L_ST}')
        A('s_lshl_b32 s3, s61, 1', 's_add_u32 s3, s3, s4', 's_lshl_b32 s3, s3, 8', f's_add_u32 s3, s3, {WS_G}')
        A('s_mov_b64 exec, 0xffff')
        for a_ in range(4): A(f'ds_write_b128 v13, v[{dd[a_]}:{dd[a_]+3}] offset:{256*a_}')
        A('s_mov_b64 exec, -1', 'v_mov_b32 v58, s9', 'v_mov_b32 v59, s9')
        A('s_waitcnt lgkmcnt(0)')
        A('s_barrier')
        A('s_cmp_lt_u32 s4, 2', 's_cbranch_scc0 L_tend')
        A(f'ds_read2_b64 v[64:67], v11 offset0:{L_ST//8} offset1:{L_ST//8+4}', f'ds_read2_b64 v[68:71], v11 offset0:{L_ST//8+8} offset1:{L_ST//8+12}', f'ds_read_b64 v[72:73], v11 offset:{L_ST+128}')
        dsum(40, 0); dsum(46, 1)
        A(f'v_mov_b32 v52, {hex(f2u(k0))}', f'v_mov_b32 v74, {hex(f2u(1/640))}')
        A('s_waitcnt lgkmcnt(6)')
        pk('add', 64, 64, 66); pk('add', 68, 68, 70); pk('add', 72, 72, 64); pk('add', 72, 72, 68)
        pk('mul', 72, 72, 74, 'op_sel_hi:[1,0]')
        A('v_fma_f32 v38, -v72, v72, v73', 'v_max_f32 v38, 0, v38', 'v_cvt_pk_bf16_f32 v72, v72, v38')
        A('s_waitcnt lgkmcnt(3)')
        A('v_and_b32 v38, 0xffff0000, v72', 'v_add_f32 v40, v40, v41', f'v_add_f32 v38, {hex(f2u(1e-5))}, v38', 'v_add_f32 v42, v42, v43', 'v_cvt_pk_bf16_f32 v38, v38, v38', 'v_lshlrev_b32 v72, 16, v72', 'v_lshlrev_b32 v38, 16, v38')
        A('v_sqrt_f32 v38, v38', 'v_add_f32 v40, v40, v44', 'v_cvt_pk_bf16_f32 v38, v38, v38', 'v_fma_f32 v42, -v72, v28, v42', 'v_lshlrev_b32 v38, 16, v38', 'v_rcp_f32 v38, v38', 'v_add_f32 v40, v40, v42')
        A('s_waitcnt lgkmcnt(0)')
        A('v_fma_f32 v40, v40, v38, v29', 'v_add_f32 v46, v46, v47', 'v_mul_f32 v41, v40, v40', 'v_add_f32 v48, v48, v49', f'v_fmac_f32 v52, {hex(f2u(k0*0.044715))}, v41', 'v_add_f32 v46, v46, v50', 'v_mul_f32 v52, v52, v40')
        A('v_fma_f32 v48, -v72, v30, v48', 'v_exp_f32 v52, v52', 'v_add_f32 v46, v46, v48', 'v_add_f32 v52, 1.0, v52', 'v_fma_f32 v46, v46, v38, v31', 'v_rcp_f32 v52, v52', 'v_mul_f32 v40, v40, v46', 'v_mul_f32 v40, v40, v52')
    else:
        for i, r in enumerate([48, 49, 52, 53]):
            A(f'v_dot2_f32_bf16 v36, v{r}, s13, {"0" if i == 0 else "v36"}', f'v_dot2_f32_bf16 v37, v{r}, v{r}, {"0" if i == 0 else "v37"}')
        unpack(56, [48, 49])
        allreduce_b('v36', 'v37', 'v38')
        A('s_mov_b64 exec, 15', f'ds_write_b64 v12, v[36:37] offset:{L_ST}', 's_mov_b64 exec, -1')
        unpack(60, [52, 53])
        A('s_lshl_b32 s3, s61, 1', 's_add_u32 s3, s3, s4', 's_lshl_b32 s3, s3, 8', f's_add_u32 s3, s3, {WS_G}', f'v_mov_b32 v38, {hex(f2u(1e-5))}')
        A('s_waitcnt lgkmcnt(0)')
        A('s_barrier')
        A(f'ds_read2_b64 v[40:43], v11 offset0:{L_ST//8} offset1:{L_ST//8+4}', f'ds_read2_b64 v[44:47], v11 offset0:{L_ST//8+8} offset1:{L_ST//8+12}', f'ds_read_b64 v[36:37], v11 offset:{L_ST+128}')
        A('s_waitcnt lgkmcnt(0)')
        pk('add', 40, 40, 42); pk('add', 44, 44, 46); pk('add', 36, 36, 40); pk('add', 36, 36, 44)
        A(f'v_mul_f32 v36, {hex(f2u(1/640))}, v36', f'v_fmac_f32 v38, {hex(f2u(1/640))}, v37', 'v_fma_f32 v38, -v36, v36, v38')
        for i in range(2): pk('add', 56+2*i, 56+2*i, 36, 'op_sel_hi:[1,0] neg_lo:[0,1] neg_hi:[0,1]')
        A(f'v_max_f32 v38, {hex(f2u(1e-5))}, v38', 'v_rsq_f32 v38, v38')
        for i in range(2, 4): pk('add', 56+2*i, 56+2*i, 36, 'op_sel_hi:[1,0] neg_lo:[0,1] neg_hi:[0,1]')
        for i in range(4): pk('mul', 56+2*i, 56+2*i, 20+2*i)
        for i in range(4): A(f'v_pk_fma_f32 v[{56+2*i}:{57+2*i}], v[{56+2*i}:{57+2*i}], v[38:39], v[{28+2*i}:{29+2*i}] op_sel_hi:[1,0,1]')
        for i in range(4): A(f'v_cvt_pk_bf16_f32 v{40+i}, v{56+2*i}, v{57+2*i}')
        A('v_mov_b32 v58, s9', 'v_mov_b32 v59, s9')
        for ks in range(4):
            for a_ in range(4):
                mfma(20 + 4*a_, 40 + 4*ks, 64 + 16*a_ + 4*ks, ks == 0)
                if ks < 3 and a_ < 2:
                    for i in (2*a_, 2*a_+1): A(f'v_mov_b32_dpp v{44+4*ks+i}, v{40+i} row_shl:{4*ks+4} {DPPF} bound_ctrl:0')
        A('s_mov_b64 exec, 0xffff')
        for a_ in range(4): A(f'ds_write_b128 v13, v[{20+4*a_}:{23+4*a_}] offset:{256*a_}')
        A('s_mov_b64 exec, -1')
        A('s_waitcnt lgkmcnt(0)')
        A('s_barrier')
        A('s_cmp_lt_u32 s4, 2', 's_cbranch_scc0 L_tend')
        for m in range(2):
            r = 40 + 6 * m
            A(f'ds_read2st64_b32 v[{r}:{r+1}], v14 offset0:{2*m} offset1:{4+2*m}', f'ds_read2st64_b32 v[{r+2}:{r+3}], v14 offset0:{8+2*m} offset1:{12+2*m}', f'ds_read_b32 v{r+4}, v14 offset:{4096+512*m}')
        k0 = -2.0 * 1.4426950408889634 * 0.7978845608028654
        A(f'v_mov_b32 v52, {hex(f2u(k0))}')
        A('s_waitcnt lgkmcnt(3)')
        A('v_add_f32 v40, v40, v41', 'v_add_f32 v42, v42, v43', 'v_add_f32 v40, v40, v44', 'v_add_f32 v40, v40, v42', 'v_mul_f32 v41, v40, v40')
        A('s_waitcnt lgkmcnt(0)')
        A('v_add_f32 v46, v46, v47', f'v_fmac_f32 v52, {hex(f2u(k0*0.044715))}, v41', 'v_add_f32 v48, v48, v49', 'v_mul_f32 v52, v52, v40', 'v_add_f32 v46, v46, v50')
        A('v_exp_f32 v52, v52', 'v_add_f32 v46, v46, v48', 'v_add_f32 v52, 1.0, v52', 'v_mul_f32 v40, v40, v46', 'v_rcp_f32 v52, v52', 'v_mul_f32 v40, v40, v52')
    pub4('v40', 56, 's3')
    stamp(11)
    A('s_branch L_tend')
    A.label('L_R')
    A('s_cmp_eq_u32 s59, -1', 's_cbranch_scc1 L_tend')
    A('s_lshl_b32 s3, s59, 13', f's_add_u32 s3, s3, {WS_Y}', 's_add_u32 s13, s3, 4096')
    A('s_lshl_b32 s59, s59, 8', 's_add_u32 s14, s14, s59')
    A('v_mov_b32 v42, s9', 'v_mov_b32 v43, s9', 's_mov_b32 s15, 15', 's_mov_b32 s16, 0x0c04000c', 's_mov_b32 s17, 0x04020100')
    if fast: A(f'ds_read_b32 v36, v10 offset:{L_FAST}', 's_waitcnt lgkmcnt(0)', 'v_readfirstlane_b32 s12, v36')
    A.label('L_ypoll')
    for g in range(4):
        A(f's_bitcmp1_b32 s15, {g}', f's_cbranch_scc0 L_yl{g}')
        for i in range(2): A(f'buffer_load_dwordx4 v[{64+8*g+4*i}:{67+8*g+4*i}], v1, s[44:47], {"s3" if g < 2 else "s13"} offen offset:{2048*(g&1)+1024*i} sc1')
        A.label(f'L_yl{g}')
    A('s_waitcnt vmcnt(0)')
    for g in range(4):
        r = 64 + 8 * g
        A(f's_bitcmp1_b32 s15, {g}', f's_cbranch_scc0 L_yc{g}')
        A(f'v_xor_b32 v36, s9, v{r+3}', f'v_perm_b32 v37, v{r+1}, v{r}, s16', f'v_bitop3_b32 v36, v36, v{r+7}, s9 bitop3:0xf6', f'v_perm_b32 v38, v{r+5}, v{r+4}, s16')
        A('v_cmp_ne_u32 vcc, 0, v36', f'v_perm_b32 v{r+3}, v{r+2}, v37, s17', f'v_perm_b32 v{r+7}, v{r+6}, v38, s17')
        A(f's_cbranch_vccnz L_yc{g}')
        pk('add', r, r, r + 4); A(f's_bitset0_b32 s15, {g}'); pk('add', r + 2, r + 2, r + 6)
        A.label(f'L_yc{g}')
    A('s_cmp_eq_u32 s15, 0', 's_cbranch_scc1 L_yok')
    if ysleep: A(f's_sleep {ysleep}')
    A('s_sub_u32 s95, s95, 1', 's_cbranch_scc0 L_ypoll', 's_mov_b32 s95, 0')
    A.label('L_yok')
    stamp(10)
    pk('add', 64, 64, 72); pk('add', 80, 80, 88); pk('add', 66, 66, 74); pk('add', 82, 82, 90); pk('add', 64, 64, 80); pk('add', 66, 66, 82)
    A('v_permlane16_swap_b32 v64, v65', 'v_permlane16_swap_b32 v66, v67', 'v_add_f32 v64, v64, v65', 'v_add_f32 v66, v66, v67')
    A('v_permlane32_swap_b32 v64, v66', 'v_add_f32 v44, v64, v66', 'v_fma_f32 v44, v44, v21, v20')
    A(f'v_mov_b32_dpp v46, v44 quad_perm:[1,1,3,3] {DPPF}', 'v_cvt_pk_bf16_f32 v40, v44, v46', f'v_mov_b32_dpp v41, v40 quad_perm:[2,2,2,2] {DPPF}')
    A('s_mov_b32 exec_lo, 0x11111111', 's_mov_b32 exec_hi, 0x11111111')
    if fast:
        A('s_cmp_eq_u32 s12, 1', 's_cbranch_scc0 L_slowx1')
        A('buffer_store_dwordx4 v[40:43], v12, s[44:47], s14 offen')
        A('s_branch L_x1done')
        A.label('L_slowx1')
    A('buffer_store_dwordx4 v[40:43], v12, s[44:47], s14 offen sc1')
    A.label('L_x1done')
    stamp(11)
    A('s_or_b32 s59, s59, s5', 's_cbranch_scc1 L_tend')
    A('s_mov_b64 exec, 1', 'buffer_store_dword v42, v10, s[44:47], 0 offen sc1')
    A('s_branch L_tend')
    A.label('L_F2')
    A('s_cmp_eq_u32 s4, 4', 's_cbranch_scc1 L_tend')
    for ks in range(12): tr(64 + 4*ks, 'v9', 1024*ks, 1024*ks + 128)
    A('s_lshl_b32 s3, s61, 8', 's_add_u32 s14, s14, s3')
    A.label('L_x2poll')
    A('buffer_load_dwordx4 v[24:27], v11, s[44:47], s14 offen sc1', 's_waitcnt vmcnt(0)')
    check_tags(['v26'], None, 'L_x2poll', 2)
    A('v_cndmask_b32 v24, v25, v24, s[98:99]', 'v_lshlrev_b32 v20, v22, v24', 'v_and_b32 v20, 0xffff0000, v20')
    A('s_mul_i32 s3, s4, 6144', f's_add_u32 s3, s3, {WS_G}', 's_add_u32 s13, s3, 4096', 's_lshl_b32 s42, s61, 5')
    A('v_lshrrev_b32 v23, 2, v0', 'v_lshlrev_b32 v23, 1, v23', 'v_mul_u32_u24 v24, 1280, v4', 'v_add_u32 v23, v23, v24')
    A.label('L_gpoll')
    for i in range(6):
        A(f'buffer_load_dwordx4 v[{36+4*i}:{39+4*i}], v2, s[44:47], {"s3" if i < 4 else "s13"} offen offset:{2048*((i//2)%2)+128*(i%2)} sc1')
    A('s_waitcnt vmcnt(0)')
    check_tags([f'v{38+4*i}' for i in range(6)], 'v60', 'L_gpoll', 0)
    stamp(10)
    for n in range(12):
        blk, ks = divmod(n, 4)
        for i in range(4):
            sr = 36 + 8 * blk + (i & 1) + 4 * (i >> 1)
            if ks == 0: A(f'v_mov_b32 v{112+i}, v{sr}')
            else: A(f'v_mov_b32_dpp v{112+4*ks+i}, v{sr} row_shl:{4*ks} {DPPF} bound_ctrl:0')
        if n: mfma(60, 112 + 4*((n-1) % 4), 64 + 4*(n-1), n == 1)
    mfma(60, 124, 108, False)
    A('s_mov_b64 exec, 0xffff')
    A('ds_write_b128 v13, v[60:63]')
    A('s_mov_b64 exec, -1')
    A('s_waitcnt lgkmcnt(0)')
    A('s_barrier')
    A('s_cmp_eq_u32 s4, 0', 's_cbranch_scc0 L_tend')
    A('ds_read2st64_b32 v[40:41], v14 offset0:0 offset1:4', 'ds_read2st64_b32 v[42:43], v14 offset0:8 offset1:12')
    A('s_waitcnt lgkmcnt(0)')
    pk('add', 40, 40, 42)
    A('v_add_f32 v40, v40, v41', 'v_fma_f32 v40, v40, v21, v20', 'v_cvt_pk_bf16_f32 v40, v40, v40')
    A(f'buffer_store_short v40, v23, s[52:55], s42 offen {OP}')
    stamp(11)
    A.label('L_tend')
    if stamps: A('s_memtime s[90:91]', 's_memrealtime s[92:93]')
    stamp_flush(15)
    A.label('L_end')
    A('s_endpgm')

    body = A.fix()
    hdr = open('adaLN_cond__gqa_block_cached__geglu_ffn__decode.s.ref').read().split('\n')
    hdr = [l for l in hdr if l.startswith(';') and '@launch' not in l and 'Override' not in l and 'grid=ceil' not in l]
    notes = '''One persistent launch, one workgroup per CU: workgroup = (head, batch, half of the keys).
Waves 5..12 stream K/V (16 keys per step, online softmax).  Waves 0..4 run the small matmuls:
  start : silu(c) @ w_mod strips -> layernorm / modulate -> q strips; weights of the later stages go to LDS
  end   : merge of the splits, o @ wo, sum over heads + residual, layernorm, gate / up, gelu, down, residual
Workgroups hand data over through d_ws in 8 / 16 byte granules that carry a per-launch tag
(derived from an epoch word in d_ws that the launch advances); consumers poll the tags.
Write-through stores are used unless a run-time check shows producer and consumers on one XCD.'''
    hdr += ['; ' + l for l in notes.split('\n')]
    out = hdr + [f'; @launch grid=(256,1,1) block=(832,1,1) lds={LDS_SIZE}',
                 '.amdgcn_target "amdgcn-amd-amdhsa--gfx950"', '.text', f'.globl {KNAME}', '.p2align 8', f'.type {KNAME},@function', f'{KNAME}:']
    out += [('' if l.endswith(':') else '    ') + l for l in body]
    out += ['.section .rodata,"a"', '.p2align 6', f'.amdhsa_kernel {KNAME}',
            '  .amdhsa_next_free_vgpr 128', '  .amdhsa_next_free_sgpr 100', '  .amdhsa_accum_offset 128',
            '  .amdhsa_float_denorm_mode_32 3',
            '  .amdhsa_group_segment_fixed_size 0', '  .amdhsa_kernarg_size 112', '  .amdhsa_user_sgpr_count 2',
            '  .amdhsa_user_sgpr_kernarg_segment_ptr 1', '  .amdhsa_system_sgpr_workgroup_id_x 1', '.end_amdhsa_kernel']
    return '\n'.join(out) + '\n'

if __name__ == '__main__':
    kw = eval('dict(' + (sys.argv[2] if len(sys.argv) > 2 else '') + ')')
    open(sys.argv[1], 'w').write(gen(**kw))
```

```python
import struct, sys
from asmgen import Asm
KNAME = 'adaLN_cond__gqa_block_cached__geglu_ffn__decode_kernel'
def f2u(x): return struct.unpack('<I', struct.pack('<f', x))[0]
LOG2E = f2u(1.4426950408889634)
SCALE = f2u(192 ** -0.5)
DPPF = 'row_mask:0xf bank_mask:0xf'

WS_EP = 0
WS_XID = 0x110000
WS_X1 = 0xfa000
WS_GF = 0x2000
WS_G = 0x5000
WS_MOD = 0xb000
WS_Q = 0x1a000
WS_REC = 0x32000
WS_Y = 0x5a000
WS_STAMP = 0x180000
WS_SIZE = 0x200000
L_CNT = 0
L_FAST = 16
L_ST = 128
L_D = 512
L_RC = 5632
L_REC = 10880
L_WO = 19072
L_Q = 49792
L_W = 50176
L_SC = L_W + 81920
LDS_SIZE = L_SC + 9216
assert L_W % 128 == 0

def ngroups(D):
    out = []
    for i in range(256):
        x = i & 7; k = i >> 3; p = k >> 1
        d = 0 if p >= 11 else D[3] if p >= 9 else D[2] if x + 8 * p >= 60 else D[0] if p < 5 else D[1]
        out.append(128 + d if k & 1 else 128 - d)
    return out

def rwaves():
    ty, _ = roles(); out = []
    for i in range(256):
        k = i >> 3; p = k >> 1
        if ty[i] in (2, 3): continue
        r = (p - 9 if p < 11 else k - 20) if ty[i] == 0 else 12 + p
        if r < 20: out.append(i)
    return out

def roles():
    ty, crit = [], []
    for i in range(256):
        x = i & 7; k = i >> 3; p = k >> 1; sp = k & 1; m = x + 8 * p
        if p >= 11: t = 0
        elif sp == 0: t = 3 if p < 5 else 2
        elif p >= 9: t = 0
        else: t = 1 if m < 60 else 4
        ty.append(t); crit.append(t == 1 and m < 20)
    return ty, crit

def gen(H0=16, QP=3, D=(4, 5, 8, 3), fast=1, sleep=1, qsleep=4, xs=0, stamps=False, POL='', KP='nt', VP='nt', WP='', st0=0, OP='', ysleep=1, lin=1, pat=0, rot=3, hm=0, rw=0, rs=0, sp=0, sep=1, xr=0, xg=2, qg=0, hg=0, late=0, NS=3, wpf=0, split=0, iw=0, gf=1):
    KP = POL if KP is None else KP; VP = POL if VP is None else VP
    A = Asm()
    def stamp(i):
        if stamps: A(f's_memrealtime s[{64+2*i}:{65+2*i}]')
    def stamp_flush(n):
        if not stamps: return
        A('s_waitcnt lgkmcnt(0)')
        A('s_lshl_b32 s60, s2, 4', 's_add_u32 s60, s60, s4', 's_lshl_b32 s60, s60, 6', f's_add_u32 s60, s60, {WS_STAMP}')
        A('v_mov_b32 v126, 0', 's_mov_b64 exec, 1')
        for i in range(n):
            A(f'v_mov_b32 v127, s{64+2*i}', f'buffer_store_dword v127, v126, s[44:47], s60 offen offset:{4*i}')
        A('s_waitcnt vmcnt(0)')
    def rnd(dst, src, tmp=None):
        t = tmp or dst
        A(f'v_cvt_pk_bf16_f32 {t}, {src}, {src}', f'v_lshlrev_b32 {dst}, 16, {t}')
    def srd(base, ptr, size, off=None):
        if off is None:
            A(f's_mov_b32 s{base}, s{ptr}', f's_mov_b32 s{base+1}, s{ptr+1}')
        else:
            A(f's_add_u32 s{base}, s{ptr}, {off}', f's_addc_u32 s{base+1}, s{ptr+1}, 0')
        A(f's_mov_b32 s{base+2}, {size}', f's_mov_b32 s{base+3}, 0x20000')
    def tagcalc():
        A('s_mul_i32 s9, s9, 0x9e3779b1', 's_add_u32 s9, s9, 0x7f4a7c15')
    def xidpub(name):
        if not fast: return
        A('s_cmp_eq_u32 s4, 0', f's_cbranch_scc0 {name}')
        A('s_getreg_b32 s3, hwreg(HW_REG_XCC_ID)', 'v_mov_b32 v24, s3', 'v_mov_b32 v25, s9', 's_lshl_b32 s3, s5, 5', 's_add_u32 s3, s3, s6', 's_lshl_b32 s3, s3, 7', f's_add_u32 s3, s3, {WS_XID}')
        A('s_mov_b64 exec, 1', 'buffer_store_dwordx2 v[24:25], v10, s[44:47], s3 offen sc1', 's_mov_b64 exec, -1')
        A.label(name)
    def check_tags(regs, acc, retry, slp):
        done = retry + '_ok'
        if len(regs) == 1:
            A(f'v_cmp_ne_u32 vcc, s9, {regs[0]}')
        else:
            A(f'v_xor_b32 {acc}, s9, {regs[0]}')
            for r in regs[1:]:
                A(f'v_bitop3_b32 {acc}, {acc}, {r}, s9 bitop3:0xf6')
            A(f'v_cmp_ne_u32 vcc, 0, {acc}')
        A(f's_cbranch_vccz {done}')
        if slp: A(f's_sleep {slp}')
        A('s_sub_u32 s95, s95, 1', f's_cbranch_scc0 {retry}', 's_mov_b32 s95, 0')
        A.label(done)
    def lds_signal(cnt):
        A('s_mov_b64 exec, 1', f'ds_add_u32 v10, v11 offset:{cnt}', 's_mov_b64 exec, -1')
    def lds_wait(cnt, target, name, vtmp='v12', vaddr='v10', stmp='s3', slp=0):
        A.label(name)
        A(f'ds_read_b32 {vtmp}, {vaddr} offset:{cnt}', 's_waitcnt lgkmcnt(0)', f'v_readfirstlane_b32 {stmp}, {vtmp}', f's_cmp_ge_u32 {stmp}, {target}', f's_cbranch_scc1 {name}_x')
        if slp: A(f's_sleep {slp}')
        A('s_sub_u32 s95, s95, 1', f's_cbranch_scc0 {name}', 's_mov_b32 s95, 0')
        A.label(name + '_x')
    def dma_loop(n, voff, step, name, extra=(), pol=None):
        pol = WP if pol is None else pol
        A(f's_mov_b32 s3, {n}')
        A.label(name)
        A(f'buffer_load_dwordx4 {voff}, s[48:51], s13 offen {pol} lds')
        A(*extra)
        A('s_add_u32 m0, m0, 1024')
        if step: A(f's_add_u32 s13, s13, {step}')
        A('s_sub_u32 s3, s3, 1', 's_cmp_lg_u32 s3, 0', f's_cbranch_scc1 {name}')
    def allreduce_b(s1, s2, t):
        for r in (4, 8):
            A(f'v_add_f32_dpp {s1}, {s1}, {s1} row_ror:{r} {DPPF}', f'v_add_f32_dpp {s2}, {s2}, {s2} row_ror:{r} {DPPF}')
        A(f'v_permlane16_swap_b32 {s1}, {s2}', f'v_add_f32 {s1}, {s1}, {s2}')
        A(f'v_mov_b32 {t}, {s1}', f'v_permlane32_swap_b32 {s1}, {t}', f'v_add_f32 {s1}, {s1}, {t}')
        A(f'v_mov_b32 {s2}, {s1}', f'v_permlane16_swap_b32 {s1}, {s2}')
    def rnd8(e, t):
        for i in range(4): A(f'v_cvt_pk_bf16_f32 v{t+i}, v{e+2*i}, v{e+2*i+1}')
        for i in range(4): A(f'v_lshlrev_b32 v{e+2*i}, 16, v{t+i}', f'v_and_b32 v{e+2*i+1}, 0xffff0000, v{t+i}')
    def unpack(dst, srcs):
        for i, s_ in enumerate(srcs): A(f'v_lshlrev_b32 v{dst+2*i}, 16, v{s_}', f'v_and_b32 v{dst+2*i+1}, 0xffff0000, v{s_}')
    def pk(op, d, a, b, mod=''):
        A(f'v_pk_{op}_f32 v[{d}:{d+1}], v[{a}:{a+1}], v[{b}:{b+1}] {mod}')
    def plus1(e):
        for i in range(4): A(f'v_pk_add_f32 v[{e+2*i}:{e+1+2*i}], v[{e+2*i}:{e+1+2*i}], 1.0 op_sel_hi:[1,0]')
    def ashift(a0):
        for ks in range(1, 4):
            for i in range(4): A(f'v_mov_b32_dpp v{a0+4*ks+i}, v{a0+i} row_shl:{4*ks} {DPPF} bound_ctrl:0')
    def vpub(dst, c, b, tmp):
        A(f'v_bfe_u32 {tmp}, {c}, 2, 1', f'v_lshlrev_b32 {dst}, 7, {tmp}', f'v_lshrrev_b32 {tmp}, 3, {c}', f'v_lshl_add_u32 {dst}, {tmp}, 6, {dst}',
          f'v_bfe_u32 {tmp}, {c}, 1, 1', f'v_lshl_add_u32 {dst}, {tmp}, 2, {dst}', f'v_lshl_add_u32 {dst}, {b}, 4, {dst}')
    def pub4(val, g, soff):
        A(f'v_mov_b32_dpp v{g+1}, {val} row_shl:4 {DPPF} bound_ctrl:0', f'v_cvt_pk_bf16_f32 v{g}, {val}, v{g+1}', f'v_mov_b32_dpp v{g+1}, v{g} row_shl:8 {DPPF} bound_ctrl:0')
        A('s_mov_b32 exec_lo, 0x000f000f', 's_mov_b32 exec_hi, 0x000f000f')
        A(f'buffer_store_dwordx4 v[{g}:{g+3}], v3, s[44:47], {soff} offen sc1')
    def mfma(d, a, b, first):
        A(f'v_mfma_f32_16x16x32_bf16 v[{d}:{d+3}], v[{a}:{a+3}], v[{b}:{b+3}], {"0" if first else f"v[{d}:{d+3}]"}')
    def tr(r, addr, o0, o1, addr1=None):
        A(f'ds_read_b64_tr_b16 v[{r}:{r+1}], {addr} offset:{o0}', f'ds_read_b64_tr_b16 v[{r+2}:{r+3}], {addr1 or addr} offset:{o1}')

    A('s_cmp_ge_u32 s2, 256', 's_cbranch_scc1 L_end')
    stamp(0)
    if stamps: A('s_memtime s[88:89]')
    A('s_load_dwordx16 s[16:31], s[0:1], 0', 's_load_dwordx8 s[32:39], s[0:1], 64', 's_load_dwordx2 s[40:41], s[0:1], 104')
    A('v_lshrrev_b32 v1, 6, v0', 'v_and_b32 v0, 63, v0', 'v_readfirstlane_b32 s4, v1            ; wave')
    A('s_and_b32 s5, s2, 7', 's_lshr_b32 s6, s2, 3', *(['s_and_b32 s3, s6, 24', 's_add_u32 s7, s5, s3                 ; head'] if hm else ['s_lshr_b32 s3, s6, 3', 's_lshl_b32 s7, s5, 2', 's_add_u32 s7, s7, s3                 ; head']), 's_and_b32 s8, s6, 7')
    A('s_mov_b32 s95, 0x80000')
    A('s_lshr_b32 s3, s6, 1', 's_and_b32 s13, s6, 1')
    A('s_mov_b32 s60, 0', 's_sub_u32 s61, s6, 20', 's_mov_b32 s63, 0')
    A('s_cmp_ge_u32 s3, 11', 's_cbranch_scc1 L_roled')
    A('s_lshl_b32 s14, s3, 3', 's_add_u32 s14, s14, s5')
    A('s_cmp_lt_u32 s3, 5', f's_cselect_b32 s63, {D[0]}, {D[1]}', 's_cmp_ge_u32 s14, 60', f's_cselect_b32 s63, {D[2]}, s63', 's_cmp_ge_u32 s3, 9', f's_cselect_b32 s63, {D[3]}, s63')
    A('s_cmp_eq_u32 s13, 0', 's_cbranch_scc1 L_role0')
    A('s_sub_u32 s61, s3, 9', 's_cmp_ge_u32 s3, 9', 's_cbranch_scc1 L_roled')
    A('s_mov_b32 s61, s14', 's_cmp_lt_u32 s14, 60', 's_cselect_b32 s60, 1, 4', 's_branch L_roled')
    A.label('L_role0')
    A('s_cmp_lt_u32 s3, 5', 's_cselect_b32 s60, 3, 2', 's_cselect_b32 s14, 5, 6', 's_cselect_b32 s15, 0, 5', 's_mul_i32 s61, s5, s14', 's_add_u32 s61, s61, s3', 's_sub_u32 s61, s61, s15')
    A.label('L_roled')
    A('s_cmp_lt_u32 s4, 5', 's_cbranch_scc1 L_service')

    q = ['v4', 'v5', 'v6']
    acc = [f'v{8+i}' for i in range(6)]
    vM, vL = 'v14', 'v15'
    def ld(kind, j):
        r, s = (32 + 4 * j, 48) if kind == 'K' else (64 + 4 * j, 48 if sep else 52) if kind == 'V' else (96 + 4 * j, 48)
        vo, off = ('v1', j * 768) if j < 5 else ('v2', (j - 5) * 768)
        A(f'buffer_load_dwordx3 v[{r}:{r+2}], {vo}, s[{s}:{s+3}], s10 offen offset:{off} {KP if kind == "K" else VP}')
    def goff(t):
        if pat == 1: A(f's_lshl_b32 s10, {t}, 1', 's_add_u32 s10, s10, s86')
        else: A(f's_and_b32 s10, {t}, -8', f's_add_u32 s10, s10, {t}', 's_add_u32 s10, s10, s86')
        if rot: A('s_add_u32 s10, s10, s42', 's_sub_u32 s3, s10, 224', 's_cmp_ge_u32 s10, 224', 's_cselect_b32 s10, s3, s10')
        A(f's_mul_i32 s3, {t}, s94', 's_add_u32 s3, s3, s87', f's_cmp_lt_u32 {t}, 112', 's_cselect_b32 s10, s10, s3', *(['s_xor_b32 s10, s10, s62'] if xr else []), 's_mul_i32 s10, s10, 6144')
    A('v_mul_u32_u24 v1, 12, v0', 'v_add_u32 v2, 3840, v1')
    A('s_lshr_b32 s3, s8, 1', 's_lshl_b32 s3, s3, 5', 's_add_u32 s3, s3, s7', 's_mul_i32 s12, s3, 1572864')
    if xr == 1: A('s_and_b32 s62, s3, 1', 's_lshl_b32 s62, s62, 7')
    if xr == 2: A('s_and_b32 s62, s3, 3', 's_lshl_b32 s62, s62, 6')
    if xr == 3: A('s_lshr_b32 s62, s3, 5', 's_xor_b32 s62, s62, s3', 's_and_b32 s62, s62, 1', 's_lshl_b32 s62, s62, 7')
    if xr == 4: A('s_lshr_b32 s62, s3, 1', 's_and_b32 s62, s62, 1', 's_lshl_b32 s62, s62, 7')
    if isinstance(xr, tuple):
        A('s_mov_b32 s62, 0')
        for mk, sh in zip(xr, (7, 6, 5, 4)):
            if mk: A(f's_and_b32 s86, s3, {mk}', 's_bcnt1_i32_b32 s86, s86', 's_and_b32 s86, s86, 1', f's_lshl_b32 s86, s86, {sh}', 's_or_b32 s62, s62, s86')
    if rot: A(f's_mul_i32 s42, s3, {rot}', *([f's_mul_i32 s86, s4, {rw}', 's_add_u32 s42, s42, s86'] if rw else []), *([f's_mul_i32 s86, s13, {rs}', 's_add_u32 s42, s42, s86'] if rs else []), 's_mul_hi_u32 s86, s42, 306783379', 's_mul_i32 s86, s86, 14', 's_sub_u32 s42, s42, s86', 's_lshl_b32 s42, s42, 4')
    A('s_mov_b32 s86, s13' if pat == 1 else 's_lshl_b32 s86, s13, 3', 's_mul_i32 s87, s13, 255', 's_add_u32 s87, s87, 112', 's_cmp_eq_u32 s13, 0', 's_cselect_b32 s94, 1, -1')
    A('s_mul_i32 s63, s63, s94', 's_sub_u32 s63, 128, s63')
    A('s_sub_u32 s11, s4, 5')
    goff('s11')
    A('s_cmp_lt_u32 s61, 20', 's_cselect_b32 s15, 2, 0', 's_cmp_eq_u32 s60, 1', 's_cselect_b32 s15, s15, 0', 's_cmp_eq_u32 s60, 0', 's_cselect_b32 s15, 1, s15')
    A('v_mov_b32 v29, 0', 'v_mov_b32 v30, 1')
    A('s_waitcnt lgkmcnt(0)')
    if st0: stamp(3)
    srd(48, 18, 1572864, 's12'); srd(52, 20, 1572864, 's12')
    A('s_load_dword s9, s[40:41], 0')
    A('s_cmp_eq_u32 s15, 0', 's_cbranch_scc1 L_hold2_x')
    A('s_barrier')
    A('s_cmp_eq_u32 s15, 2', 's_cbranch_scc0 L_hold2_x')
    lds_wait(4, 4, 'L_hold2', 'v16', 'v29', 's14', 2)
    order = [('K', j) for j in range(8)] + [('V', j) for j in range(8)] + ([('C', j) for j in range(8)] if NS == 3 else [])
    if NS == 3 and H0 == 16: H0 = 24
    def plain():
        for n, o in enumerate(order):
            if sep and n in (8, 16):
                A(f's_add_u32 s13, s11, {n}'); goff('s13')
            ld(*o)
    def paced():
        for n, o in enumerate(order):
            if n == H0:
                A('s_cmp_eq_u32 s15, 1', 's_cbranch_scc0 L_hold1_x')
                lds_wait(4, 4, 'L_hold1', 'v16', 'v29', 's14', 2)
            if QP and QP <= n < H0:
                A('s_cmp_eq_u32 s15, 1', f's_cbranch_scc0 L_qp{n}', f's_waitcnt vmcnt({QP - 1})')
                A('ds_read_b32 v16, v29 offset:4', 's_waitcnt lgkmcnt(0)', 'v_readfirstlane_b32 s14, v16', 's_cmp_ge_u32 s14, 4', 's_cselect_b32 s15, 3, 1')
                A.label(f'L_qp{n}')
            if sep and n in (8, 16):
                A(f's_add_u32 s13, s11, {n}'); goff('s13')
            ld(*o)
            if st0 and n == 0: A('s_waitcnt vmcnt(0)'); stamp(4)
    if split:
        A('s_cmp_eq_u32 s15, 1', 's_cbranch_scc1 L_paced')
        plain()
    else:
        paced()
    A('s_cmp_eq_u32 s15, 0', 's_cbranch_scc0 L_nobar')
    A('s_barrier')
    A.label('L_nobar')
    if stamps: srd(44, 40, WS_SIZE)
    A('s_mul_i32 s14, s7, 3072', 's_lshr_b32 s3, s8, 1', 's_lshl_b32 s3, s3, 6', 's_add_u32 s14, s14, s3', f's_add_u32 s14, s14, {WS_Q}')
    A('s_lshl_b32 s3, s11, 9', 's_add_u32 s14, s14, s3', 's_add_u32 s84, s40, s14', 's_addc_u32 s85, s41, 0')
    A('v_and_b32 v3, 31, v0', 'v_mul_u32_u24 v3, 12, v3', 's_lshl_b32 s3, s11, 6', 'v_lshlrev_b32 v31, 2, v0', 'v_add_u32 v31, s3, v31')
    A('s_lshl_b32 s3, s11, 10', f's_add_u32 s3, s3, {L_REC}', 'v_lshlrev_b32 v7, 4, v0', 'v_add_u32 v7, s3, v7')
    A('s_mov_b32 s56, 0xcccccccc', 's_mov_b32 s57, 0xcccccccc', f's_mov_b32 s58, {hex(LOG2E)}', f's_mov_b32 s59, {hex(SCALE)}', 's_mov_b32 s43, 1572864')
    for a in acc: A(f'v_mov_b32 {a}, 0')
    A(f'v_mov_b32 {vM}, 0xff7fffff', f'v_mov_b32 {vL}, 0')
    A('s_waitcnt lgkmcnt(0)')
    tagcalc()
    stamp(1)
    if iw:
        A('s_cmp_eq_u32 s11, 7', 's_cbranch_scc0 L_noiw')
        A(f's_mov_b32 s13, {NS}', f's_mov_b32 s15, {NS}', 's_mov_b64 exec, 0', 's_branch L_k0')
        A.label('L_iwdone')
        A('s_mov_b64 exec, -1', 's_mov_b32 s11, 7')
        A.label('L_noiw')
    A('s_cmp_lt_u32 s11, 6', 's_cbranch_scc0 L_qw')
    if qg:
        A('s_cmp_eq_u32 s11, 0', 's_cbranch_scc1 L_qpoll')
        lds_wait(12, 1, 'L_qg', 'v16', 'v29', 's14', 1)
    A('s_branch L_qpoll')
    A.label('L_qretry')
    A(f's_sleep {qsleep}', 's_sub_u32 s95, s95, 1', 's_cbranch_scc0 L_qpoll', 's_mov_b32 s95, 0', 's_branch L_qgot')
    A.label('L_qpoll')
    A('s_load_dwordx16 s[16:31], s[84:85], 0 glc', 's_load_dwordx8 s[32:39], s[84:85], 256 glc', 's_load_dwordx8 s[76:83], s[84:85], 288 glc', 's_waitcnt lgkmcnt(0)')
    sq = list(range(16, 40, 2)) + list(range(76, 84, 2))
    for r in sq: A(f's_cmp_eq_u32 s{r+1}, s9', 's_cbranch_scc0 L_qretry')
    A.label('L_qgot')
    for i, r in enumerate(sq): A(f'v_writelane_b32 v16, s{r}, {i}')
    A('s_mov_b64 exec, 0xffff', f'ds_write_b32 v31, v16 offset:{L_Q}', 's_mov_b64 exec, 1', 'ds_add_u32 v29, v30 offset:12', 's_mov_b64 exec, -1')
    lds_wait(12, 6, 'L_qw', 'v16', 'v29', 's14', 1)
    stamp(2)
    for i in range(3): A(f'ds_read_b32 {q[i]}, v3 offset:{L_Q + 4*i}')
    A('s_waitcnt lgkmcnt(0)')
    if sep:
        A('s_mov_b32 s12, s11', 's_sub_u32 s15, s63, s11', 's_add_u32 s15, s15, 7', 's_lshr_b32 s15, s15, 3', 's_mov_b32 s13, s15', f's_add_u32 s11, s11, {8 * (NS - 1)}')
        A('v_lshrrev_b32 v28, 5, v0', 'v_lshlrev_b32 v28, 3, v28', 'v_bfe_u32 v29, v0, 1, 3', 'v_add_u32 v28, v28, v29', 'v_lshlrev_b32 v28, 2, v28')
        A('s_mul_i32 s3, s12, 1152', f's_add_u32 s3, s3, {L_SC}', 'v_add_u32 v28, s3, v28', 'v_mov_b32 v29, v28')
        def nxt(tag):
            A('s_add_u32 s11, s11, 8', 's_cmp_ge_u32 s11, s63', f's_cbranch_scc0 L_nx{tag}', 's_mov_b32 s11, s12', 's_mov_b32 s48, s52', 's_mov_b32 s49, s53', 's_mov_b32 s50, s54', 's_mov_b32 s54, 0')
            A.label(f'L_nx{tag}')
            goff('s11')
        def kstep(e):
            B = 32 + 32 * e; kd = 'KVC'[e]
            T = lambda j: f'v{B+3+4*j}'
            nxt(f'k{e}')
            for j in range(8):
                A(f's_waitcnt vmcnt({8 * NS - 1})')
                for i in range(3): A(f'v_dot2_f32_bf16 {T(j)}, v{B+4*j+i}, {q[i]}, {T(j) if i else "0"}')
                ld(kd, j)
            for i in range(4): A(f'v_add_f32_dpp v{16+i}, {T(i)}, {T(i)} row_ror:8 row_mask:0xf bank_mask:0x3')
            for i in range(4): A(f'v_add_f32_dpp v{16+i}, {T(i+4)}, {T(i+4)} row_ror:8 row_mask:0xf bank_mask:0xc')
            for i in range(2): A(f'v_add_f32_dpp v{20+i}, v{16+i}, v{16+i} row_half_mirror row_mask:0xf bank_mask:0x5')
            for i in range(2): A(f'v_add_f32_dpp v{20+i}, v{18+i}, v{18+i} row_half_mirror row_mask:0xf bank_mask:0xa')
            A(f'v_add_f32_dpp v22, v20, v20 quad_perm:[2,3,0,1] {DPPF}', f'v_add_f32_dpp v23, v21, v21 quad_perm:[2,3,0,1] {DPPF}')
            A('v_cndmask_b32 v22, v22, v23, s[56:57]')
            A(f'v_add_f32_dpp v22, v22, v22 quad_perm:[1,0,3,2] {DPPF}')
            A('v_mov_b32 v23, v22', 'v_permlane16_swap_b32 v22, v23', 'v_add_f32 v22, v22, v23')
            rnd('v22', 'v22'); A('v_mul_f32 v22, s59, v22'); rnd('v22', 'v22')
            A('ds_write_b32 v28, v22', f'v_max_f32 {vM}, {vM}, v22', 'v_add_u32 v28, 64, v28', 's_sub_u32 s13, s13, 1', 's_cmp_eq_u32 s13, 0')
        def vstep(e):
            B = 32 + 32 * e; kd = 'KVC'[e]
            A('ds_read_b32 v22, v29', 'v_add_u32 v29, 64, v29')
            nxt(f'v{e}')
            A('s_waitcnt lgkmcnt(0)', f'v_sub_f32 v22, v22, {vM}', 'v_mul_f32 v22, s58, v22', 'v_exp_f32 v22, v22')
            A('v_cvt_pk_bf16_f32 v26, v22, 0', 'v_cvt_pk_bf16_f32 v27, 0, v22')
            A(f'v_add_f32_dpp v22, v22, v22 quad_perm:[2,3,0,1] {DPPF}', f'v_add_f32_dpp v22, v22, v22 row_half_mirror {DPPF}', f'v_add_f32_dpp v22, v22, v22 row_ror:8 {DPPF}', f'v_add_f32 {vL}, {vL}, v22')
            for j in range(8):
                A(f's_waitcnt vmcnt({8 * NS - 1})')
                for i in range(3):
                    A(f'v_dot2c_f32_bf16_dpp {acc[2*i]}, v26, v{B+4*j+i} row_newbcast:{2*j} {DPPF}')
                    A(f'v_dot2c_f32_bf16_dpp {acc[2*i+1]}, v27, v{B+4*j+i} row_newbcast:{2*j} {DPPF}')
                ld(kd, j)
            A('s_sub_u32 s13, s13, 1', 's_cmp_eq_u32 s13, 0')
        def turn():
            A(f'v_max_f32_dpp {vM}, {vM}, {vM} quad_perm:[2,3,0,1] {DPPF}', f'v_max_f32_dpp {vM}, {vM}, {vM} row_half_mirror {DPPF}', f'v_max_f32_dpp {vM}, {vM}, {vM} row_ror:8 {DPPF}')
            A(f'v_mov_b32 v25, {vM}', f'v_permlane32_swap_b32 {vM}, v25', f'v_max_f32 {vM}, {vM}, v25', f'v_mul_f32 v31, 0.5, {vM}', 's_mov_b32 s13, s15')
            if xg and iw: A('v_mov_b32 v25, 28', 's_mov_b64 s[60:61], exec', 's_and_b64 exec, exec, 1', 'ds_add_u32 v25, v30', 's_mov_b64 exec, s[60:61]')
            elif xg: A('v_mov_b32 v25, 28', 's_mov_b64 exec, 1', 'ds_add_u32 v25, v30', 's_mov_b64 exec, -1')
        A.label('L_k0')
        for e in range(NS):
            kstep(e)
            A(f's_cbranch_scc1 L_to{e + 1}' if e < NS - 1 else 's_cbranch_scc0 L_k0')
        turn()
        for e in range(NS):
            A.label(f'L_v{e}')
            vstep(e)
            A('s_cbranch_scc1 L_done' if e < NS - 1 else 's_cbranch_scc0 L_v0')
        A.label('L_done')
        if iw: A('s_cbranch_execz L_iwdone')
    else:
        if sp == 1: A('s_cmp_ge_u32 s11, 4', 's_cbranch_scc0 L_sp', 's_setprio 1', 'L_sp:')
        if sp == 3:
            for p_ in (1, 2, 3): A(f's_cmp_ge_u32 s11, {2*p_}', f's_cbranch_scc0 L_sp{p_}', f's_setprio {p_}', f'L_sp{p_}:')
        if sp == 5:
            A('s_setprio 3')
            for p_ in (1, 2, 3): A(f's_cmp_ge_u32 s11, {2*p_}', f's_cbranch_scc0 L_sp{p_}', f's_setprio {3-p_}', f'L_sp{p_}:')
        if sp == 6:
            A('s_and_b32 s3, s11, 3')
            for p_ in (1, 2, 3): A(f's_cmp_ge_u32 s3, {p_}', f's_cbranch_scc0 L_sp{p_}', f's_setprio {p_}', f'L_sp{p_}:')
        A.label('L_loop')
        if sp == 4:
            A('s_lshr_b32 s3, s11, 2', 's_lshr_b32 s10, s11, 3', 's_xor_b32 s3, s3, s10', 's_bitcmp1_b32 s3, 0', 's_cbranch_scc0 L_spa', 's_setprio 1', 's_branch L_spb', 'L_spa:', 's_setprio 0', 'L_spb:')
        A('s_add_u32 s11, s11, 8')
        goff('s11')
        A('s_cmp_ge_u32 s11, s63', 's_cselect_b32 s50, 0, s43', 's_cselect_b32 s54, 0, s43')
        T = lambda j: f'v{35+4*j}'
        for j in range(8):
            A('s_waitcnt vmcnt(15)')
            for i in range(3): A(f'v_dot2_f32_bf16 {T(j)}, v{32+4*j+i}, {q[i]}, {T(j) if i else "0"}')
            ld('K', j)
        for i in range(4): A(f'v_add_f32_dpp v{16+i}, {T(i)}, {T(i)} row_ror:8 row_mask:0xf bank_mask:0x3')
        for i in range(4): A(f'v_add_f32_dpp v{16+i}, {T(i+4)}, {T(i+4)} row_ror:8 row_mask:0xf bank_mask:0xc')
        for i in range(2): A(f'v_add_f32_dpp v{20+i}, v{16+i}, v{16+i} row_half_mirror row_mask:0xf bank_mask:0x5')
        for i in range(2): A(f'v_add_f32_dpp v{20+i}, v{18+i}, v{18+i} row_half_mirror row_mask:0xf bank_mask:0xa')
        A(f'v_add_f32_dpp v22, v20, v20 quad_perm:[2,3,0,1] {DPPF}', f'v_add_f32_dpp v23, v21, v21 quad_perm:[2,3,0,1] {DPPF}')
        A('v_cndmask_b32 v22, v22, v23, s[56:57]')
        A(f'v_add_f32_dpp v22, v22, v22 quad_perm:[1,0,3,2] {DPPF}')
        A('v_mov_b32 v23, v22', 'v_permlane16_swap_b32 v22, v23', 'v_add_f32 v22, v22, v23')
        rnd('v22', 'v22'); A('v_mul_f32 v22, s59, v22'); rnd('v22', 'v22')
        A(f'v_max_f32_dpp v23, v22, v22 quad_perm:[2,3,0,1] {DPPF}', f'v_max_f32_dpp v23, v23, v23 row_half_mirror {DPPF}', f'v_max_f32_dpp v23, v23, v23 row_ror:8 {DPPF}')
        A('v_mov_b32 v25, v23', 'v_permlane32_swap_b32 v23, v25', f'v_max3_f32 v23, v23, v25, {vM}')
        A(f'v_sub_f32 v24, {vM}, v23', 'v_sub_f32 v22, v22, v23', f'v_mov_b32 {vM}, v23')
        A('v_mul_f32 v24, s58, v24', 'v_mul_f32 v22, s58, v22', 'v_exp_f32 v24, v24', 'v_exp_f32 v22, v22')
        for i in range(3): pk('mul', 8+2*i, 8+2*i, 24, 'op_sel_hi:[1,0]')
        A('v_cvt_pk_bf16_f32 v26, v22, 0', 'v_cvt_pk_bf16_f32 v27, 0, v22')
        A(f'v_add_f32_dpp v22, v22, v22 quad_perm:[2,3,0,1] {DPPF}', f'v_mul_f32 {vL}, {vL}, v24', f'v_add_f32_dpp v22, v22, v22 row_half_mirror {DPPF}')
        A(f'v_add_f32_dpp v22, v22, v22 row_ror:8 {DPPF}', f'v_mul_f32 v31, 0.5, {vM}', f'v_add_f32 {vL}, {vL}, v22')
        for j in range(8):
            A('s_waitcnt vmcnt(15)')
            for i in range(3):
                A(f'v_dot2c_f32_bf16_dpp {acc[2*i]}, v26, v{64+4*j+i} row_newbcast:{2*j} {DPPF}')
                A(f'v_dot2c_f32_bf16_dpp {acc[2*i+1]}, v27, v{64+4*j+i} row_newbcast:{2*j} {DPPF}')
            ld('V', j)
        A('s_cmp_lt_u32 s11, s63', 's_cbranch_scc1 L_loop')
    if not st0: stamp(3)
    A(f'v_permlane32_swap_b32 {vL}, v31')
    for i in range(3): A(f'v_permlane32_swap_b32 {acc[2*i]}, {acc[2*i+1]}')
    A(f'v_add_f32 v23, {vL}, v31')
    for i in range(3): A(f'v_add_f32 v{20+i}, {acc[2*i]}, {acc[2*i+1]}')
    A('ds_write_b128 v7, v[20:23]')
    A('s_waitcnt lgkmcnt(0)', 's_barrier')
    if not st0: stamp(4)
    stamp_flush(5)
    A('s_endpgm')
    if sep:
        if split:
            A.label('L_paced')
            paced()
            A('s_branch L_nobar')
        for e in range(1, NS):
            A.label(f'L_to{e}')
            turn()
            A(f's_branch L_v{e}')

    A.label('L_service')
    A('s_setprio 2')
    A('v_and_b32 v4, 3, v0', 'v_bfe_u32 v5, v0, 2, 2', 'v_lshrrev_b32 v6, 4, v0', 'v_mov_b32 v15, 0')
    A('v_mov_b32 v10, 0', 'v_mov_b32 v11, 1', 'v_lshlrev_b32 v1, 4, v0')
    A('s_cmp_eq_u32 s4, 0', 's_cbranch_scc0 L_nozero')
    for o in (0, 4, 8, 12, 20, 24, 28, 32): A(f'ds_write_b32 v10, v10 offset:{o}')
    A.label('L_nozero')
    A('s_lshl_b32 s62, s4, 14', f's_add_u32 s62, s62, {L_W}')
    A('s_waitcnt lgkmcnt(0)')
    A('s_load_dword s9, s[40:41], 0')
    A('s_cmp_gt_u32 s60, 1', 's_cbranch_scc1 L_nojob')
    A('v_mul_u32_u24 v7, 1280, v4', 'v_lshl_add_u32 v7, v5, 6, v7', 'v_lshl_add_u32 v7, v6, 4, v7', 's_lshl_b32 s3, s4, 8')
    A('s_cmp_eq_u32 s60, 0', 's_cbranch_scc0 L_modjob')
    srd(52, 16, 5120)
    srd(48, 22, 640 * 12288)
    A('s_mov_b32 s42, 12288', 's_mov_b32 s59, s61', *(['s_mul_i32 s13, s61, 43', 's_lshr_b32 s13, s13, 7', 's_mul_i32 s13, s13, 21', 's_add_u32 s61, s61, s13', 's_mul_i32 s13, s5, 3'] if hm else ['s_mul_i32 s13, s5, 12']), 's_add_u32 s61, s61, s13', 's_lshl_b32 s13, s61, 7')
    A('s_branch L_dojob')
    A.label('L_modjob')
    srd(52, 34, 5120)
    A('buffer_load_dwordx4 v[36:39], v7, s[52:55], s3 offen', 's_mov_b32 s54, 0')
    srd(48, 36, 640 * 7680)
    A('s_mov_b32 s42, 7680', 's_lshl_b32 s13, s61, 7')
    A.label('L_dojob')
    A('v_lshrrev_b32 v8, 3, v0', 's_lshl_b32 s3, s4, 7', 'v_add_u32 v8, s3, v8', 'v_mul_lo_u32 v8, v8, s42')
    A('v_and_b32 v9, 7, v0', 'v_lshlrev_b32 v9, 4, v9', 'v_and_b32 v12, 1, v6', 'v_lshlrev_b32 v12, 5, v12', 'v_xor_b32 v9, v9, v12', 'v_add_u32 v8, v8, v9')
    A('s_lshl_b32 s42, s42, 3', 's_mov_b32 m0, s62')
    dma_loop(4, 'v8', 's42', 'L_dma0', ['v_xor_b32 v8, 64, v8'], POL)
    for t in range(5): A(f'buffer_load_dwordx4 v[{20+4*t}:{23+4*t}], v7, s[52:55], 0 offen offset:{256*t}' if t < 4 else 'buffer_load_dwordx4 v[60:63], v7, s[52:55], 0 offen offset:1024')
    A('s_lshl_b32 s3, s4, 8', 'buffer_load_dwordx4 v[56:59], v7, s[52:55], s3 offen')
    dma_loop(12, 'v8', 's42', 'L_dma1', ['v_xor_b32 v8, 64, v8'], POL)
    A.label('L_nojob')
    A('s_barrier')
    srd(44, 40, WS_SIZE)
    A('s_lshr_b32 s3, s6, 1', 's_add_u32 s3, s3, 12', 's_cmp_eq_u32 s60, 0', 's_cselect_b32 s3, s59, s3', 's_lshl_b32 s59, s3, 1', 's_add_u32 s59, s59, s4', 's_sub_u32 s59, s59, 1')
    A('s_cmp_lt_u32 s3, 20', 's_cselect_b32 s59, s59, -1', 's_and_b32 s3, s60, 6', 's_cmp_eq_u32 s3, 2', 's_cselect_b32 s59, -1, s59', 's_sub_u32 s3, s4, 1', 's_cmp_lt_u32 s3, 2', 's_cselect_b32 s59, s59, -1')
    A('v_lshrrev_b32 v2, 2, v0')
    vpub('v3', 'v2', 'v4', 'v12')
    A('v_lshrrev_b32 v12, 1, v6', 'v_lshlrev_b32 v2, 8, v12', 'v_lshl_add_u32 v2, v5, 9, v2', 'v_and_b32 v12, 1, v6', 'v_lshl_add_u32 v2, v12, 6, v2', 'v_lshl_add_u32 v2, v4, 4, v2')
    A('s_lshl_b32 s63, s4, 11')
    A('s_lshl_b32 s3, s4, 10', f's_add_u32 s3, s3, {L_D}', 'v_add_u32 v13, s3, v1')
    A('s_lshl_b32 s3, s4, 8', f's_add_u32 s3, s3, {L_D}', 'v_lshlrev_b32 v14, 2, v0', 'v_add_u32 v14, s3, v14')
    A('s_cmp_gt_u32 s60, 1', 's_cbranch_scc1 L_tailw0')
    A('v_lshlrev_b32 v9, 10, v6', 'v_lshl_add_u32 v9, v5, 7, v9', 'v_lshl_add_u32 v9, v4, 3, v9')
    A('v_lshrrev_b32 v12, 1, v5', 'v_lshl_add_u32 v9, v12, 5, v9', 'v_and_b32 v12, 1, v6', 'v_lshl_add_u32 v9, v12, 6, v9', 'v_add_u32 v9, s62, v9')
    A('s_lshl_b32 s43, s61, 2', 's_add_u32 s43, s43, s4', 's_lshl_b32 s43, s43, 8')
    A('v_xor_b32 v16, 32, v9', 'v_xor_b32 v17, 64, v9', 'v_xor_b32 v18, 0x60, v9')
    A('s_cmp_eq_u32 s60, 0', 's_cbranch_scc0 L_silu')
    A('s_waitcnt vmcnt(12)')
    A('s_mov_b32 s3, 0x3f803f80')
    for i, r in enumerate(list(range(20, 36)) + [60, 61, 62, 63]):
        A(f'v_dot2_f32_bf16 v36, v{r}, s3, {"0" if i == 0 else "v36"}', f'v_dot2_f32_bf16 v37, v{r}, v{r}, {"0" if i == 0 else "v37"}')
    for i in range(4): A(f'v_mov_b32 v{40+i}, v{56+i}')
    unpack(56, [40, 41, 42, 43])
    allreduce_b('v36', 'v37', 'v38')
    A(f'v_mul_f32 v36, {hex(f2u(1/640))}, v36', f'v_mul_f32 v37, {hex(f2u(1/640))}, v37', 'v_fma_f32 v37, -v36, v36, v37', 'v_max_f32 v37, 0, v37')
    A('v_cvt_pk_bf16_f32 v38, v36, v37', 'v_and_b32 v37, 0xffff0000, v38', 'v_lshlrev_b32 v36, 16, v38')
    A(f'v_add_f32 v37, {hex(f2u(1e-5))}, v37'); rnd('v37', 'v37'); A('v_sqrt_f32 v37, v37'); rnd('v37', 'v37'); A('v_rcp_f32 v37, v37')
    for i in range(4): pk('add', 56+2*i, 56+2*i, 36, 'op_sel_hi:[1,0] neg_lo:[0,1] neg_hi:[0,1]')
    rnd8(56, 40)
    for i in range(4): pk('mul', 56+2*i, 56+2*i, 36, 'op_sel:[0,1] op_sel_hi:[1,1]')
    rnd8(56, 40)
    A('v_lshlrev_b32 v15, 6, v4', 'v_lshrrev_b32 v12, 3, v0', 'v_lshl_add_u32 v15, v12, 3, v15', f's_add_u32 s43, s43, {WS_Q}')
    A('s_branch L_btr')
    A.label('L_silu')
    A('s_waitcnt vmcnt(22)')
    unpack(48, [36, 37, 38, 39])
    for i in range(8): A(f'v_mul_f32 v{36+i}, {hex(LOG2E ^ 0x80000000)}, v{48+i}')
    for i in range(8): A(f'v_exp_f32 v{36+i}, v{36+i}')
    plus1(36)
    for i in range(8): A(f'v_rcp_f32 v{36+i}, v{36+i}')
    for i in range(4): pk('mul', 48+2*i, 48+2*i, 36+2*i)
    for i in range(4): A(f'v_cvt_pk_bf16_f32 v{40+i}, v{48+2*i}, v{49+2*i}')
    ashift(40)
    A(f's_add_u32 s43, s43, {WS_MOD}')
    A.label('L_btr')
    A('s_waitcnt lgkmcnt(0)')
    tagcalc()
    for ks in range(4):
        A(f's_waitcnt vmcnt({12-4*ks})')
        for tl in range(4): tr(64 + 16*tl + 4*ks, ['v9', 'v16', 'v17', 'v18'][tl], 4096*ks, 4096*ks + 512)
    stamp(1)
    A('s_cmp_eq_u32 s60, 0', 's_cbranch_scc0 L_amov')
    A(f's_add_u32 s3, s63, {WS_MOD}', f's_add_u32 s13, s63, {WS_MOD + 10240}')
    if hg:
        A('s_add_u32 s76, s40, s3', 's_addc_u32 s77, s41, 0')
        A.label('L_hg')
        for a_ in range(2):
            for t_ in range(8): A(f's_load_dword s{78 + 8*a_ + t_}, s[76:77], {10240*a_ + 256*t_ + 8} glc')
        A('s_waitcnt lgkmcnt(0)')
        for r in range(78, 94): A(f's_cmp_eq_u32 s{r}, s9', 's_cbranch_scc0 L_hg2')
        A('s_branch L_hpoll')
        A.label('L_hg2')
        A('s_sleep 2', 's_sub_u32 s95, s95, 1', 's_cbranch_scc0 L_hg', 's_mov_b32 s95, 0')
    A.label('L_hpoll')
    A('buffer_load_dwordx4 v[28:31], v2, s[44:47], s13 offen sc1', 'buffer_load_dwordx4 v[32:35], v2, s[44:47], s13 offen offset:128 sc1')
    A('buffer_load_dwordx4 v[20:23], v2, s[44:47], s3 offen sc1', 'buffer_load_dwordx4 v[24:27], v2, s[44:47], s3 offen offset:128 sc1')
    A('s_waitcnt vmcnt(0)')
    check_tags(['v22', 'v26', 'v30', 'v34'], 'v36', 'L_hpoll', 1)
    stamp(2)
    unpack(44, [28, 29, 32, 33]); plus1(44); rnd8(44, 36)
    for i in range(4): pk('mul', 44+2*i, 44+2*i, 56+2*i)
    unpack(56, [20, 21, 24, 25])
    rnd8(44, 36)
    for i in range(4): pk('add', 44+2*i, 44+2*i, 56+2*i)
    for i in range(4): A(f'v_cvt_pk_bf16_f32 v{40+i}, v{44+2*i}, v{45+2*i}')
    ashift(40)
    A.label('L_amov')
    A('s_waitcnt lgkmcnt(8)' if not stamps else 's_waitcnt lgkmcnt(0)')
    for ks in range(4):
        if ks == 3: A('s_waitcnt lgkmcnt(0)')
        for tl in range(4): mfma(20 + 4*tl, 40 + 4*ks, 64 + 16*tl + 4*ks, ks == 0)
    A('s_mov_b64 exec, 0xffff')
    for tl in range(4): A(f'ds_write_b128 v13, v[{20+4*tl}:{23+4*tl}] offset:{256*tl}')
    lds_signal(0)
    A('s_cmp_eq_u32 s4, 4', 's_cbranch_scc0 L_fin0')
    lds_wait(4, 4, 'L_w1')
    A('s_branch L_tailw')
    A.label('L_fin0')
    A('v_mov_b32 v50, s9', 'v_mov_b32 v51, s9', 'v_mov_b32 v41, s9')
    lds_wait(0, 5, 'L_w0')
    A('ds_read2st64_b32 v[42:43], v14 offset0:0 offset1:4', 'ds_read2st64_b32 v[44:45], v14 offset0:8 offset1:12', 'ds_read_b32 v46, v14 offset:4096')
    A('s_waitcnt lgkmcnt(0)')
    A('v_add_f32 v42, v42, v43', 'v_add_f32 v44, v44, v45', 'v_add_f32 v42, v42, v46', 'v_add_f32 v42, v42, v44')
    A('s_cmp_eq_u32 s60, 0', 's_cbranch_scc1 L_finq')
    pub4('v42', 48, 's43')
    A('s_branch L_fin1')
    A.label('L_finq')
    A(f'v_mov_b32_dpp v43, v42 row_shl:4 {DPPF} bound_ctrl:0', 'v_cvt_pk_bf16_f32 v40, v42, v43')
    A('s_mov_b32 exec_lo, 0x0f0f0f0f', 's_mov_b32 exec_hi, 0x0f0f0f0f')
    A('buffer_store_dwordx2 v[40:41], v15, s[44:47], s43 offen sc1')
    A.label('L_fin1')
    stamp(3)
    lds_signal(4)
    A('s_branch L_tailw')
    A.label('L_tailw0')
    A('s_waitcnt lgkmcnt(0)')
    tagcalc()
    if late & 1:
        A('s_and_b32 s3, s60, 6', 's_cmp_eq_u32 s3, 2', 's_cbranch_scc0 L_tailw')
        lds_wait(*((28, 1) if late & 4 else (12, 6)), 'L_late1', slp=16)
    A('s_cmp_eq_u32 s60, 2', 's_cbranch_scc0 L_twF2')
    A('v_lshrrev_b32 v8, 2, v0', 's_lshl_b32 s3, s4, 7', 'v_add_u32 v8, s3, v8', 'v_mul_u32_u24 v8, 3072, v8', 'v_lshl_add_u32 v8, v4, 4, v8')
    srd(48, 28, 640 * 3072)
    A('s_lshl_b32 s13, s61, 6', 's_mov_b32 m0, s62')
    dma_loop(8, 'v8', 49152, 'L_dma5')
    srd(48, 30, 640 * 3072)
    A('s_lshl_b32 s13, s61, 6')
    dma_loop(8, 'v8', 49152, 'L_dma6')
    A('s_branch L_tailw')
    A.label('L_twF2')
    A('s_cmp_eq_u32 s60, 3', 's_cbranch_scc0 L_tailw', 's_cmp_eq_u32 s4, 4', 's_cbranch_scc1 L_tailw')
    A('v_lshrrev_b32 v8, 1, v0', 'v_mul_u32_u24 v8, 1280, v8', 'v_and_b32 v12, 1, v0', 'v_lshl_add_u32 v8, v12, 4, v8')
    srd(48, 32, 1536 * 1280)
    A('s_mul_i32 s13, s4, 491520', 's_lshl_b32 s3, s61, 5', 's_add_u32 s13, s13, s3', 's_mov_b32 m0, s62')
    dma_loop(12, 'v8', 40960, 'L_dma4')
    A.label('L_tailw')
    A('s_setprio 0')
    xidpub('L_xp')
    if late & 2: lds_wait(*((28, 1) if late & 4 else (12, 6)), 'L_late2', slp=16)
    srd(48, 24, 6144 * 1280)
    A('s_mul_i32 s13, s7, 245760', 's_mul_i32 s3, s8, 160', 's_add_u32 s13, s13, s3')
    A('s_mul_i32 s3, s4, 6144', f's_add_u32 m0, s3, {L_WO}', 's_mul_i32 s3, s4, 384', 'v_add_u32 v9, s3, v0')
    wo_addr = ['v_mul_u32_u24 v8, 6554, v9', 'v_lshrrev_b32 v8, 16, v8', 'v_mul_u32_u24 v8, 1120, v8', 'v_lshl_add_u32 v8, v9, 4, v8']
    A(*wo_addr)
    dma_loop(6, 'v8', None, 'L_dma3', ['v_add_u32 v9, 64, v9'] + wo_addr)
    if wpf:
        A('s_and_b32 s3, s60, 5', 's_cbranch_scc0 L_nowpf', 's_cmp_eq_u32 s60, 3', 's_cbranch_scc1 L_nowpf')
        A('s_lshr_b32 s3, s6, 1', 's_mul_i32 s3, s3, 5', 's_add_u32 s3, s3, s4', 's_mul_i32 s3, s3, 11008', 's_mul_i32 s13, s5, 983040', 's_add_u32 s13, s13, s3', 's_add_u32 s13, s13, 491520')
        A('v_lshlrev_b32 v8, 7, v0', 's_mov_b32 exec_hi, 0x7ff', 'buffer_load_dword v36, v8, s[48:51], s13 offen', 's_add_u32 s13, s13, 5504', 'buffer_load_dword v37, v8, s[48:51], s13 offen', 's_mov_b32 exec_hi, -1')
        A.label('L_nowpf')
    stamp(4)
    A(f's_mov_b32 s58, {hex(LOG2E)}', 's_mov_b32 s56, 0', 's_mov_b32 s57, -1', 's_mov_b32 s12, 0')
    srd(52, 38, 5120)
    A('s_mul_i32 s14, s7, 5120', f's_add_u32 s14, s14, {WS_REC}')
    A('s_mul_i32 s15, s8, 640', 's_add_u32 s15, s15, s14')
    A('s_lshl_b32 s3, s4, 10', "s_add_u32 s14, s14, s3")
    A('s_lshl_b32 s3, s4, 6', 'v_add_u32 v12, s3, v0', 'v_mul_u32_u24 v15, 1639, v12', 'v_lshrrev_b32 v15, 16, v15')
    A('v_mul_u32_u24 v16, 40, v15', 'v_sub_u32 v16, v12, v16', 'v_cmp_gt_u32 s[96:97], 33, v16')
    A('v_add_u32 v15, v15, v12', 'v_lshlrev_b32 v15, 4, v15', f'v_add_u32 v15, {L_RC}, v15')
    A('v_and_b32 v12, 7, v0', 'v_mul_u32_u24 v16, 656, v12', 'v_lshl_add_u32 v16, v6, 4, v16', f'v_add_u32 v16, {L_RC}, v16')
    A('v_and_b32 v17, 1, v6', 'v_lshl_add_u32 v17, v17, 2, v4', 'v_mul_u32_u24 v17, 656, v17', f'v_add_u32 v17, {L_RC + 512}, v17')
    A('v_lshrrev_b32 v19, 5, v0', 'v_lshlrev_b32 v18, 2, v19', 'v_xor_b32 v12, v12, v18', 'v_lshlrev_b32 v18, 10, v12', f'v_add_u32 v18, {L_REC}, v18')
    A('v_and_b32 v12, 31, v0', 'v_lshlrev_b32 v12, 4, v12', 'v_lshl_add_u32 v19, v19, 12, v12', f'v_add_u32 v19, {L_REC}, v19')
    A('v_mul_u32_u24 v12, 960, v6', 'v_lshl_add_u32 v12, v4, 3, v12', 's_lshl_b32 s3, s4, 5', f's_add_u32 s3, s3, {L_WO}', 'v_add_u32 v12, s3, v12')
    A('v_mul_u32_u24 v7, 160, v5', 'v_add_u32 v7, v7, v12', 'v_and_b32 v8, 1, v5', 'v_mul_u32_u24 v8, 160, v8', 'v_add_u32 v8, v8, v12', 'v_add_u32 v8, 640, v8')
    A('s_mul_i32 s43, s8, 5', 's_add_u32 s43, s43, s4', 's_lshl_b32 s43, s43, 5', 's_add_u32 s43, s43, s7', 's_lshl_b32 s43, s43, 8', f's_add_u32 s43, s43, {WS_Y}')
    A('s_cmp_eq_u32 s60, 2', 's_cselect_b32 s3, 6, 5', 's_add_u32 s13, s3, 3')
    A('v_lshlrev_b32 v9, s13, v6', 'v_lshlrev_b32 v20, s3, v5', 'v_add_u32 v9, v9, v20', 'v_lshl_add_u32 v9, v4, 3, v9', 'v_add_u32 v9, s62, v9')
    def wofrags():
        for kk in range(8): tr(64 + 4*kk, 'v7', 3840*kk, 3840*kk, 'v8')
    def f1frags():
        for a_ in range(4):
            for ks in range(4):
                o = 8192 * (a_ >> 1) + 2048 * ks + 32 * (a_ & 1)
                tr(64 + 16*a_ + 4*ks, 'v9', o, o + 256)
    def dsum(r, m):
        A(f'ds_read2st64_b32 v[{r}:{r+1}], v14 offset0:{2*m} offset1:{4+2*m}', f'ds_read2st64_b32 v[{r+2}:{r+3}], v14 offset0:{8+2*m} offset1:{12+2*m}', f'ds_read_b32 v{r+4}, v14 offset:{4096+512*m}')
    A('s_waitcnt vmcnt(0)')
    lds_signal(8)
    if xg == 2: lds_wait(28, 1, 'L_xg', slp=64)
    A('s_cmp_eq_u32 s60, 2', 's_cbranch_scc0 L_preW')
    A(f's_add_u32 s3, s63, {WS_MOD + 3*10240}', f's_add_u32 s13, s63, {WS_MOD + 4*10240}')
    A.label('L_scpoll')
    A('buffer_load_dwordx4 v[36:39], v2, s[44:47], s13 offen sc1', 'buffer_load_dwordx4 v[40:43], v2, s[44:47], s13 offen offset:128 sc1')
    A('buffer_load_dwordx4 v[44:47], v2, s[44:47], s3 offen sc1', 'buffer_load_dwordx4 v[48:51], v2, s[44:47], s3 offen offset:128 sc1')
    A('s_waitcnt vmcnt(0)')
    check_tags(['v38', 'v42', 'v46', 'v50'], 'v52', 'L_scpoll', 8)
    if not lin:
        unpack(20, [36, 37, 40, 41]); unpack(28, [44, 45, 48, 49]); plus1(20); rnd8(20, 36)
    else:
        f1frags()
        unpack(20, [36, 37, 40, 41]); plus1(20)
        A('v_mov_b32 v60, v44', 'v_mov_b32 v61, v45', 'v_mov_b32 v62, v48', 'v_mov_b32 v63, v49')
        rnd8(20, 40)
        for rnd_, cnt in ((0, 20), (1, 24)):
            if rnd_:
                for i in range(4): A(f'v_mov_b32 v{40+i}, v{60+i}')
            ashift(40)
            A('s_waitcnt lgkmcnt(0)')
            dd = [32, 36, 56, 60] if rnd_ else [32, 36, 56, 28]
            for ks in range(4):
                for a_ in range(4): mfma(dd[a_], 40 + 4*ks, 64 + 16*a_ + 4*ks, ks == 0)
            if rnd_: lds_wait(20, 7, 'L_c1')
            A('s_mov_b64 exec, 0xffff')
            for a_ in range(4): A(f'ds_write_b128 v13, v[{dd[a_]}:{dd[a_]+3}] offset:{256*a_}')
            lds_signal(cnt)
            A('s_cmp_lt_u32 s4, 2', f's_cbranch_scc0 L_c2{rnd_}')
            lds_wait(cnt, 5, f'L_c3{rnd_}')
            dsum(44, 0); dsum(50, 1)
            A('s_waitcnt lgkmcnt(0)')
            for r, d in ((44, 28 + rnd_), (50, 30 + rnd_)):
                A(f'v_add_f32 v{r}, v{r}, v{r+1}', f'v_add_f32 v{r+2}, v{r+2}, v{r+3}', f'v_add_f32 v{r}, v{r}, v{r+4}', f'v_add_f32 v{d}, v{r}, v{r+2}')
            lds_signal(cnt)
            A.label(f'L_c2{rnd_}')
    A.label('L_preW')
    lds_wait(8, 5, 'L_wow', slp=4)
    wofrags()
    A('v_mov_b32 v12, 0')
    A('s_cmp_eq_u32 s60, 2', 's_cbranch_scc0 L_preB')
    A('v_lshlrev_b32 v11, 3, v4', 's_lshl_b32 s3, s4, 5', 'v_add_u32 v12, s3, v11')
    A('s_branch L_preD')
    A.label('L_preB')
    A('s_cmp_eq_u32 s60, 3', 's_cbranch_scc0 L_preR')
    A('s_lshl_b32 s13, s61, 8', f's_add_u32 s13, s13, {WS_MOD + 5*10240}', 'v_mov_b32 v12, v3', 'v_lshrrev_b32 v21, 2, v0')
    A('s_branch L_preG0')
    A.label('L_preR')
    A('s_cmp_eq_u32 s59, -1', 's_cbranch_scc1 L_preD')
    A('v_and_b32 v21, 15, v0', 'v_mov_b32 v22, v6')
    vpub('v12', 'v21', 'v22', 'v23')
    srd(48, 16, 5120)
    A('v_mul_u32_u24 v23, 1280, v22', 'v_lshl_add_u32 v23, v21, 1, v23', 's_lshl_b32 s3, s59, 5')
    A('buffer_load_ushort v20, v23, s[48:51], s3 offen')
    A('s_lshl_b32 s13, s59, 8', f's_add_u32 s13, s13, {WS_MOD + 2*10240}')
    A.label('L_preG0')
    A('v_and_b32 v11, -16, v12', 'v_and_b32 v23, 2, v21', 'v_cmp_eq_u32 s[98:99], 0, v23', 'v_and_b32 v22, 1, v21', 'v_lshlrev_b32 v22, 4, v22', 'v_sub_u32 v22, 16, v22')
    A.label('L_preG')
    A('buffer_load_dwordx4 v[24:27], v11, s[44:47], s13 offen sc1')
    A('s_waitcnt vmcnt(0)')
    check_tags(['v26'], None, 'L_preG', 8)
    A('v_cndmask_b32 v24, v25, v24, s[98:99]', 'v_lshlrev_b32 v21, v22, v24', 'v_and_b32 v21, 0xffff0000, v21')
    A('v_lshlrev_b32 v20, 16, v20')
    A.label('L_preD')
    if fast:
        A('s_cmp_eq_u32 s4, 0', 's_cbranch_scc0 L_noxid')
        if xg == 1: lds_wait(28, 1, 'L_xg', vtmp='v40', slp=64)
        A('s_getreg_b32 s42, hwreg(HW_REG_XCC_ID)', 's_lshl_b32 s13, s5, 12', f's_add_u32 s13, s13, {WS_XID}', 'v_lshlrev_b32 v38, 7, v0', 's_mov_b32 exec_hi, 0')
        A.label('L_xid')
        A('buffer_load_dwordx2 v[40:41], v38, s[44:47], s13 offen sc1', 's_waitcnt vmcnt(0)')
        check_tags(['v41'], None, 'L_xid', 100)
        A('v_cmp_ne_u32 vcc, s42, v40', 's_mov_b32 exec_hi, -1', 's_cmp_eq_u64 vcc, 0', 's_cselect_b32 s12, 1, 0')
        A('s_cmp_eq_u32 s95, 0', 's_cselect_b32 s12, 0, s12', 'v_mov_b32 v40, s12', f'ds_write_b32 v10, v40 offset:{L_FAST}')
        A.label('L_noxid')
    A('v_mov_b32 v43, s9')
    A('s_waitcnt vmcnt(0) lgkmcnt(0)')
    stamp(5)
    A('s_setprio 2')
    A('s_barrier')
    stamp(6)
    A('s_cmp_eq_u32 s4, 0', 's_cbranch_scc0 L_O')
    A('ds_read_b32 v36, v18 offset:524', 'ds_read_b32 v37, v18 offset:12')
    for i in range(4): A(f'ds_read_b128 v[{96+8*i}:{99+8*i}], v19 offset:{1024*i}', f'ds_read_b128 v[{100+8*i}:{103+8*i}], v19 offset:{1024*i+512}')
    A('s_waitcnt lgkmcnt(8)')
    A(f'v_max_f32_dpp v38, v36, v36 quad_perm:[1,0,3,2] {DPPF}', f'v_max_f32_dpp v38, v38, v38 quad_perm:[2,3,0,1] {DPPF}', f'v_max_f32_dpp v38, v38, v38 row_half_mirror {DPPF}')
    A('v_sub_f32 v36, v36, v38', 'v_mul_f32 v36, s58, v36', 'v_exp_f32 v36, v36', 'v_mul_f32 v37, v37, v36')
    lch = [f'v_add_f32_dpp v37, v37, v37 quad_perm:[1,0,3,2] {DPPF}', f'v_add_f32_dpp v37, v37, v37 quad_perm:[2,3,0,1] {DPPF}', f'v_add_f32_dpp v37, v37, v37 row_half_mirror {DPPF}', 'v_rcp_f32 v39, v37']
    for i in range(4):
        A(f's_waitcnt lgkmcnt({6 - 2*i})')
        for k in range(3):
            op = 'v_mul_f32_dpp' if i == 0 else 'v_fmac_f32_dpp'
            A(f'{op} v{56+2*k}, v36, v{96+8*i+k} row_newbcast:{i} {DPPF}', f'{op} v{57+2*k}, v36, v{100+8*i+k} row_newbcast:{i} {DPPF}')
        A(lch[i])
    A('v_permlane32_swap_b32 v58, v59', 'v_permlane32_swap_b32 v56, v60', 'v_permlane32_swap_b32 v57, v61')
    A('v_add_f32 v58, v58, v59', 'v_add_f32 v56, v56, v60', 'v_add_f32 v57, v57, v61')
    A('v_mul_f32 v58, v58, v39', 'v_mul_f32 v56, v56, v39', 'v_mul_f32 v57, v57, v39')
    A('v_mov_b32 v59, v58', 'v_cvt_pk_bf16_f32 v40, v56, v57', 'v_cvt_pk_bf16_f32 v42, v56, v57')
    A('v_permlane32_swap_b32 v58, v59', 'v_permlane32_swap_b32 v40, v42')
    A('v_cvt_pk_bf16_f32 v41, v58, v59')
    A('v_cndmask_b32 v40, v40, v38, s[56:57]', 'v_cndmask_b32 v41, v41, v37, s[56:57]')
    A('s_mov_b32 exec_hi, 1')
    if fast:
        A('s_cmp_eq_u32 s12, 1', 's_cbranch_scc0 L_slowrec')
        A('buffer_store_dwordx4 v[40:43], v1, s[44:47], s15 offen')
        A('s_branch L_recdone')
        A.label('L_slowrec')
    A('buffer_store_dwordx4 v[40:43], v1, s[44:47], s15 offen sc1')
    A.label('L_recdone')
    A('s_mov_b32 exec_hi, -1')
    A.label('L_O')
    stamp(7)
    A('s_mov_b64 exec, s[96:97]')
    A.label('L_opoll')
    A('buffer_load_dwordx4 v[44:47], v1, s[44:47], s14 offen sc1')
    A('s_waitcnt vmcnt(0)')
    check_tags(['v47'], None, 'L_opoll', sleep)
    A('v_mov_b32 v47, 0')
    A('ds_write_b128 v15, v[44:47]')
    A('s_mov_b64 exec, -1')
    A('s_waitcnt lgkmcnt(0)')
    A('s_barrier')
    stamp(8)
    A('ds_read_b64 v[36:37], v17')
    for kk in range(8): A(f'ds_read_b128 v[{96+4*kk}:{99+4*kk}], v16 offset:{64*kk}')
    A('v_mov_b32 v51, s9', 's_mov_b32 s16, 0x07060501', 's_mov_b32 s17, 0x07060502', 's_mov_b32 s18, 0x07060503')
    A('s_waitcnt lgkmcnt(8)')
    A(f'v_max_f32_dpp v38, v36, v36 quad_perm:[1,0,3,2] {DPPF}')
    for kk in range(8):
        A(f's_waitcnt lgkmcnt({7-kk})')
        mfma(40, 96 + 4*kk, 64 + 4*kk, kk == 0)
        if kk == 0: A('v_sub_f32 v36, v36, v38', 'v_mul_f32 v36, s58, v36')
        if kk == 1: A('v_exp_f32 v36, v36')
        if kk == 2: A('v_mul_f32 v36, v36, v37')
        if kk == 3: A(f'v_add_f32_dpp v37, v36, v36 quad_perm:[1,0,3,2] {DPPF}')
        if kk == 4: A('v_rcp_f32 v37, v37')
        if kk == 5: A('v_mul_f32 v36, v36, v37')
    A(f'v_mul_f32_dpp v44, v36, v40 quad_perm:[0,0,0,0] {DPPF}', f'v_mul_f32_dpp v45, v36, v42 quad_perm:[2,2,2,2] {DPPF}')
    A(f'v_fmac_f32_dpp v44, v36, v41 quad_perm:[1,1,1,1] {DPPF}', f'v_fmac_f32_dpp v45, v36, v43 quad_perm:[3,3,3,3] {DPPF}')
    A('v_permlane16_swap_b32 v44, v46', 'v_permlane16_swap_b32 v45, v47')
    A('v_perm_b32 v48, v44, v47, s16', 'v_perm_b32 v49, v45, v47, s17', 'v_perm_b32 v50, v46, v47, s18')
    A('s_mov_b64 exec, 0xffff')
    A('buffer_store_dwordx4 v[48:51], v1, s[44:47], s43 offen sc1')
    A('s_mov_b64 exec, -1')
    stamp(9)
    A('s_mul_i32 s14, s5, 10240', f's_add_u32 s14, s14, {WS_X1}')
    A('s_cmp_eq_u32 s60, 3', 's_cbranch_scc1 L_F2')
    A('s_cmp_eq_u32 s60, 2', 's_cbranch_scc0 L_R')
    f1frags()
    if gf:
        A(f'ds_read_b32 v36, v10 offset:{L_FAST}', 's_mul_i32 s42, s5, 6', 's_sub_u32 s42, s61, s42', 's_lshl_b32 s42, s42, 1', 's_add_u32 s42, s42, s4', 's_lshl_b32 s42, s42, 3',
          's_lshl_b32 s3, s5, 7', 's_add_u32 s42, s42, s3', f's_add_u32 s42, s42, {WS_GF}', 's_waitcnt lgkmcnt(0)', 'v_readfirstlane_b32 s12, v36')
    A('s_add_u32 s3, s63, s14', 's_mov_b32 s13, 0x3f803f80')
    A.label('L_xpoll')
    A('buffer_load_dwordx4 v[48:51], v2, s[44:47], s3 offen sc1', 'buffer_load_dwordx4 v[52:55], v2, s[44:47], s3 offen offset:128 sc1')
    A('s_waitcnt vmcnt(0)')
    check_tags(['v50', 'v54'], 'v39', 'L_xpoll', xs)
    stamp(10)
    k0 = -2.0 * 1.4426950408889634 * 0.7978845608028654
    if lin:
        unpack(56, [48, 49, 52, 53])
        for i in range(4): pk('mul', 56+2*i, 56+2*i, 20+2*i)
        for i in range(4): A(f'v_cvt_pk_bf16_f32 v{40+i}, v{56+2*i}, v{57+2*i}')
        side = []
        for i, r in enumerate([48, 49, 52, 53]):
            side += [f'v_dot2_f32_bf16 v56, v{r}, s13, {"0" if i == 0 else "v56"}', f'v_dot2_f32_bf16 v57, v{r}, v{r}, {"0" if i == 0 else "v57"}']
        sh = lambda ks: [f'v_mov_b32_dpp v{40+4*ks+i}, v{40+i} row_shl:{4*ks} {DPPF} bound_ctrl:0' for i in range(4)]
        red = [f'v_add_f32_dpp v56, v56, v56 row_ror:4 {DPPF}', f'v_add_f32_dpp v57, v57, v57 row_ror:4 {DPPF}', f'v_add_f32_dpp v56, v56, v56 row_ror:8 {DPPF}', f'v_add_f32_dpp v57, v57, v57 row_ror:8 {DPPF}',
               'v_permlane16_swap_b32 v56, v57', 'v_add_f32 v56, v56, v57', 'v_mov_b32 v58, v56', 'v_permlane32_swap_b32 v56, v58', 'v_add_f32 v56, v56, v58', 'v_mov_b32 v57, v56', 'v_permlane16_swap_b32 v56, v57']
        fill = {0: sh(1)[:2], 1: sh(1)[2:], 2: side[:4], 3: side[4:], 4: sh(2)[:2], 5: sh(2)[2:], 6: red[:2], 7: red[2:4], 8: sh(3)[:2], 9: sh(3)[2:], 10: red[4:6], 11: red[6:7], 12: red[7:9], 13: red[9:10], 14: red[10:]}
        dd = [20, 24, 32, 36]
        A('s_waitcnt lgkmcnt(0)')
        for ks in range(4):
            for a_ in range(4):
                mfma(dd[a_], 40 + 4*ks, 64 + 16*a_ + 4*ks, ks == 0)
                A(*fill.get(4*ks + a_, []))
        A('s_mov_b64 exec, 15', f'ds_write_b64 v12, v[56:57] offset:{L_ST}')
        A('s_lshl_b32 s3, s61, 1', 's_add_u32 s3, s3, s4', 's_lshl_b32 s3, s3, 8', f's_add_u32 s3, s3, {WS_G}')
        A('s_mov_b64 exec, 0xffff')
        for a_ in range(4): A(f'ds_write_b128 v13, v[{dd[a_]}:{dd[a_]+3}] offset:{256*a_}')
        A('s_mov_b64 exec, -1', 'v_mov_b32 v58, s9', 'v_mov_b32 v59, s9')
        A('s_waitcnt lgkmcnt(0)')
        A('s_barrier')
        A('s_cmp_lt_u32 s4, 2', 's_cbranch_scc0 L_tend')
        A(f'ds_read2_b64 v[64:67], v11 offset0:{L_ST//8} offset1:{L_ST//8+4}', f'ds_read2_b64 v[68:71], v11 offset0:{L_ST//8+8} offset1:{L_ST//8+12}', f'ds_read_b64 v[72:73], v11 offset:{L_ST+128}')
        dsum(40, 0); dsum(46, 1)
        A(f'v_mov_b32 v52, {hex(f2u(k0))}', f'v_mov_b32 v74, {hex(f2u(1/640))}')
        A('s_waitcnt lgkmcnt(6)')
        pk('add', 64, 64, 66); pk('add', 68, 68, 70); pk('add', 72, 72, 64); pk('add', 72, 72, 68)
        pk('mul', 72, 72, 74, 'op_sel_hi:[1,0]')
        A('v_fma_f32 v38, -v72, v72, v73', 'v_max_f32 v38, 0, v38', 'v_cvt_pk_bf16_f32 v72, v72, v38')
        A('s_waitcnt lgkmcnt(3)')
        A('v_and_b32 v38, 0xffff0000, v72', 'v_add_f32 v40, v40, v41', f'v_add_f32 v38, {hex(f2u(1e-5))}, v38', 'v_add_f32 v42, v42, v43', 'v_cvt_pk_bf16_f32 v38, v38, v38', 'v_lshlrev_b32 v72, 16, v72', 'v_lshlrev_b32 v38, 16, v38')
        A('v_sqrt_f32 v38, v38', 'v_add_f32 v40, v40, v44', 'v_cvt_pk_bf16_f32 v38, v38, v38', 'v_fma_f32 v42, -v72, v28, v42', 'v_lshlrev_b32 v38, 16, v38', 'v_rcp_f32 v38, v38', 'v_add_f32 v40, v40, v42')
        A('s_waitcnt lgkmcnt(0)')
        A('v_fma_f32 v40, v40, v38, v29', 'v_add_f32 v46, v46, v47', 'v_mul_f32 v41, v40, v40', 'v_add_f32 v48, v48, v49', f'v_fmac_f32 v52, {hex(f2u(k0*0.044715))}, v41', 'v_add_f32 v46, v46, v50', 'v_mul_f32 v52, v52, v40')
        A('v_fma_f32 v48, -v72, v30, v48', 'v_exp_f32 v52, v52', 'v_add_f32 v46, v46, v48', 'v_add_f32 v52, 1.0, v52', 'v_fma_f32 v46, v46, v38, v31', 'v_rcp_f32 v52, v52', 'v_mul_f32 v40, v40, v46', 'v_mul_f32 v40, v40, v52')
    else:
        for i, r in enumerate([48, 49, 52, 53]):
            A(f'v_dot2_f32_bf16 v36, v{r}, s13, {"0" if i == 0 else "v36"}', f'v_dot2_f32_bf16 v37, v{r}, v{r}, {"0" if i == 0 else "v37"}')
        unpack(56, [48, 49])
        allreduce_b('v36', 'v37', 'v38')
        A('s_mov_b64 exec, 15', f'ds_write_b64 v12, v[36:37] offset:{L_ST}', 's_mov_b64 exec, -1')
        unpack(60, [52, 53])
        A('s_lshl_b32 s3, s61, 1', 's_add_u32 s3, s3, s4', 's_lshl_b32 s3, s3, 8', f's_add_u32 s3, s3, {WS_G}', f'v_mov_b32 v38, {hex(f2u(1e-5))}')
        A('s_waitcnt lgkmcnt(0)')
        A('s_barrier')
        A(f'ds_read2_b64 v[40:43], v11 offset0:{L_ST//8} offset1:{L_ST//8+4}', f'ds_read2_b64 v[44:47], v11 offset0:{L_ST//8+8} offset1:{L_ST//8+12}', f'ds_read_b64 v[36:37], v11 offset:{L_ST+128}')
        A('s_waitcnt lgkmcnt(0)')
        pk('add', 40, 40, 42); pk('add', 44, 44, 46); pk('add', 36, 36, 40); pk('add', 36, 36, 44)
        A(f'v_mul_f32 v36, {hex(f2u(1/640))}, v36', f'v_fmac_f32 v38, {hex(f2u(1/640))}, v37', 'v_fma_f32 v38, -v36, v36, v38')
        for i in range(2): pk('add', 56+2*i, 56+2*i, 36, 'op_sel_hi:[1,0] neg_lo:[0,1] neg_hi:[0,1]')
        A(f'v_max_f32 v38, {hex(f2u(1e-5))}, v38', 'v_rsq_f32 v38, v38')
        for i in range(2, 4): pk('add', 56+2*i, 56+2*i, 36, 'op_sel_hi:[1,0] neg_lo:[0,1] neg_hi:[0,1]')
        for i in range(4): pk('mul', 56+2*i, 56+2*i, 20+2*i)
        for i in range(4): A(f'v_pk_fma_f32 v[{56+2*i}:{57+2*i}], v[{56+2*i}:{57+2*i}], v[38:39], v[{28+2*i}:{29+2*i}] op_sel_hi:[1,0,1]')
        for i in range(4): A(f'v_cvt_pk_bf16_f32 v{40+i}, v{56+2*i}, v{57+2*i}')
        A('v_mov_b32 v58, s9', 'v_mov_b32 v59, s9')
        for ks in range(4):
            for a_ in range(4):
                mfma(20 + 4*a_, 40 + 4*ks, 64 + 16*a_ + 4*ks, ks == 0)
                if ks < 3 and a_ < 2:
                    for i in (2*a_, 2*a_+1): A(f'v_mov_b32_dpp v{44+4*ks+i}, v{40+i} row_shl:{4*ks+4} {DPPF} bound_ctrl:0')
        A('s_mov_b64 exec, 0xffff')
        for a_ in range(4): A(f'ds_write_b128 v13, v[{20+4*a_}:{23+4*a_}] offset:{256*a_}')
        A('s_mov_b64 exec, -1')
        A('s_waitcnt lgkmcnt(0)')
        A('s_barrier')
        A('s_cmp_lt_u32 s4, 2', 's_cbranch_scc0 L_tend')
        for m in range(2):
            r = 40 + 6 * m
            A(f'ds_read2st64_b32 v[{r}:{r+1}], v14 offset0:{2*m} offset1:{4+2*m}', f'ds_read2st64_b32 v[{r+2}:{r+3}], v14 offset0:{8+2*m} offset1:{12+2*m}', f'ds_read_b32 v{r+4}, v14 offset:{4096+512*m}')
        k0 = -2.0 * 1.4426950408889634 * 0.7978845608028654
        A(f'v_mov_b32 v52, {hex(f2u(k0))}')
        A('s_waitcnt lgkmcnt(3)')
        A('v_add_f32 v40, v40, v41', 'v_add_f32 v42, v42, v43', 'v_add_f32 v40, v40, v44', 'v_add_f32 v40, v40, v42', 'v_mul_f32 v41, v40, v40')
        A('s_waitcnt lgkmcnt(0)')
        A('v_add_f32 v46, v46, v47', f'v_fmac_f32 v52, {hex(f2u(k0*0.044715))}, v41', 'v_add_f32 v48, v48, v49', 'v_mul_f32 v52, v52, v40', 'v_add_f32 v46, v46, v50')
        A('v_exp_f32 v52, v52', 'v_add_f32 v46, v46, v48', 'v_add_f32 v52, 1.0, v52', 'v_mul_f32 v40, v40, v46', 'v_rcp_f32 v52, v52', 'v_mul_f32 v40, v40, v52')
    pub4('v40', 56, 's3')
    if gf:
        A('s_mov_b64 exec, 1', 's_cmp_eq_u32 s12, 1', 's_cbranch_scc0 L_slowgf')
        A('buffer_store_dwordx2 v[58:59], v10, s[44:47], s42 offen')
        stamp(11)
        A('s_branch L_tend')
        A.label('L_slowgf')
        A('buffer_store_dwordx2 v[58:59], v10, s[44:47], s42 offen sc1')
    stamp(11)
    A('s_branch L_tend')
    A.label('L_R')
    A('s_cmp_eq_u32 s59, -1', 's_cbranch_scc1 L_tend')
    A('s_lshl_b32 s3, s59, 13', f's_add_u32 s3, s3, {WS_Y}', 's_add_u32 s13, s3, 4096')
    A('s_lshl_b32 s59, s59, 8', 's_add_u32 s14, s14, s59')
    A('v_mov_b32 v42, s9', 'v_mov_b32 v43, s9', 's_mov_b32 s15, 15', 's_mov_b32 s16, 0x0c04000c', 's_mov_b32 s17, 0x04020100')
    if fast: A(f'ds_read_b32 v36, v10 offset:{L_FAST}', 's_waitcnt lgkmcnt(0)', 'v_readfirstlane_b32 s12, v36')
    A.label('L_ypoll')
    for g in range(4):
        A(f's_bitcmp1_b32 s15, {g}', f's_cbranch_scc0 L_yl{g}')
        for i in range(2): A(f'buffer_load_dwordx4 v[{64+8*g+4*i}:{67+8*g+4*i}], v1, s[44:47], {"s3" if g < 2 else "s13"} offen offset:{2048*(g&1)+1024*i} sc1')
        A.label(f'L_yl{g}')
    A('s_waitcnt vmcnt(0)')
    for g in range(4):
        r = 64 + 8 * g
        A(f's_bitcmp1_b32 s15, {g}', f's_cbranch_scc0 L_yc{g}')
        A(f'v_xor_b32 v36, s9, v{r+3}', f'v_perm_b32 v37, v{r+1}, v{r}, s16', f'v_bitop3_b32 v36, v36, v{r+7}, s9 bitop3:0xf6', f'v_perm_b32 v38, v{r+5}, v{r+4}, s16')
        A('v_cmp_ne_u32 vcc, 0, v36', f'v_perm_b32 v{r+3}, v{r+2}, v37, s17', f'v_perm_b32 v{r+7}, v{r+6}, v38, s17')
        A(f's_cbranch_vccnz L_yc{g}')
        pk('add', r, r, r + 4); A(f's_bitset0_b32 s15, {g}'); pk('add', r + 2, r + 2, r + 6)
        A.label(f'L_yc{g}')
    A('s_cmp_eq_u32 s15, 0', 's_cbranch_scc1 L_yok')
    if ysleep: A(f's_sleep {ysleep}')
    A('s_sub_u32 s95, s95, 1', 's_cbranch_scc0 L_ypoll', 's_mov_b32 s95, 0')
    A.label('L_yok')
    stamp(10)
    pk('add', 64, 64, 72); pk('add', 80, 80, 88); pk('add', 66, 66, 74); pk('add', 82, 82, 90); pk('add', 64, 64, 80); pk('add', 66, 66, 82)
    A('v_permlane16_swap_b32 v64, v65', 'v_permlane16_swap_b32 v66, v67', 'v_add_f32 v64, v64, v65', 'v_add_f32 v66, v66, v67')
    A('v_permlane32_swap_b32 v64, v66', 'v_add_f32 v44, v64, v66', 'v_fma_f32 v44, v44, v21, v20')
    A(f'v_mov_b32_dpp v46, v44 quad_perm:[1,1,3,3] {DPPF}', 'v_cvt_pk_bf16_f32 v40, v44, v46', f'v_mov_b32_dpp v41, v40 quad_perm:[2,2,2,2] {DPPF}')
    A('s_mov_b32 exec_lo, 0x11111111', 's_mov_b32 exec_hi, 0x11111111')
    if fast:
        A('s_cmp_eq_u32 s12, 1', 's_cbranch_scc0 L_slowx1')
        A('buffer_store_dwordx4 v[40:43], v12, s[44:47], s14 offen')
        A('s_branch L_x1done')
        A.label('L_slowx1')
    A('buffer_store_dwordx4 v[40:43], v12, s[44:47], s14 offen sc1')
    A.label('L_x1done')
    stamp(11)
    A('s_or_b32 s59, s59, s5', 's_cbranch_scc1 L_tend')
    A('s_mov_b64 exec, 1', 'buffer_store_dword v42, v10, s[44:47], 0 offen sc1')
    A('s_branch L_tend')
    A.label('L_F2')
    A('s_cmp_eq_u32 s4, 4', 's_cbranch_scc1 L_tend')
    for ks in range(12): tr(64 + 4*ks, 'v9', 1024*ks, 1024*ks + 128)
    A('s_lshl_b32 s3, s61, 8', 's_add_u32 s14, s14, s3')
    A.label('L_x2poll')
    A('buffer_load_dwordx4 v[24:27], v11, s[44:47], s14 offen sc1', 's_waitcnt vmcnt(0)')
    check_tags(['v26'], None, 'L_x2poll', 2)
    A('v_cndmask_b32 v24, v25, v24, s[98:99]', 'v_lshlrev_b32 v20, v22, v24', 'v_and_b32 v20, 0xffff0000, v20')
    A('s_mul_i32 s3, s4, 6144', f's_add_u32 s3, s3, {WS_G}', 's_add_u32 s13, s3, 4096', 's_lshl_b32 s42, s61, 5')
    A('v_lshrrev_b32 v23, 2, v0', 'v_lshlrev_b32 v23, 1, v23', 'v_mul_u32_u24 v24, 1280, v4', 'v_add_u32 v23, v23, v24')
    if gf:
        A('s_lshl_b32 s14, s5, 7', f's_add_u32 s14, s14, {WS_GF}', 'v_lshlrev_b32 v25, 3, v0', 's_mov_b64 exec, 0xfff')
        A.label('L_gfpoll')
        A('buffer_load_dword v26, v25, s[44:47], s14 offen sc1', 's_waitcnt vmcnt(0)')
        check_tags(['v26'], None, 'L_gfpoll', 0)
        A('s_mov_b64 exec, -1')
    A.label('L_gpoll')
    for i in range(6):
        A(f'buffer_load_dwordx4 v[{36+4*i}:{39+4*i}], v2, s[44:47], {"s3" if i < 4 else "s13"} offen offset:{2048*((i//2)%2)+128*(i%2)} sc1')
    A('s_waitcnt vmcnt(0)')
    check_tags([f'v{38+4*i}' for i in range(6)], 'v60', 'L_gpoll', 0)
    stamp(10)
    for n in range(12):
        blk, ks = divmod(n, 4)
        for i in range(4):
            sr = 36 + 8 * blk + (i & 1) + 4 * (i >> 1)
            if ks == 0: A(f'v_mov_b32 v{112+i}, v{sr}')
            else: A(f'v_mov_b32_dpp v{112+4*ks+i}, v{sr} row_shl:{4*ks} {DPPF} bound_ctrl:0')
        if n: mfma(60, 112 + 4*((n-1) % 4), 64 + 4*(n-1), n == 1)
    mfma(60, 124, 108, False)
    A('s_mov_b64 exec, 0xffff')
    A('ds_write_b128 v13, v[60:63]')
    A('s_mov_b64 exec, -1')
    A('s_waitcnt lgkmcnt(0)')
    A('s_barrier')
    A('s_cmp_eq_u32 s4, 0', 's_cbranch_scc0 L_tend')
    A('ds_read2st64_b32 v[40:41], v14 offset0:0 offset1:4', 'ds_read2st64_b32 v[42:43], v14 offset0:8 offset1:12')
    A('s_waitcnt lgkmcnt(0)')
    pk('add', 40, 40, 42)
    A('v_add_f32 v40, v40, v41', 'v_fma_f32 v40, v40, v21, v20', 'v_cvt_pk_bf16_f32 v40, v40, v40')
    A(f'buffer_store_short v40, v23, s[52:55], s42 offen {OP}')
    stamp(11)
    A.label('L_tend')
    if stamps: A('s_memtime s[90:91]', 's_memrealtime s[92:93]')
    stamp_flush(15)
    A.label('L_end')
    A('s_endpgm')

    body = A.fix()
    hdr = open('adaLN_cond__gqa_block_cached__geglu_ffn__decode.s.ref').read().split('\n')
    hdr = [l for l in hdr if l.startswith(';') and '@launch' not in l and 'Override' not in l and 'grid=ceil' not in l]
    notes = '''One persistent launch, one workgroup per CU: workgroup = (head, batch, half of the keys).
Waves 5..12 stream K (scores parked in LDS, true maximum per wave), then V, 16 keys per step.  Waves 0..4 run the small matmuls:
  start : silu(c) @ w_mod strips -> layernorm / modulate -> q strips; weights of the later stages go to LDS
  end   : merge of the splits, o @ wo, sum over heads + residual, layernorm, gate / up, gelu, down, residual
Workgroups hand data over through d_ws in 8 / 16 byte granules that carry a per-launch tag
(derived from an epoch word in d_ws that the launch advances); consumers poll the tags.
Write-through stores are used unless a run-time check shows producer and consumers on one XCD.'''
    hdr += ['; ' + l for l in notes.split('\n')]
    out = hdr + [f'; @launch grid=(256,1,1) block=(832,1,1) lds={LDS_SIZE}',
                 '.amdgcn_target "amdgcn-amd-amdhsa--gfx950"', '.text', f'.globl {KNAME}', '.p2align 8', f'.type {KNAME},@function', f'{KNAME}:']
    out += [('' if l.endswith(':') else '    ') + l for l in body]
    out += ['.section .rodata,"a"', '.p2align 6', f'.amdhsa_kernel {KNAME}',
            '  .amdhsa_next_free_vgpr 128', '  .amdhsa_next_free_sgpr 100', '  .amdhsa_accum_offset 128',
            '  .amdhsa_float_denorm_mode_32 3',
            '  .amdhsa_group_segment_fixed_size 0', '  .amdhsa_kernarg_size 112', '  .amdhsa_user_sgpr_count 2',
            '  .amdhsa_user_sgpr_kernarg_segment_ptr 1', '  .amdhsa_system_sgpr_workgroup_id_x 1', '.end_amdhsa_kernel']
    return '\n'.join(out) + '\n'

if __name__ == '__main__':
    kw = eval('dict(' + (sys.argv[2] if len(sys.argv) > 2 else '') + ')')
    open(sys.argv[1], 'w').write(gen(**kw))
```
